```python
import torch

def _softmax(x, axis=-1):
    return torch.softmax(x, dim=axis)
def _gelu(x):
    return torch.nn.functional.gelu(x, approximate="tanh")
def _silu(x):
    return torch.nn.functional.silu(x)
def _sigmoid(x):
    return torch.sigmoid(x)
def _layernorm(x, axis=-1, eps=1e-5):
    m = x.mean(dim=axis, keepdim=True)
    v = x.var(dim=axis, keepdim=True, unbiased=False)
    return (x - m) / torch.sqrt(v + eps)
def _scatter_add(tgt, idx, src, axis=0):
    return tgt.clone().index_add_(axis, idx, src)
def _segment_sum(src, seg, n):
    out = torch.zeros((n,) + src.shape[1:], dtype=src.dtype)
    return out.index_add_(0, seg, src)
def _pad(x, pw):
    flat = tuple(v for pair in reversed(pw) for v in pair)
    return torch.nn.functional.pad(x, flat)

kernel_name = 'parallel_sum__grouped_kv_mqa__mixer_channel_mlp__prompt'

def setup_inputs():

    _w = (lambda a: (lambda t: t.to(torch.bfloat16) if t.is_floating_point() else t)(torch.as_tensor(a)))
    def _A_setup():
        B, S, D, H = 1, 2048, 576, 32
        Dh = D // H
        return {
            "x": _w((lambda *s: torch.randn(*s, dtype=torch.bfloat16) * 0.05)(B, S, D)),
            "wq": _w((lambda *s: torch.randn(*s, dtype=torch.bfloat16) * 0.05)(D, H * Dh)),
            "wk": _w((lambda *s: torch.randn(*s, dtype=torch.bfloat16) * 0.05)(D, Dh)),
            "wv": _w((lambda *s: torch.randn(*s, dtype=torch.bfloat16) * 0.05)(D, Dh)),
            "wo": _w((lambda *s: torch.randn(*s, dtype=torch.bfloat16) * 0.05)(H * Dh, D)),
        }
    _A_in = _A_setup()

    def _B_setup():
        B, S, D, F = 1, 2048, 576, 4608
        return {
            "x": _w((lambda *s: torch.randn(*s, dtype=torch.bfloat16) * 0.05)(B, S, D)),
            "w1": _w((lambda *s: torch.randn(*s, dtype=torch.bfloat16) * 3.2)(D, F) * (D ** -0.5)),
            "b1": _w((lambda *s: torch.randn(*s, dtype=torch.bfloat16) * 0.8)(F)),
            "w2": _w((lambda *s: torch.randn(*s, dtype=torch.bfloat16) * 0.1)(F, D) * (F ** -0.5)),
            "b2": _w((lambda *s: torch.randn(*s, dtype=torch.bfloat16) * 0.1)(D)),
        }
    _B_in = _B_setup()

    return {
        "A_x": _A_in["x"],
        "A_wq": _A_in["wq"],
        "A_wk": _A_in["wk"],
        "A_wv": _A_in["wv"],
        "A_wo": _A_in["wo"],
        "B_x": _B_in["x"],
        "B_w1": _B_in["w1"],
        "B_b1": _B_in["b1"],
        "B_w2": _B_in["w2"],
        "B_b2": _B_in["b2"],
    }

def reference(A_x, A_wq, A_wk, A_wv, A_wo, B_x, B_w1, B_b1, B_w2, B_b2):
    def _A_ref(x, wq, wk, wv, wo):
        B, S, D = x.shape
        H = 32
        Dh = D // H
        q = (lambda x, *d: x.permute(*d))((x @ wq).reshape(B, S, H, Dh), 0, 2, 1, 3)
        k = x @ wk
        v = x @ wv
        scores = torch.einsum("bhqd,bkd->bhqk", q, k) * (Dh ** -0.5)
        p = _softmax(scores, axis=-1)
        o = torch.einsum("bhqk,bkd->bhqd", p, v)
        return (lambda x, *d: x.permute(*d))(o, 0, 2, 1, 3).reshape(B, S, H * Dh) @ wo

    def _B_ref(x, w1, b1, w2, b2):
        y = _layernorm(x, axis=-1)
        h = _gelu(torch.einsum("bsd,df->bsf", y, w1) + b1)
        return torch.einsum("bsf,fd->bsd", h, w2) + b2

    x = A_x
    xn = _layernorm(x, axis=-1)
    return x + _A_ref(xn, A_wq, A_wk, A_wv, A_wo) + _B_ref(xn, B_w1, B_b1, B_w2, B_b2)
```

```python
import re


class R:
    __slots__ = ("k", "i", "n")

    def __init__(self, k, i, n=1):
        self.k, self.i, self.n = k, i, n

    def __str__(self):
        if self.n == 1:
            return f"{self.k}{self.i}"
        return f"{self.k}[{self.i}:{self.i + self.n - 1}]"

    __repr__ = __str__

    def __getitem__(self, j):
        if isinstance(j, slice):
            st = j.start or 0
            en = self.n if j.stop is None else j.stop
            assert 0 <= st < en <= self.n, (self, j)
            return R(self.k, self.i + st, en - st)
        assert 0 <= j < self.n, (self, j)
        return R(self.k, self.i + j, 1)

    def regs(self):
        return {(self.k, self.i + j) for j in range(self.n)}


def v(i, n=1):
    return R("v", i, n)


def s(i, n=1):
    return R("s", i, n)


VCC = R("vcc", 0, 2)
EXEC = R("exec", 0, 2)
M0 = R("m0", 0, 1)


def _fmt(o):
    if isinstance(o, R):
        if o.k in ("vcc", "exec", "m0"):
            return o.k
        return str(o)
    if isinstance(o, float):
        return repr(o)
    if isinstance(o, int):
        if -16 <= o <= 64:
            return str(o)
        return hex(o & 0xFFFFFFFF)
    return str(o)


TRANS = ("v_exp_f32", "v_log_f32", "v_rcp_f32", "v_rsq_f32", "v_sqrt_f32", "v_sin_f32", "v_cos_f32")


class Ins:
    __slots__ = ("op", "ops", "mods", "wr", "rd", "cls", "label", "target", "nops", "passes", "text", "srcc")

    def __init__(self):
        self.wr = set()
        self.rd = set()
        self.cls = ""
        self.label = None
        self.target = None
        self.nops = 0
        self.passes = 0
        self.text = None
        self.srcc = set()


def regs_of(o):
    return o.regs() if isinstance(o, R) else set()


class Asm:
    def __init__(self):
        self.ins = []
        self.lblc = 0

    def newlabel(self, base="L"):
        self.lblc += 1
        return f"{base}_{self.lblc}"

    def label(self, name):
        i = Ins()
        i.op = "label"
        i.label = name
        i.cls = "label"
        i.text = f"{name}:"
        self.ins.append(i)

    def raw(self, text):
        i = Ins()
        i.op = "raw"
        i.cls = "raw"
        i.text = text
        self.ins.append(i)

    def comment(self, t):
        self.raw("    ; " + t)

    def __call__(self, op, *ops, mods=""):
        i = Ins()
        i.op = op
        i.ops = ops
        i.mods = mods
        self._classify(i)
        i.text = "    " + op + (" " + ", ".join(_fmt(o) for o in ops) if ops else "") + (" " + mods if mods else "")
        self.ins.append(i)
        return i

    def _classify(self, i):
        op, ops = i.op, i.ops
        if op.startswith("v_mfma"):
            i.cls = "mfma"
            i.passes = 8 if "32x32" in op else 4
            i.wr |= regs_of(ops[0])
            for o in ops[1:]:
                i.rd |= regs_of(o)
            i.srcc = regs_of(ops[3])
        elif op.startswith("v_"):
            i.cls = "trans" if op in TRANS else "valu"
            if op.startswith("v_permlane") and "swap" in op:
                i.cls = "permlane"
                i.wr |= regs_of(ops[0]) | regs_of(ops[1])
                i.rd |= regs_of(ops[0]) | regs_of(ops[1])
            elif op.startswith("v_cmp"):
                i.wr |= regs_of(ops[0])
                if op.startswith("v_cmpx"):
                    i.wr |= EXEC.regs()
                for o in ops[1:]:
                    i.rd |= regs_of(o)
            elif op in ("v_add_co_u32", "v_sub_co_u32", "v_addc_co_u32"):
                i.wr |= regs_of(ops[0]) | regs_of(ops[1])
                for o in ops[2:]:
                    i.rd |= regs_of(o)
            else:
                i.wr |= regs_of(ops[0])
                for o in ops[1:]:
                    i.rd |= regs_of(o)
                if op.startswith("v_fmac") or op.startswith("v_pk_fmac") or "writelane" in op:
                    i.rd |= regs_of(ops[0])
            if "dpp" in i.mods or "row_" in i.mods or "quad_perm" in i.mods or op.endswith("_dpp"):
                i.cls = "dpp"
            if op in ("v_readfirstlane_b32", "v_readlane_b32"):
                i.cls = "readlane"
        elif op.startswith("ds_read") or op.startswith("ds_bpermute") or op.startswith("ds_swizzle") or op.startswith("ds_permute"):
            i.cls = "ds"
            i.wr |= regs_of(ops[0])
            for o in ops[1:]:
                i.rd |= regs_of(o)
        elif op.startswith("ds_write"):
            i.cls = "ds"
            i.rd |= regs_of(ops[0])
            for o in ops[1:]:
                i.rd |= regs_of(o)
        elif op.startswith("buffer_load") or op.startswith("global_load"):
            i.cls = "vmem"
            if " lds" in (" " + i.mods) or "_lds_" in op:
                i.cls = "vmem_lds"
                for o in ops:
                    i.rd |= regs_of(o)
                i.rd |= M0.regs()
            else:
                i.wr |= regs_of(ops[0])
                for o in ops[1:]:
                    i.rd |= regs_of(o)
        elif op.startswith("buffer_store") or op.startswith("global_store"):
            i.cls = "vmem_st"
            for o in ops:
                i.rd |= regs_of(o)
            i.srcc = regs_of(ops[0] if op.startswith("buffer") else ops[1])
            i.passes = 1 if ("x4" in op or "x3" in op) else 0
        elif op.startswith("s_cbranch") or op == "s_branch":
            i.cls = "branch"
            i.target = ops[0]
        elif op == "s_nop":
            i.cls = "nop"
        elif op.startswith("s_load") or op.startswith("s_buffer_load") or op == "s_memtime":
            i.cls = "smem"
            i.wr |= regs_of(ops[0])
            for o in ops[1:]:
                i.rd |= regs_of(o)
        elif op.startswith("s_cmp") or op in ("s_waitcnt", "s_barrier", "s_endpgm", "s_setprio", "s_sleep"):
            i.cls = "salu"
            for o in ops:
                i.rd |= regs_of(o)
        elif op.startswith("s_"):
            i.cls = "salu"
            i.wr |= regs_of(ops[0])
            for o in ops[1:]:
                i.rd |= regs_of(o)
            if "saveexec" in op:
                i.wr |= EXEC.regs()
        else:
            raise ValueError("unknown op " + op)

    @staticmethod
    def _need(p, c):
        n = 0
        pv = p.cls in ("valu", "trans", "dpp", "permlane", "readlane")
        cv = c.cls in ("valu", "trans", "dpp", "permlane", "readlane")
        vg = lambda st: {r for r in st if r[0] in ("v", "a")}
        sg = lambda st: {r for r in st if r[0] in ("s", "vcc")}
        if pv:
            pw = vg(p.wr)
            if pw:
                if c.cls == "mfma" and pw & c.rd:
                    n = max(n, 2)
                if c.cls == "dpp" and pw & c.rd:
                    n = max(n, 2)
                if c.cls == "permlane" and pw & c.rd:
                    n = max(n, 2)
                if c.cls == "readlane" and pw & c.rd:
                    n = max(n, 1)
                if p.cls == "trans" and cv and c.cls != "trans" and pw & (c.rd | c.wr):
                    n = max(n, 1)
                if p.cls == "trans" and c.cls in ("vmem_st", "ds", "vmem", "mfma") and pw & c.rd:
                    n = max(n, 2)
            ps = sg(p.wr)
            if ps:
                if cv and ps & c.rd:
                    n = max(n, 2)
                if c.cls == "readlane" and ps & c.rd:
                    n = max(n, 4)
                if c.cls in ("vmem", "vmem_lds", "vmem_st") and ps & c.rd:
                    n = max(n, 5)
                if c.cls in ("salu", "smem", "branch") and ps & c.rd:
                    n = max(n, 1)
            if EXEC.regs() & p.wr:
                if c.cls in ("dpp",):
                    n = max(n, 5)
                if c.cls in ("readlane", "permlane", "mfma"):
                    n = max(n, 4)
        if p.cls == "mfma":
            big = p.passes == 8
            if c.cls == "mfma":
                ab = set()
                for o in c.ops[1:3]:
                    ab |= regs_of(o)
                if p.wr & ab:
                    n = max(n, 12 if big else 8)
                if p.wr & c.srcc:
                    same = (p.wr == c.srcc) and (p.passes == c.passes)
                    if not same:
                        n = max(n, 10 if big else 6)
                if (p.wr & c.wr) and not (p.wr & c.srcc):
                    n = max(n, 10 if big else 6)
            elif cv or c.cls in ("vmem", "vmem_st", "ds", "vmem_lds"):
                if p.wr & (c.rd | c.wr):
                    n = max(n, 12 if big else 8)
                if cv and (p.srcc & c.wr):
                    n = max(n, 7 if big else 3)
        if p.cls == "vmem_st" and p.passes:
            if (cv or c.cls in ("vmem", "ds")) and (p.srcc & c.wr):
                n = max(n, 2)
        if p.cls == "salu" and M0.regs() & p.wr and c.cls == "vmem_lds":
            n = max(n, 1)
        return n

    def pad(self):
        ins = self.ins
        lab = {}
        for idx, i in enumerate(ins):
            if i.cls == "label":
                lab[i.label] = idx
        preds_extra = {}
        for idx, i in enumerate(ins):
            if i.cls == "branch":
                preds_extra.setdefault(lab[i.target], []).append(idx)
        MAXD = 14
        for idx, c in enumerate(ins):
            if c.cls in ("label", "raw", "nop"):
                continue
            need = 0
            stack = [(idx - 1, 0)]
            seen = {}
            while stack:
                j, d = stack.pop()
                while j >= 0 and d < MAXD:
                    if seen.get(j, 99) <= d:
                        break
                    seen[j] = d
                    p = ins[j]
                    if p.cls == "label":
                        for b in preds_extra.get(j, []):
                            stack.append((b, d))
                        pj = j - 1
                        while pj >= 0 and ins[pj].cls in ("raw",):
                            pj -= 1
                        if pj >= 0 and (ins[pj].op in ("s_branch", "s_endpgm")):
                            break
                        j -= 1
                        continue
                    if p.cls == "raw":
                        j -= 1
                        continue
                    if p.cls == "nop":
                        d += int(p.ops[0]) + 1
                        j -= 1
                        continue
                    r = self._need(p, c)
                    if r > d:
                        need = max(need, r - d)
                    d += 1 + p.nops_after if hasattr(p, "nops_after") else 1
                    j -= 1
            c.nops = need

    def render(self):
        self.pad()
        out = []
        for i in self.ins:
            if i.nops:
                n = i.nops
                while n > 0:
                    k = min(n, 16)
                    out.append(f"    s_nop {k - 1}")
                    n -= k
            out.append(i.text)
        return "\n".join(out) + "\n"
```

```python
import struct
import sys
import os

sys.path.insert(0, os.path.dirname(__file__))
from asmdsl import Asm, R, v, s, VCC, EXEC, M0

NAME = "parallel_sum__grouped_kv_mqa__mixer_channel_mlp__prompt"

KA_X, KA_WQ, KA_WK, KA_WV, KA_WO, KA_BX, KA_W1, KA_B1, KA_W2, KA_B2, KA_OUT, KA_DBG, KA_WS = [8 * i for i in range(13)]

WS_XNF = 0x0
WS_Y = 0x240000
WS_KV = 0x480000
WS_WQP = 0x4C0000
WS_HO = 0x600000
WS_PART = 0x1C00000
WS_SIZE = 0x10000000
HO_STRIDE = 5184 * 2


def f32bits(x):
    return struct.unpack("<I", struct.pack("<f", x))[0]


def srd(A, dst, base, nbytes):
    A("s_mov_b32", dst[0], base[0])
    A("s_and_b32", dst[1], base[1], 0xFFFF)
    A("s_mov_b32", dst[2], nbytes)
    A("s_mov_b32", dst[3], 0x00020000)


def kernel_header(A, name):
    A.raw(f".globl {name}")
    A.raw(".p2align 8")
    A.raw(f".type {name},@function")
    A.raw(f"{name}:")


def kd(name, vgpr=256, sgpr=102):
    acc = (vgpr + 3) // 4 * 4
    return f""".amdhsa_kernel {name}
  .amdhsa_next_free_vgpr {vgpr}
  .amdhsa_next_free_sgpr {sgpr}
  .amdhsa_accum_offset {acc}
  .amdhsa_group_segment_fixed_size 0
  .amdhsa_kernarg_size 104
  .amdhsa_user_sgpr_count 2
  .amdhsa_user_sgpr_kernarg_segment_ptr 1
  .amdhsa_system_sgpr_workgroup_id_x 1
.end_amdhsa_kernel
"""


def reduce16(A, x, t):
    for r in (8, 4, 2, 1):
        A("v_add_f32_dpp", t, x, x, mods=f"row_ror:{r} row_mask:0xf bank_mask:0xf")
        A("v_mov_b32", x, t)


def layernorm(A, Pin, Pout, F, T):
    for i in range(18):
        A("v_lshlrev_b32", F[2 * i], 16, Pin[i])
        A("v_and_b32", F[2 * i + 1], 0xFFFF0000, Pin[i])
    sm, t0, mean, acc, mb, rr = T[0], T[1], T[2], T[3], T[4], T[5]
    A("v_add_f32", sm, F[0], F[1])
    for i in range(2, 36):
        A("v_add_f32", sm, sm, F[i])
    reduce16(A, sm, t0)
    A("v_mul_f32", mean, f32bits(1.0 / 576.0), sm)
    A("v_mov_b32", acc, 0)
    for i in range(36):
        A("v_sub_f32", t0, F[i], mean)
        A("v_fmac_f32", acc, t0, t0)
    reduce16(A, acc, t0)
    A("v_mul_f32", acc, f32bits(1.0 / 576.0), acc)
    A("v_cvt_pk_bf16_f32", t0, mean, acc)
    A("v_lshlrev_b32", mb, 16, t0)
    A("v_and_b32", acc, 0xFFFF0000, t0)
    A("v_add_f32", acc, f32bits(1e-5), acc)
    A("v_cvt_pk_bf16_f32", t0, acc, acc)
    A("v_lshlrev_b32", acc, 16, t0)
    A("v_sqrt_f32", acc, acc)
    A("v_cvt_pk_bf16_f32", t0, acc, acc)
    A("v_lshlrev_b32", acc, 16, t0)
    A("v_rcp_f32", rr, acc)
    for i in range(18):
        a, b = F[2 * i], F[2 * i + 1]
        A("v_sub_f32", a, a, mb)
        A("v_sub_f32", b, b, mb)
        A("v_cvt_pk_bf16_f32", t0, a, b)
        A("v_lshlrev_b32", a, 16, t0)
        A("v_and_b32", b, 0xFFFF0000, t0)
        A("v_mul_f32", a, a, rr)
        A("v_mul_f32", b, b, rr)
        A("v_cvt_pk_bf16_f32", Pout[i], a, b)


def gen_k1(A):
    name = "k1_kernel"
    kernel_header(A, name)
    Lend = A.newlabel("k1_end")
    Lpack = A.newlabel("k1_pack")
    A("s_cmp_ge_u32", s(2), 224)
    A("s_cbranch_scc1", Lend)
    A("s_load_dwordx8", s(4, 8), s(0, 2), KA_X)
    A("s_load_dwordx2", s(12, 2), s(0, 2), KA_WS)
    A("v_lshrrev_b32", v(1), 6, v(0))
    A("v_readfirstlane_b32", s(28), v(1))
    A("v_and_b32", v(1), 63, v(0))
    A("s_waitcnt", "lgkmcnt(0)")
    sX, sWS, sWK, sWQ = s(16, 4), s(20, 4), s(24, 4), s(32, 4)
    srd(A, sWS, s(12, 2), WS_SIZE)
    A("s_cmp_ge_u32", s(2), 128)
    A("s_cbranch_scc1", Lpack)
    srd(A, sX, s(4, 2), 2048 * 1152)
    A("s_cmp_ge_u32", s(28), 2)
    A("s_cselect_b32", s(14), s(10), s(8))
    A("s_cselect_b32", s(15), s(11), s(9))
    srd(A, sWK, s(14, 2), 576 * 36 + 64)
    vj, vrow, vtok, vxo = v(2), v(3), v(4), v(5)
    A("v_and_b32", vj, 15, v(0))
    A("v_lshrrev_b32", vrow, 4, v(0))
    A("s_lshl_b32", s(29), s(2), 4)
    A("v_add_u32", vtok, s(29), vrow)
    A("v_mul_u32_u24", vxo, 1152, vtok)
    A("v_lshl_add_u32", vxo, vj, 3, vxo)
    PX = v(28, 18)
    for i in range(9):
        A("buffer_load_dwordx2", PX[2 * i:2 * i + 2], vxo, sX, 0, mods=f"offen offset:{i * 128}")
    vg, vgo = v(6), v(7)
    A("v_lshrrev_b32", vg, 4, v(1))
    A("s_and_b32", s(30), s(28), 1)
    A("s_lshl_b32", s(30), s(30), 4)
    A("v_add_u32", v(8), s(30), vj)
    A("v_mul_u32_u24", vgo, 8 * 36, vg)
    A("v_lshl_add_u32", vgo, v(8), 1, vgo)
    A("v_mov_b32", v(9), 0x7FFF0000)
    A("v_cmp_gt_u32", VCC, 18, v(8))
    A("v_cndmask_b32", vgo, v(9), vgo, VCC)
    G = v(100, 144)
    for q in range(6):
        A("s_mov_b32", s(40 + q), q * 3 * 1152)
    for ks in range(18):
        for j in range(8):
            A("buffer_load_ushort", G[8 * ks + j], vgo, sWK, s(40 + ks // 3),
              mods=f"offen offset:{(ks % 3) * 1152 + j * 36}")
    F = v(48, 36)
    T = v(10, 8)
    PN = v(84, 16 + 2)
    PN = v(28, 18)
    A("s_waitcnt", "vmcnt(63)")
    layernorm(A, PX, PN, F, T)
    for i in range(9):
        A("s_mov_b32", s(48 + i), WS_XNF + i * 4096)
    va, vb = v(18), v(19)
    A("v_lshrrev_b32", va, 5, vtok)
    A("v_mul_u32_u24", va, 36864, va)
    A("v_lshrrev_b32", vb, 2, vj)
    A("v_lshl_add_u32", va, vb, 10, va)
    A("v_bfe_u32", vb, vj, 1, 1)
    A("v_lshlrev_b32", vb, 5, vb)
    A("v_and_b32", v(20), 31, vtok)
    A("v_add_u32", vb, vb, v(20))
    A("v_lshl_add_u32", va, vb, 4, va)
    A("v_and_b32", vb, 1, vj)
    A("v_lshl_add_u32", va, vb, 3, va)
    for i in range(9):
        A("buffer_store_dwordx2", PN[2 * i:2 * i + 2], va, sWS, s(48 + i), mods="offen")
    vl = v(21)
    A("v_mul_u32_u24", vl, 1168, vrow)
    A("v_lshl_add_u32", vl, vj, 3, vl)
    for i in range(9):
        A("ds_write_b64", vl, PN[2 * i:2 * i + 2], mods=f"offset:{i * 128}")
    PY = v(84, 16)
    PY = [v(84 + i) for i in range(16)] + [v(22), v(23)]
    PYr = v(84, 16)
    class _P:
        def __getitem__(self, i):
            return PY[i]
    layernorm(A, PN, _P(), F, T)
    A("s_mov_b32", s(57), WS_Y)
    for i in range(8):
        A("buffer_store_dwordx2", PYr[2 * i:2 * i + 2], vxo, sWS, s(57), mods=f"offen offset:{i * 128}")
    A("buffer_store_dwordx2", v(22, 2), vxo, sWS, s(57), mods=f"offen offset:{8 * 128}")
    A("s_waitcnt", "lgkmcnt(0)")
    A("s_barrier")
    A("v_mul_u32_u24", vl, 1168, vj)
    A("v_lshl_add_u32", vl, vg, 4, vl)
    XF = v(28, 72)
    A("s_waitcnt", "vmcnt(0)")
    for ks in range(18):
        A("ds_read_b128", XF[4 * ks:4 * ks + 4], vl, mods=f"offset:{ks * 64}")
    for ks in range(18):
        for q in range(4):
            A("v_lshl_or_b32", G[8 * ks + q], G[8 * ks + 2 * q + 1], 16, G[8 * ks + 2 * q])
    D = v(12, 4)
    for r in range(4):
        A("v_mov_b32", D[r], 0)
    A("s_waitcnt", "lgkmcnt(0)")
    LV = A.newlabel("k1_v")
    A("s_lshr_b32", s(58), s(2), 1)
    A("s_lshl_b32", s(58), s(58), 12)
    A("s_add_u32", s(58), s(58), WS_KV)
    A("s_and_b32", s(59), s(2), 1)
    A("s_cmp_ge_u32", s(28), 2)
    A("s_cbranch_scc1", LV)
    for ks in range(18):
        A("v_mfma_f32_16x16x32_bf16", D, G[8 * ks:8 * ks + 4], XF[4 * ks:4 * ks + 4], D)
    A("s_lshl_b32", s(60), s(30), 6)
    A("s_add_u32", s(58), s(58), s(60))
    A("s_lshl_b32", s(60), s(59), 8)
    A("s_add_u32", s(58), s(58), s(60))
    A("v_lshrrev_b32", va, 1, vg)
    A("v_lshlrev_b32", va, 5, va)
    A("v_add_u32", va, va, vj)
    A("v_lshlrev_b32", va, 4, va)
    A("v_and_b32", vb, 1, vg)
    A("v_lshl_add_u32", va, vb, 3, va)
    A("v_cmp_eq_u32", VCC, 0, vg)
    A("s_cmp_eq_u32", s(28), 1)
    A("s_cselect_b64", s(62, 2), VCC, 0)
    A("v_cndmask_b32", D[2], D[2], 1.0, s(62, 2))
    A("v_cvt_pk_bf16_f32", v(16), D[0], D[1])
    A("v_cvt_pk_bf16_f32", v(17), D[2], D[3])
    A("buffer_store_dwordx2", v(16, 2), va, sWS, s(58), mods="offen")
    A("s_endpgm")
    A.label(LV)
    for ks in range(18):
        A("v_mfma_f32_16x16x32_bf16", D, XF[4 * ks:4 * ks + 4], G[8 * ks:8 * ks + 4], D)
    A("s_lshl_b32", s(60), s(59), 10)
    A("s_add_u32", s(58), s(58), s(60))
    A("s_add_u32", s(58), s(58), 2048)
    A("s_lshl_b32", s(60), s(30), 4)
    A("s_add_u32", s(58), s(58), s(60))
    A("v_and_b32", va, 1, vg)
    A("v_lshlrev_b32", va, 5, va)
    A("v_add_u32", va, va, vj)
    A("v_lshlrev_b32", va, 4, va)
    A("v_lshrrev_b32", vb, 1, vg)
    A("v_lshl_add_u32", va, vb, 3, va)
    A("v_cmp_eq_u32", VCC, 2, vj)
    A("s_cmp_eq_u32", s(28), 3)
    A("s_cselect_b64", s(62, 2), VCC, 0)
    for r in range(4):
        A("v_cndmask_b32", D[r], D[r], 1.0, s(62, 2))
    A("v_cvt_pk_bf16_f32", v(16), D[0], D[1])
    A("v_cvt_pk_bf16_f32", v(17), D[2], D[3])
    A("buffer_store_dwordx2", v(16, 2), va, sWS, s(58), mods="offen")
    A("s_endpgm")
    A.label(Lpack)
    srd(A, sWQ, s(6, 2), 576 * 1152 + 64)
    A("s_sub_u32", s(36), s(2), 128)
    A("s_lshl_b32", s(36), s(36), 2)
    A("s_add_u32", s(36), s(36), s(28))
    A("s_mul_i32", s(37), s(36), 43691)
    A("s_lshr_b32", s(37), s(37), 19)
    A("s_mul_i32", s(38), s(37), 12)
    A("s_sub_u32", s(38), s(36), s(38))
    A("s_mul_i32", s(38), s(38), 3)
    vi, vh, vr, vs = v(2), v(3), v(4), v(5)
    A("v_and_b32", vi, 31, v(1))
    A("v_bfe_u32", vh, vi, 2, 1)
    A("v_lshrrev_b32", vr, 3, vi)
    A("v_lshlrev_b32", vr, 2, vr)
    A("v_and_b32", v(6), 3, vi)
    A("v_or_b32", vr, vr, v(6))
    A("v_lshl_add_u32", vs, vh, 3, vr)
    A("v_and_b32", v(6), 8, vr)
    A("v_add_u32", vs, vs, v(6))
    A("v_lshrrev_b32", v(6), 5, v(1))
    A("v_mul_u32_u24", v(7), 8 * 1152, v(6))
    A("v_lshl_add_u32", v(7), vs, 1, v(7))
    A("v_mov_b32", v(9), 0x7FF00000)
    A("v_cmp_gt_u32", VCC, 18, vs)
    A("v_cndmask_b32", v(7), v(9), v(7), VCC)
    A("s_mul_i32", s(39), s(38), 16 * 1152)
    A("s_mul_i32", s(40), s(37), 36)
    A("s_add_u32", s(39), s(39), s(40))
    G = v(16, 24)
    for f in range(3):
        for half in range(3):
            A("s_add_u32", s(41 + half), s(39), f * 16 * 1152 + half * 3456)
        for j in range(8):
            A("buffer_load_ushort", G[8 * f + j], v(7), sWQ, s(41 + j // 3), mods=f"offen offset:{(j % 3) * 1152}")
    A("s_waitcnt", "vmcnt(0)")
    for f in range(3):
        for q in range(4):
            A("v_lshl_or_b32", G[8 * f + q], G[8 * f + 2 * q + 1], 16, G[8 * f + 2 * q])
    A("s_mul_i32", s(40), s(37), 36)
    A("s_add_u32", s(40), s(40), s(38))
    A("s_lshl_b32", s(40), s(40), 10)
    A("s_add_u32", s(40), s(40), WS_WQP)
    A("v_lshlrev_b32", v(8), 4, v(1))
    for f in range(3):
        A("buffer_store_dwordx4", G[8 * f:8 * f + 4], v(8), sWS, s(40), mods=f"offen offset:{f * 1024}")
    A.label(Lend)
    A("s_endpgm")
    return name


STAGE = 26624


def gemm_body(A, xstride, wstride, sXsrd, sWsrd, sXoff, sWoff, sN, sWave, init_acc, S0):
    ACC = v(0, 144)
    WF = v(144, 36)
    WX = v(180, 8)
    XF = [v(188, 16), v(204, 16)]
    vDX = v(220, 2)
    vDW = v(222, 5)
    vAX, vAW0, vAW1 = v(227), v(228), v(229)
    vCX, vCW0, vCW1 = v(230), v(231), v(232)
    vt = [v(233 + i) for i in range(8)]
    vtid = v(241)
    sP = [s(S0 + i) for i in range(7)]
    sStR, sStW, sK, sT0, sT1 = s(S0 + 7), s(S0 + 8), s(S0 + 9), s(S0 + 10), s(S0 + 11)
    A("v_mov_b32", vtid, v(0))
    lane = vt[0]
    A("v_and_b32", lane, 63, vtid)
    for i in range(2):
        A("s_lshl_b32", sT0, sWave, 7)
        A("s_add_u32", sT0, sT0, 64 * i)
        A("v_add_u32", vt[1], sT0, lane)
        A("v_lshrrev_b32", vt[2], 2, vt[1])
        A("v_and_b32", vt[3], 3, vt[1])
        A("v_lshrrev_b32", vt[4], 2, vt[2])
        A("v_and_b32", vt[4], 2, vt[4])
        A("v_xor_b32", vt[3], vt[3], vt[4])
        A("s_mov_b32", sT1, xstride)
        A("v_mul_lo_u32", vt[2], vt[2], sT1)
        A("v_lshl_add_u32", vDX[i], vt[3], 4, vt[2])
        A("s_lshl_b32", sP[i], sT0, 4)
    for q in range(5):
        if q < 4:
            A("s_lshl_b32", sT0, sWave, 6)
            A("s_add_u32", sT0, sT0, 256 * q)
        else:
            A("s_lshl_b32", sT0, sWave, 5)
            A("s_add_u32", sT0, sT0, 1024)
        A("v_add_u32", vt[1], sT0, lane)
        A("v_mul_u32_u24", vt[2], 1821, vt[1])
        A("v_lshrrev_b32", vt[2], 16, vt[2])
        A("v_mul_u32_u24", vt[3], 36, vt[2])
        A("v_sub_u32", vt[3], vt[1], vt[3])
        A("v_lshrrev_b32", vt[4], 2, vt[2])
        A("v_and_b32", vt[4], 2, vt[4])
        A("v_xor_b32", vt[3], vt[3], vt[4])
        A("s_mov_b32", sT1, wstride)
        A("v_mul_lo_u32", vt[2], vt[2], sT1)
        A("v_lshl_add_u32", vDW[q], vt[3], 4, vt[2])
        A("s_lshl_b32", sP[2 + q], sT0, 4)
        A("s_add_u32", sP[2 + q], sP[2 + q], 8192)
    m_, g_ = vt[1], vt[2]
    A("v_and_b32", m_, 15, lane)
    A("v_lshrrev_b32", g_, 4, lane)
    A("s_lshr_b32", sT0, sWave, 1)
    A("s_lshl_b32", sT0, sT0, 12)
    A("v_lshlrev_b32", vt[3], 6, m_)
    A("v_add_u32", vt[3], sT0, vt[3])
    A("v_lshrrev_b32", vt[4], 2, m_)
    A("v_and_b32", vt[4], 2, vt[4])
    A("v_xor_b32", vt[4], vt[4], g_)
    A("v_lshl_add_u32", vAX, vt[4], 4, vt[3])
    A("v_lshrrev_b32", vt[3], 2, m_)
    A("v_lshl_add_u32", vt[3], g_, 3, vt[3])
    A("v_mul_u32_u24", vt[3], 36 * 16, vt[3])
    A("v_and_b32", vt[4], 3, lane)
    A("v_lshl_add_u32", vt[3], vt[4], 3, vt[3])
    A("s_and_b32", sT0, sWave, 1)
    A("s_mul_i32", sT1, sT0, 18 * 16)
    A("s_add_u32", sT1, sT1, 8192)
    A("v_add_u32", vt[3], sT1, vt[3])
    A("v_and_b32", vt[4], 1, g_)
    A("v_lshlrev_b32", vt[4], 5, vt[4])
    A("v_add_u32", vt[5], vt[3], vt[4])
    A("v_sub_u32", vt[6], vt[3], vt[4])
    A("s_cmp_eq_u32", sT0, 0)
    A("s_cselect_b64", s(S0 + 12, 2), -1, 0)
    A("v_cndmask_b32", vAW0, vt[6], vt[5], s(S0 + 12, 2))
    A("v_cndmask_b32", vAW1, vt[5], vt[6], s(S0 + 12, 2))

    def dma_stage(sStage):
        for i in range(2):
            A("s_add_u32", M0, sStage, sP[i])
            A("buffer_load_dwordx4", vDX[i], sXsrd, sXoff, mods="offen lds")
        for q in range(4):
            A("s_add_u32", M0, sStage, sP[2 + q])
            A("buffer_load_dwordx4", vDW[q], sWsrd, sWoff, mods="offen lds")
        A("s_add_u32", M0, sStage, sP[6])
        A("s_mov_b64", EXEC, 0xFFFFFFFF)
        A("buffer_load_dwordx4", vDW[4], sWsrd, sWoff, mods="offen lds")
        A("s_mov_b64", EXEC, -1)
        A("s_add_u32", sXoff, sXoff, 64)
        A("s_add_u32", sWoff, sWoff, 32 * wstride)

    def wreg(nt, par):
        if nt >= 7 and par:
            return WX[4 * (nt - 7):4 * (nt - 7) + 4]
        return WF[4 * nt:4 * nt + 4]

    def read_w(nt, par):
        a = vCW1 if nt & 1 else vCW0
        w = wreg(nt, par)
        A("ds_read_b64_tr_b16", w[0:2], a, mods=f"offset:{nt * 32}")
        A("ds_read_b64_tr_b16", w[2:4], a, mods=f"offset:{nt * 32 + 2304}")

    def read_x(mt, par):
        A("ds_read_b128", XF[par][4 * mt:4 * mt + 4], vCX, mods=f"offset:{mt * 1024}")

    def set_cur(sStage):
        A("v_add_u32", vCX, sStage, vAX)
        A("v_add_u32", vCW0, sStage, vAW0)
        A("v_add_u32", vCW1, sStage, vAW1)

    for st in range(3):
        A("s_mov_b32", sT0, st * STAGE)
        dma_stage(sT0)
    init_acc(ACC)
    A("s_waitcnt", "vmcnt(14)")
    A("s_barrier")
    A("s_mov_b32", sStR, 0)
    set_cur(sStR)
    for mt in range(4):
        read_x(mt, 0)
    for nt in range(9):
        read_w(nt, 0)
    A("s_mov_b32", sStR, STAGE)
    A("s_mov_b32", sStW, 0)
    A("s_mov_b32", sK, 0)
    Lloop = A.newlabel("gemm_loop")
    Ldone = A.newlabel("gemm_done")
    A.label(Lloop)
    for par in range(2):
        Lw0 = A.newlabel("gw0")
        Lw1 = A.newlabel("gw1")
        Lnd = A.newlabel("gnd")
        A("s_add_u32", sT0, sK, 2)
        A("s_cmp_lt_u32", sT0, sN)
        A("s_cbranch_scc1", Lw0)
        A("s_waitcnt", "vmcnt(0) lgkmcnt(0)")
        A("s_branch", Lw1)
        A.label(Lw0)
        A("s_waitcnt", "vmcnt(7) lgkmcnt(0)")
        A.label(Lw1)
        A("s_barrier")
        set_cur(sStR)
        A("s_add_u32", sT0, sK, 3)
        A("s_cmp_lt_u32", sT0, sN)
        A("s_cbranch_scc0", Lnd)
        dma_stage(sStW)
        A.label(Lnd)
        np_ = 1 - par
        read_w(7, np_)
        read_w(8, np_)
        for nt in range(9):
            w = wreg(nt, par)
            for mt in range(4):
                acc = ACC[(nt * 4 + mt) * 4:(nt * 4 + mt) * 4 + 4]
                A("v_mfma_f32_16x16x32_bf16", acc, w, XF[par][4 * mt:4 * mt + 4], acc)
            if nt < 7:
                read_w(nt, np_)
            if nt < 4:
                read_x(nt, np_)
        A("s_mov_b32", sStW, sStR)
        A("s_add_u32", sStR, sStR, STAGE)
        A("s_cmp_eq_u32", sStR, 3 * STAGE)
        A("s_cselect_b32", sStR, 0, sStR)
        A("s_add_u32", sK, sK, 1)
        A("s_cmp_lt_u32", sK, sN)
        if par == 0:
            A("s_cbranch_scc0", Ldone)
        else:
            A("s_cbranch_scc1", Lloop)
    A.label(Ldone)
    A("s_waitcnt", "lgkmcnt(0)")
    return dict(ACC=ACC, vtid=vtid, vt=vt, tmp=v(144, 76))


C0 = -2.0 * 0.7978845608028654 * 1.4426950408889634
C1 = C0 * 0.044715


def gen_gemm1(A):
    A("s_load_dwordx4", s(4, 4), s(0, 2), KA_W1)
    A("s_load_dwordx2", s(12, 2), s(0, 2), KA_WS)
    A("v_lshrrev_b32", v(1), 6, v(0))
    A("v_readfirstlane_b32", s(28), v(1))
    A("s_sub_u32", s(3), s(2), 256)
    A("s_lshr_b32", s(29), s(3), 4)
    A("s_and_b32", s(30), s(3), 15)
    A("s_waitcnt", "lgkmcnt(0)")
    sWS, sW, sB = s(16, 4), s(20, 4), s(24, 4)
    srd(A, sWS, s(12, 2), WS_SIZE)
    srd(A, sW, s(4, 2), 576 * 9216)
    srd(A, sB, s(6, 2), 4608 * 2)
    sXoff, sWoff, sN = s(32), s(33), s(34)
    A("s_mul_i32", sXoff, s(29), 128 * 1152)
    A("s_add_u32", sXoff, sXoff, WS_Y)
    A("s_mul_i32", sWoff, s(30), 576)
    A("s_mov_b32", sN, 18)

    def init_acc(ACC):
        vt = [v(234 + i) for i in range(12)]
        A("v_bfe_u32", vt[8], v(241), 4, 2)
        A("v_lshlrev_b32", vt[8], 3, vt[8])
        A("s_and_b32", s(35), s(28), 1)
        A("s_mul_i32", s(35), s(35), 288)
        A("s_add_u32", s(35), s(35), sWoff_save)
        BT = v(144, 18)
        for nt in range(9):
            A("buffer_load_dwordx2", BT[2 * nt:2 * nt + 2], vt[8], sB, s(35), mods=f"offen offset:{nt * 32}")
        A("s_waitcnt", "vmcnt(0)")
        for nt in range(9):
            a0 = ACC[nt * 16:nt * 16 + 4]
            A("v_lshlrev_b32", a0[0], 16, BT[2 * nt])
            A("v_and_b32", a0[1], 0xFFFF0000, BT[2 * nt])
            A("v_lshlrev_b32", a0[2], 16, BT[2 * nt + 1])
            A("v_and_b32", a0[3], 0xFFFF0000, BT[2 * nt + 1])
            for mt in range(1, 4):
                for r in range(4):
                    A("v_mov_b32", ACC[nt * 16 + mt * 4 + r], a0[r])

    sWoff_save = s(36)
    A("s_mov_b32", sWoff_save, sWoff)
    g = gemm_body(A, 1152, 9216, sWS, sW, sXoff, sWoff, sN, s(28), init_acc, 40)
    ACC, vtid = g["ACC"], g["vtid"]
    A("s_mov_b32", s(60), f32bits(C1))
    A("s_mov_b32", s(61), f32bits(C0))
    t0, t1 = v(144), v(145)
    va, vb, vm, vg = v(146), v(147), v(148), v(149)
    PK = v(152, 4)
    A("v_and_b32", vm, 15, vtid)
    A("v_bfe_u32", vg, vtid, 4, 2)
    A("s_lshr_b32", s(62), s(28), 1)
    A("s_lshl_b32", s(62), s(62), 6)
    A("s_lshl_b32", s(63), s(29), 7)
    A("s_add_u32", s(62), s(62), s(63))
    A("v_add_u32", va, s(62), vm)
    A("s_mov_b32", s(63), HO_STRIDE)
    A("v_mul_lo_u32", va, va, s(63))
    A("v_lshl_add_u32", vb, vg, 3, va)
    A("v_and_b32", t0, 1, vg)
    A("v_lshl_add_u32", va, t0, 5, va)
    A("v_lshrrev_b32", t0, 1, vg)
    A("v_lshl_add_u32", va, t0, 4, va)
    A("s_add_u32", s(35), s(35), WS_HO)
    for mt in range(4):
        A("s_add_u32", s(64 + mt), s(35), mt * 16 * HO_STRIDE)

    def gelu(x):
        A("v_mul_f32", t0, x, x)
        A("v_fma_f32", t0, t0, s(60), v(150))
        A("v_mul_f32", t0, t0, x)
        A("v_exp_f32", t0, t0)
        A("v_add_f32", t0, 1.0, t0)
        A("v_rcp_f32", t0, t0)
        A("v_mul_f32", x, x, t0)

    A("v_mov_b32", v(150), s(61))
    for mt in range(4):
        for p in range(5):
            tiles = [2 * p, 2 * p + 1] if p < 4 else [8]
            for ti, nt in enumerate(tiles):
                a = ACC[(nt * 4 + mt) * 4:(nt * 4 + mt) * 4 + 4]
                for r in range(4):
                    gelu(a[r])
                A("v_cvt_pk_bf16_f32", PK[2 * ti], a[0], a[1])
                A("v_cvt_pk_bf16_f32", PK[2 * ti + 1], a[2], a[3])
            if p < 4:
                A("v_permlane16_swap_b32", PK[0], PK[2])
                A("v_permlane16_swap_b32", PK[1], PK[3])
                A("buffer_store_dwordx4", PK, va, sWS, s(64 + mt), mods=f"offen offset:{p * 64}")
            else:
                A("buffer_store_dwordx2", PK[0:2], vb, sWS, s(64 + mt), mods="offen offset:256")
    A("s_endpgm")


QSCALE = (18 ** -0.5) * 1.4426950408889634


def gen_attn(A):
    A("s_load_dwordx2", s(12, 2), s(0, 2), KA_WS)
    A("v_lshrrev_b32", v(1), 6, v(0))
    A("v_readfirstlane_b32", s(28), v(1))
    A("s_lshr_b32", s(29), s(2), 3)
    A("s_and_b32", s(30), s(2), 7)
    A("s_lshl_b32", s(30), s(30), 2)
    A("s_add_u32", s(30), s(30), s(28))
    A("s_waitcnt", "lgkmcnt(0)")
    sWS = s(16, 4)
    srd(A, sWS, s(12, 2), WS_SIZE)
    vl16 = v(2)
    A("v_and_b32", v(1), 63, v(0))
    A("v_lshlrev_b32", vl16, 4, v(1))
    CH = 16384
    sKV = s(32)
    sPw = s(33)
    A("s_lshl_b32", sPw, s(28), 12)
    A("s_add_u32", sKV, sPw, WS_KV)

    def dma_chunk(sBuf):
        for i in range(4):
            A("s_add_u32", M0, sBuf, sPw)
            A("buffer_load_dwordx4", vl16, sWS, sKV, mods=f"offen offset:{i * 1024} lds")
        A("s_add_u32", sKV, sKV, CH)

    A("s_mov_b32", s(35), 0)
    dma_chunk(s(35))
    A("s_mov_b32", s(35), CH)
    dma_chunk(s(35))
    QA = [v(96, 16), v(112, 16)]
    for ct in range(2):
        for r in range(16):
            A("v_mov_b32", QA[ct][r], 0)
    A("s_mul_i32", s(36), s(30), 36 * 1024)
    A("s_add_u32", s(36), s(36), WS_WQP)
    A("s_mul_i32", s(37), s(29), 2 * 36864)
    A("s_add_u32", s(37), s(37), WS_XNF)
    A("s_add_u32", s(38), s(37), 36864)
    GRP = 4
    BUF = [v(128, 12 * GRP), v(128 + 12 * GRP, 12 * GRP)]

    def qload(grp):
        b = BUF[grp & 1]
        for i in range(GRP):
            ks = grp * GRP + i
            off = f"offen offset:{i * 1024}"
            A("buffer_load_dwordx4", b[12 * i:12 * i + 4], vl16, sWS, s(36), mods=off)
            A("buffer_load_dwordx4", b[12 * i + 4:12 * i + 8], vl16, sWS, s(37), mods=off)
            A("buffer_load_dwordx4", b[12 * i + 8:12 * i + 12], vl16, sWS, s(38), mods=off)
        for q in (36, 37, 38):
            A("s_add_u32", s(q), s(q), GRP * 1024)

    NG = 36 // GRP
    qload(0)
    for grp in range(NG):
        if grp + 1 < NG:
            qload(grp + 1)
            A("s_waitcnt", f"vmcnt({3 * GRP})")
        else:
            A("s_waitcnt", "vmcnt(0)")
        b = BUF[grp & 1]
        for i in range(GRP):
            for ct in range(2):
                A("v_mfma_f32_32x32x16_bf16", QA[ct], b[12 * i:12 * i + 4], b[12 * i + 4 + 4 * ct:12 * i + 8 + 4 * ct], QA[ct])
    QF = [[v(4, 4), v(8, 4)], [v(12, 4), v(16, 4)]]
    A("s_mov_b32", s(39), f32bits(QSCALE))
    for ct in range(2):
        for r in range(16):
            A("v_mul_f32", QA[ct][r], s(39), QA[ct][r])
        for f in range(2):
            for q in range(4):
                A("v_cvt_pk_bf16_f32", QF[ct][f][q], QA[ct][8 * f + 2 * q], QA[ct][8 * f + 2 * q + 1])
    KF = [[v(20, 4), v(24, 4)], [v(28, 4), v(32, 4)]]
    VF = [[v(36, 4), v(40, 4)], [v(44, 4), v(48, 4)]]
    PK = [v(52, 8), v(60, 8)]
    O = [v(68, 16), v(84, 16)]
    S = [[v(100, 16), v(116, 16)], [v(132, 16), v(148, 16)]]
    Mx = [v(164), v(165)]
    TM = [v(166), v(167)]
    t1, t2, t3, t4 = v(168), v(169), v(170), v(171)
    vCur, vNxt = v(172), v(173)
    sT, sLow, sC, sB0, sB1, sB2 = s(40), s(41), s(42), s(43), s(44), s(45)
    for ct in range(2):
        for r in range(16):
            A("v_mov_b32", O[ct][r], 0)
        A("v_mov_b32", Mx[ct], 0)
    A("s_mov_b32", sT, 0xFF800000)
    A("s_mov_b32", sLow, 0xFF800000)
    A("s_waitcnt", "vmcnt(0)")
    A("s_barrier")
    A("v_mov_b32", vCur, vl16)
    A("v_add_u32", vNxt, CH, vl16)
    A("s_mov_b32", sB0, 0)
    A("s_mov_b32", sB1, CH)
    A("s_mov_b32", sB2, 2 * CH)

    def rd_k(buf, addr, tile):
        A("ds_read_b128", KF[buf][0], addr, mods=f"offset:{tile * 4096}")
        A("ds_read_b128", KF[buf][1], addr, mods=f"offset:{tile * 4096 + 1024}")

    def rd_v(buf, addr, tile):
        A("ds_read_b128", VF[buf][0], addr, mods=f"offset:{tile * 4096 + 2048}")
        A("ds_read_b128", VF[buf][1], addr, mods=f"offset:{tile * 4096 + 3072}")

    def qk(sb, kb, ct, f):
        A("v_mfma_f32_32x32x16_bf16", S[sb][ct], KF[kb][f], QF[ct][f], 0 if f == 0 else S[sb][ct])

    rd_k(0, vCur, 0)
    rd_k(1, vCur, 1)
    rd_v(0, vCur, 0)
    A("s_waitcnt", "lgkmcnt(0)")
    for ct in range(2):
        qk(0, 0, ct, 0)
        qk(0, 0, ct, 1)
    A("s_mov_b32", sC, 0)
    Lloop = A.newlabel("att_loop")
    A.label(Lloop)
    Lnd = A.newlabel("att_nd")
    A("s_waitcnt", "vmcnt(0) lgkmcnt(0)")
    A("s_barrier")
    A("s_cmp_lt_u32", sC, 14)
    A("s_cbranch_scc0", Lnd)
    dma_chunk(sB2)
    A.label(Lnd)
    resc = []
    for i in range(4):
        cur, nx = i & 1, 1 - (i & 1)
        Sc = S[cur]
        for ct in range(2):
            A("v_max3_f32", TM[ct], Sc[ct][0], Sc[ct][1], Sc[ct][2])
            for r in range(3, 15, 2):
                A("v_max3_f32", TM[ct], TM[ct], Sc[ct][r], Sc[ct][r + 1])
            A("v_max_f32", TM[ct], TM[ct], Sc[ct][15])
        A("v_max_f32", t1, TM[0], TM[1])
        A("v_cmp_lt_f32", VCC, sT, t1)
        Lr, Lb = A.newlabel("att_resc"), A.newlabel("att_back")
        A("s_cbranch_vccnz", Lr)
        A.label(Lb)
        resc.append((Lr, Lb, cur))
        A("s_waitcnt", "lgkmcnt(0)")
        ex = lambda ct, r: A("v_exp_f32", Sc[ct][r], Sc[ct][r])
        cv = lambda ct, q: A("v_cvt_pk_bf16_f32", PK[ct][q], Sc[ct][2 * q], Sc[ct][2 * q + 1])
        pv = lambda ct, j: A("v_mfma_f32_32x32x16_bf16", O[ct], VF[cur][j], PK[ct][4 * j:4 * j + 4], O[ct])
        qk(nx, nx, 0, 0)
        for r in range(0, 4):
            ex(0, r)
        qk(nx, nx, 0, 1)
        for r in range(4, 8):
            ex(0, r)
        qk(nx, nx, 1, 0)
        for r in range(8, 12):
            ex(0, r)
        qk(nx, nx, 1, 1)
        if i < 2:
            rd_k(cur, vCur, i + 2)
        else:
            rd_k(cur, vNxt, i - 2)
        for r in range(12, 16):
            ex(0, r)
        for q in range(8):
            cv(0, q)
        pv(0, 0)
        for r in range(0, 4):
            ex(1, r)
        pv(0, 1)
        for r in range(4, 16):
            ex(1, r)
        for q in range(8):
            cv(1, q)
        pv(1, 0)
        pv(1, 1)
        if i < 3:
            rd_v(nx, vCur, i + 1)
        else:
            rd_v(nx, vNxt, 0)
    A("s_mov_b32", s(46), sB0)
    A("s_mov_b32", sB0, sB1)
    A("s_mov_b32", sB1, sB2)
    A("s_mov_b32", sB2, s(46))
    A("v_add_u32", vCur, sB0, vl16)
    A("v_add_u32", vNxt, sB1, vl16)
    A("s_add_u32", sC, sC, 1)
    A("s_cmp_lt_u32", sC, 16)
    A("s_cbranch_scc1", Lloop)
    A("s_waitcnt", "lgkmcnt(0)")
    va = v(3)
    A("v_and_b32", t1, 31, v(1))
    A("s_lshl_b32", s(47), s(29), 6)
    A("v_add_u32", t1, s(47), t1)
    A("s_mov_b32", s(47), HO_STRIDE)
    A("v_mul_lo_u32", va, t1, s(47))
    A("v_lshrrev_b32", t1, 5, v(1))
    A("v_lshl_add_u32", va, t1, 3, va)
    A("s_mul_i32", s(48), s(30), 36)
    A("s_add_u32", s(48), s(48), WS_HO + 4608 * 2)
    A("s_add_u32", s(49), s(48), 32 * HO_STRIDE)
    for ct in range(2):
        A("v_mov_b32", t1, O[ct][10])
        A("v_mov_b32", t2, O[ct][10])
        A("v_permlane32_swap_b32", t1, t2)
        A("v_rcp_f32", t1, t1)
        for r in range(10):
            A("v_mul_f32", O[ct][r], O[ct][r], t1)
        for q in range(5):
            A("v_cvt_pk_bf16_f32", PK[ct][q], O[ct][2 * q], O[ct][2 * q + 1])
        so = s(48 + ct)
        A("buffer_store_dwordx2", PK[ct][0:2], va, sWS, so, mods="offen")
        A("buffer_store_dwordx2", PK[ct][2:4], va, sWS, so, mods="offen offset:16")
    A("s_mov_b64", EXEC, 0xFFFFFFFF)
    for ct in range(2):
        A("buffer_store_dword", PK[ct][4], va, sWS, s(48 + ct), mods="offen offset:32")
    A("s_endpgm")
    for (Lr, Lb, cur) in resc:
        A.label(Lr)
        for ct in range(2):
            A("v_mov_b32", t1, TM[ct])
            A("v_mov_b32", t2, TM[ct])
            A("v_permlane32_swap_b32", t1, t2)
            A("v_max_f32", t1, t1, t2)
            A("v_max_f32", t1, sLow, t1)
            A("v_add_f32", t1, Mx[ct], t1)
            A("v_and_b32", t1, 0xFFFF0000, t1)
            A("v_sub_f32", t2, t1, Mx[ct])
            A("v_mov_b32", Mx[ct], t1)
            A("v_xor_b32", t3, 0x80000000, t1)
            A("v_lshrrev_b32", QF[ct][1][1], 16, t3)
            for r in range(16):
                A("v_sub_f32", S[cur][ct][r], S[cur][ct][r], t2)
            A("v_sub_f32", t3, 0, t2)
            A("v_min_f32", t3, 0, t3)
            A("v_exp_f32", t3, t3)
            for r in range(16):
                A("v_mul_f32", O[ct][r], O[ct][r], t3)
        A("s_mov_b32", sT, f32bits(8.0))
        A("s_mov_b32", sLow, 0)
        A("s_branch", Lb)


def gen_k2(A):
    name = "k2_kernel"
    kernel_header(A, name)
    Lg, Lend = A.newlabel("k2_gemm"), A.newlabel("k2_end")
    A("s_cmp_ge_u32", s(2), 512)
    A("s_cbranch_scc1", Lend)
    A("s_cmp_ge_u32", s(2), 256)
    A("s_cbranch_scc1", Lg)
    gen_attn(A)
    A.label(Lg)
    gen_gemm1(A)
    A.label(Lend)
    A("s_endpgm")
    return name


def gen_k3(A):
    name = "k3_kernel"
    kernel_header(A, name)
    Lend = A.newlabel("k3_end")
    A("s_cmp_ge_u32", s(2), 256)
    A("s_cbranch_scc1", Lend)
    A("s_load_dwordx2", s(4, 2), s(0, 2), KA_W2)
    A("s_load_dwordx2", s(6, 2), s(0, 2), KA_WO)
    A("s_load_dwordx2", s(12, 2), s(0, 2), KA_WS)
    A("v_lshrrev_b32", v(1), 6, v(0))
    A("v_readfirstlane_b32", s(28), v(1))
    A("s_and_b32", s(31), s(2), 7)
    A("s_lshr_b32", s(29), s(2), 4)
    A("s_bfe_u32", s(30), s(2), (1 << 16) | 3)
    A("s_waitcnt", "lgkmcnt(0)")
    sWS, sW = s(16, 4), s(20, 4)
    srd(A, sWS, s(12, 2), WS_SIZE)
    sXoff, sWoff, sN = s(32), s(33), s(34)
    A("s_cmp_eq_u32", s(31), 7)
    A("s_cselect_b32", s(8), s(6), s(4))
    A("s_cselect_b32", s(9), s(7), s(5))
    A("s_mov_b32", s(11), 4608 * 1152)
    A("s_cselect_b32", s(10), 576 * 1152, s(11))
    A("s_mov_b32", sW[0], s(8))
    A("s_and_b32", sW[1], s(9), 0xFFFF)
    A("s_mov_b32", sW[2], s(10))
    A("s_mov_b32", sW[3], 0x00020000)
    A("s_min_u32", s(35), s(31), 4)
    A("s_mul_i32", s(36), s(31), 20)
    A("s_add_u32", s(36), s(36), s(35))
    A("s_cmp_lt_u32", s(31), 4)
    A("s_cselect_b32", sN, 21, 20)
    A("s_cmp_eq_u32", s(31), 7)
    A("s_cselect_b32", sN, 18, sN)
    A("s_cselect_b32", s(35), 0, s(36))
    A("s_mul_i32", sXoff, s(29), 128 * HO_STRIDE)
    A("s_lshl_b32", s(37), s(36), 6)
    A("s_add_u32", sXoff, sXoff, s(37))
    A("s_add_u32", sXoff, sXoff, WS_HO)
    A("s_mul_i32", sWoff, s(35), 32 * 1152)
    A("s_mul_i32", s(37), s(30), 576)
    A("s_add_u32", sWoff, sWoff, s(37))

    def init_acc(ACC):
        for r in range(144):
            A("v_mov_b32", ACC[r], 0)

    g = gemm_body(A, HO_STRIDE, 1152, sWS, sW, sXoff, sWoff, sN, s(28), init_acc, 40)
    ACC, vtid = g["ACC"], g["vtid"]
    va, vm, vg = v(146), v(148), v(149)
    A("v_and_b32", vm, 15, vtid)
    A("v_bfe_u32", vg, vtid, 4, 2)
    A("s_lshr_b32", s(62), s(28), 1)
    A("s_lshl_b32", s(62), s(62), 6)
    A("s_lshl_b32", s(63), s(29), 7)
    A("s_add_u32", s(62), s(62), s(63))
    A("v_add_u32", va, s(62), vm)
    A("v_mul_u32_u24", va, 2304, va)
    A("v_lshl_add_u32", va, vg, 4, va)
    A("s_and_b32", s(35), s(28), 1)
    A("s_mul_i32", s(35), s(35), 144 * 4)
    A("s_mul_i32", s(37), s(30), 288 * 4)
    A("s_add_u32", s(35), s(35), s(37))
    A("s_mul_i32", s(37), s(31), 2048 * 2304)
    A("s_add_u32", s(35), s(35), s(37))
    A("s_add_u32", s(35), s(35), WS_PART)
    for mt in range(4):
        A("s_add_u32", s(64 + mt), s(35), mt * 16 * 2304)
    for mt in range(4):
        for nt in range(9):
            A("buffer_store_dwordx4", ACC[(nt * 4 + mt) * 4:(nt * 4 + mt) * 4 + 4], va, sWS, s(64 + mt),
              mods=f"offen offset:{nt * 64}")
    A.label(Lend)
    A("s_endpgm")
    return name


def gen_k4(A):
    name = "k4_kernel"
    kernel_header(A, name)
    Lend = A.newlabel("k4_end")
    A("s_cmp_ge_u32", s(2), 576)
    A("s_cbranch_scc1", Lend)
    A("s_load_dwordx2", s(4, 2), s(0, 2), KA_X)
    A("s_load_dwordx4", s(8, 4), s(0, 2), KA_B2)
    A("s_load_dwordx2", s(12, 2), s(0, 2), KA_WS)
    A("s_lshl_b32", s(3), s(2), 8)
    A("v_add_u32", v(1), s(3), v(0))
    A("v_lshlrev_b32", v(2), 4, v(1))
    A("v_lshlrev_b32", v(3), 5, v(1))
    A("s_mov_b32", s(14), 59652324)
    A("v_mul_hi_u32", v(4), v(1), s(14))
    A("v_mul_u32_u24", v(4), 72, v(4))
    A("v_sub_u32", v(4), v(1), v(4))
    A("v_lshlrev_b32", v(4), 4, v(4))
    A("s_waitcnt", "lgkmcnt(0)")
    sX, sB, sO, sWS = s(16, 4), s(20, 4), s(24, 4), s(28, 4)
    srd(A, sX, s(4, 2), 2048 * 1152)
    srd(A, sB, s(8, 2), 1152)
    srd(A, sO, s(10, 2), 2048 * 1152)
    srd(A, sWS, s(12, 2), WS_SIZE)
    A("buffer_load_dwordx4", v(8, 4), v(2), sX, 0, mods="offen")
    A("buffer_load_dwordx4", v(12, 4), v(4), sB, 0, mods="offen")
    P = v(16, 64)
    for sp in range(8):
        A("s_mov_b32", s(32 + sp), WS_PART + sp * 2048 * 2304)
        A("buffer_load_dwordx4", P[8 * sp:8 * sp + 4], v(3), sWS, s(32 + sp), mods="offen")
        A("buffer_load_dwordx4", P[8 * sp + 4:8 * sp + 8], v(3), sWS, s(32 + sp), mods="offen offset:16")
    A("s_waitcnt", "vmcnt(16)")
    acc = v(80, 8)
    for q in range(4):
        A("v_lshlrev_b32", acc[2 * q], 16, v(8 + q))
        A("v_and_b32", acc[2 * q + 1], 0xFFFF0000, v(8 + q))
        A("v_lshlrev_b32", v(5), 16, v(12 + q))
        A("v_and_b32", v(6), 0xFFFF0000, v(12 + q))
        A("v_add_f32", acc[2 * q], acc[2 * q], v(5))
        A("v_add_f32", acc[2 * q + 1], acc[2 * q + 1], v(6))
    for sp in range(8):
        A("s_waitcnt", f"vmcnt({14 - 2 * sp})")
        for e in range(8):
            A("v_add_f32", acc[e], acc[e], P[8 * sp + e])
    for q in range(4):
        A("v_cvt_pk_bf16_f32", v(8 + q), acc[2 * q], acc[2 * q + 1])
    A("buffer_store_dwordx4", v(8, 4), v(2), sO, 0, mods="offen")
    A.label(Lend)
    A("s_endpgm")
    return name


def main():
    A = Asm()
    hdr = open(os.path.join(os.path.dirname(__file__), "..", "cdna_kernels", NAME + ".s.ref")).read().splitlines()
    head = []
    for l in hdr:
        if l.startswith(";") and "@launch" not in l:
            head.append(l)
        elif not l.startswith(";"):
            break
    head += [
        "; @launch kernel=k1_kernel grid=(224,1,1) block=(256,1,1) lds=18688",
        f"; @launch kernel=k2_kernel grid=(512,1,1) block=(256,1,1) lds={3 * STAGE}",
        f"; @launch kernel=k3_kernel grid=(256,1,1) block=(256,1,1) lds={3 * STAGE}",
        "; @launch kernel=k4_kernel grid=(576,1,1) block=(256,1,1) lds=0",
        '.amdgcn_target "amdgcn-amd-amdhsa--gfx950"',
        ".text",
    ]
    names = [gen_k1(A), gen_k2(A), gen_k3(A), gen_k4(A)]
    body = A.render()
    out = "\n".join(head) + "\n" + body + '.section .rodata,"a"\n'
    vg = {"k1_kernel": 248, "k2_kernel": 256, "k3_kernel": 256, "k4_kernel": 96}
    for n in names:
        out += ".p2align 6\n" + kd(n, vg[n])
    path = os.path.join(os.path.dirname(__file__), "..", "cdna_kernels", NAME + ".s")
    open(path, "w").write(out)
    print("wrote", path, len(out), "bytes")


if __name__ == "__main__":
    main()
```

```python
import struct
import sys
import os

sys.path.insert(0, os.path.dirname(__file__))
from asmdsl import Asm, R, v, s, VCC, EXEC, M0

EXP = os.environ.get("EXP", "")
NAME = "parallel_sum__grouped_kv_mqa__mixer_channel_mlp__prompt"

KA_X, KA_WQ, KA_WK, KA_WV, KA_WO, KA_BX, KA_W1, KA_B1, KA_W2, KA_B2, KA_OUT, KA_DBG, KA_WS = [8 * i for i in range(13)]

WS_XNF = 0x0
WS_Y = 0x240000
WS_KV = 0x480000
WS_WQP = 0x4C0000
WS_HO = 0x600000
WS_PART = 0x1C00000
WS_SIZE = 0x10000000
HO_STRIDE = 5184 * 2


def f32bits(x):
    return struct.unpack("<I", struct.pack("<f", x))[0]


def srd(A, dst, base, nbytes):
    A("s_mov_b32", dst[0], base[0])
    A("s_and_b32", dst[1], base[1], 0xFFFF)
    A("s_mov_b32", dst[2], nbytes)
    A("s_mov_b32", dst[3], 0x00020000)


def stamp(A, i):
    if "stamp" in EXP:
        A("s_memtime", s(80 + 2 * i, 2))


def stamp_flush(A, n, wg, wave_sgpr, wave, base=0):
    if "stamp" not in EXP:
        return
    L = A.newlabel("stf")
    A("s_cmp_lg_u32", s(2), wg)
    A("s_cbranch_scc1", L)
    A("s_cmp_lg_u32", wave_sgpr, wave)
    A("s_cbranch_scc1", L)
    A("s_load_dwordx2", s(76, 2), s(0, 2), KA_DBG)
    A("s_waitcnt", "lgkmcnt(0)")
    srd(A, s(72, 4), s(76, 2), 256)
    A("v_mov_b32", v(1), 0)
    for i in range(n):
        A("v_mov_b32", v(0), s(80 + 2 * i))
        A("buffer_store_dword", v(0), v(1), s(72, 4), 0, mods=f"offen offset:{base + 4 * i}")
    A.label(L)


def kernel_header(A, name):
    A.raw(f".globl {name}")
    A.raw(".p2align 8")
    A.raw(f".type {name},@function")
    A.raw(f"{name}:")


def kd(name, vgpr=256, sgpr=102):
    acc = (vgpr + 3) // 4 * 4
    return f""".amdhsa_kernel {name}
  .amdhsa_next_free_vgpr {vgpr}
  .amdhsa_next_free_sgpr {sgpr}
  .amdhsa_accum_offset {acc}
  .amdhsa_group_segment_fixed_size 0
  .amdhsa_kernarg_size 104
  .amdhsa_user_sgpr_count 2
  .amdhsa_user_sgpr_kernarg_segment_ptr 1
  .amdhsa_system_sgpr_workgroup_id_x 1
.end_amdhsa_kernel
"""


def reduce16(A, x, t):
    for r in (8, 4, 2, 1):
        A("v_add_f32_dpp", t, x, x, mods=f"row_ror:{r} row_mask:0xf bank_mask:0xf")
        A("v_mov_b32", x, t)


def layernorm(A, Pin, Pout, F, T):
    for i in range(18):
        A("v_lshlrev_b32", F[2 * i], 16, Pin[i])
        A("v_and_b32", F[2 * i + 1], 0xFFFF0000, Pin[i])
    sm, t0, mean, acc, mb, rr = T[0], T[1], T[2], T[3], T[4], T[5]
    A("v_add_f32", sm, F[0], F[1])
    for i in range(2, 36):
        A("v_add_f32", sm, sm, F[i])
    reduce16(A, sm, t0)
    A("v_mul_f32", mean, f32bits(1.0 / 576.0), sm)
    A("v_mov_b32", acc, 0)
    for i in range(36):
        A("v_sub_f32", t0, F[i], mean)
        A("v_fmac_f32", acc, t0, t0)
    reduce16(A, acc, t0)
    A("v_mul_f32", acc, f32bits(1.0 / 576.0), acc)
    A("v_cvt_pk_bf16_f32", t0, mean, acc)
    A("v_lshlrev_b32", mb, 16, t0)
    A("v_and_b32", acc, 0xFFFF0000, t0)
    A("v_add_f32", acc, f32bits(1e-5), acc)
    A("v_cvt_pk_bf16_f32", t0, acc, acc)
    A("v_lshlrev_b32", acc, 16, t0)
    A("v_sqrt_f32", acc, acc)
    A("v_cvt_pk_bf16_f32", t0, acc, acc)
    A("v_lshlrev_b32", acc, 16, t0)
    A("v_rcp_f32", rr, acc)
    for i in range(18):
        a, b = F[2 * i], F[2 * i + 1]
        A("v_sub_f32", a, a, mb)
        A("v_sub_f32", b, b, mb)
        A("v_cvt_pk_bf16_f32", t0, a, b)
        A("v_lshlrev_b32", a, 16, t0)
        A("v_and_b32", b, 0xFFFF0000, t0)
        A("v_mul_f32", a, a, rr)
        A("v_mul_f32", b, b, rr)
        A("v_cvt_pk_bf16_f32", Pout[i], a, b)


def gen_k1(A):
    name = "k1_kernel"
    kernel_header(A, name)
    Lend = A.newlabel("k1_end")
    Lpack = A.newlabel("k1_pack")
    A("s_cmp_ge_u32", s(2), 224)
    A("s_cbranch_scc1", Lend)
    stamp(A, 0)
    A("s_load_dwordx8", s(4, 8), s(0, 2), KA_X)
    A("s_load_dwordx2", s(12, 2), s(0, 2), KA_WS)
    A("v_lshrrev_b32", v(1), 6, v(0))
    A("v_readfirstlane_b32", s(28), v(1))
    A("v_and_b32", v(1), 63, v(0))
    A("s_waitcnt", "lgkmcnt(0)")
    sX, sWS, sWK, sWQ = s(16, 4), s(20, 4), s(24, 4), s(32, 4)
    srd(A, sWS, s(12, 2), WS_SIZE)
    A("s_cmp_ge_u32", s(2), 128)
    A("s_cbranch_scc1", Lpack)
    srd(A, sX, s(4, 2), 2048 * 1152)
    A("s_cmp_ge_u32", s(28), 2)
    A("s_cselect_b32", s(14), s(10), s(8))
    A("s_cselect_b32", s(15), s(11), s(9))
    srd(A, sWK, s(14, 2), 576 * 36)
    vj, vrow, vtok, vxo = v(2), v(3), v(4), v(5)
    A("v_and_b32", vj, 15, v(0))
    A("v_lshrrev_b32", vrow, 4, v(0))
    A("s_lshl_b32", s(29), s(2), 4)
    A("v_add_u32", vtok, s(29), vrow)
    A("v_mul_u32_u24", vxo, 1152, vtok)
    A("v_lshl_add_u32", vxo, vj, 3, vxo)
    PX = v(28, 18)
    for i in range(9):
        A("buffer_load_dwordx2", PX[2 * i:2 * i + 2], vxo, sX, 0, mods=f"offen offset:{i * 128}")
    vg, vgo = v(6), v(7)
    WB = 18688
    WR = 22528
    A("v_lshrrev_b32", vg, 4, v(1))
    A("s_and_b32", s(30), s(28), 1)
    A("s_lshr_b32", s(31), s(28), 1)
    A("s_mul_i32", s(31), s(31), 2 * WR)
    A("s_add_u32", s(31), s(31), WB)
    A("s_mul_i32", s(41), s(30), WR + 4)
    A("s_add_u32", s(41), s(41), s(31))
    A("v_lshlrev_b32", v(9), 4, v(1))
    for i in range(21):
        if i % 4 == 0:
            A("s_add_u32", M0, s(41), i * 1024)
            A("s_mov_b32", s(42), i * 1024)
        A("buffer_load_dwordx4", v(9), sWK, s(42), mods=f"offen offset:{(i & 3) * 1024} lds")
    A("s_lshl_b32", s(30), s(30), 4)
    A("v_lshrrev_b32", v(8), 2, vj)
    A("v_lshl_add_u32", vgo, vg, 3, v(8))
    A("v_mul_u32_u24", vgo, 36, vgo)
    A("v_and_b32", v(8), 1, v(8))
    A("v_mul_u32_u24", v(8), WR + 4, v(8))
    A("v_add_u32", vgo, vgo, v(8))
    A("v_and_b32", v(8), 3, vj)
    A("v_lshl_add_u32", vgo, v(8), 3, vgo)
    A("s_lshl_b32", s(43), s(30), 1)
    A("s_add_u32", s(43), s(43), s(31))
    A("v_add_u32", vgo, s(43), vgo)
    G = v(100, 144)
    F = v(48, 36)
    T = v(10, 8)
    PN = v(84, 16 + 2)
    PN = v(28, 18)
    stamp(A, 1)
    A("s_waitcnt", "vmcnt(21)")
    stamp(A, 2)
    layernorm(A, PX, PN, F, T)
    for i in range(9):
        A("s_mov_b32", s(48 + i), WS_XNF + i * 4096)
    va, vb = v(18), v(19)
    A("v_lshrrev_b32", va, 5, vtok)
    A("v_mul_u32_u24", va, 36864, va)
    A("v_lshrrev_b32", vb, 2, vj)
    A("v_lshl_add_u32", va, vb, 10, va)
    A("v_bfe_u32", vb, vj, 1, 1)
    A("v_lshlrev_b32", vb, 5, vb)
    A("v_and_b32", v(20), 31, vtok)
    A("v_add_u32", vb, vb, v(20))
    A("v_lshl_add_u32", va, vb, 4, va)
    A("v_and_b32", vb, 1, vj)
    A("v_lshl_add_u32", va, vb, 3, va)
    for i in range(9):
        A("buffer_store_dwordx2", PN[2 * i:2 * i + 2], va, sWS, s(48 + i), mods="offen")
    vl = v(21)
    A("v_mul_u32_u24", vl, 1168, vrow)
    A("v_lshl_add_u32", vl, vj, 3, vl)
    for i in range(9):
        A("ds_write_b64", vl, PN[2 * i:2 * i + 2], mods=f"offset:{i * 128}")
    PY = v(84, 16)
    PY = [v(84 + i) for i in range(16)] + [v(22), v(23)]
    PYr = v(84, 16)
    class _P:
        def __getitem__(self, i):
            return PY[i]
    layernorm(A, PN, _P(), F, T)
    A("v_lshrrev_b32", va, 4, vtok)
    A("v_mul_u32_u24", va, 18432, va)
    A("v_lshrrev_b32", vb, 1, vj)
    A("v_lshl_add_u32", va, vb, 8, va)
    A("v_and_b32", vb, 15, vtok)
    A("v_lshl_add_u32", va, vb, 4, va)
    A("v_and_b32", vb, 1, vj)
    A("v_lshl_add_u32", va, vb, 3, va)
    for i in range(5):
        A("s_mov_b32", s(64 + i), WS_Y + i * 4096)
    for i in range(8):
        A("buffer_store_dwordx2", PYr[2 * i:2 * i + 2], va, sWS, s(64 + i // 2), mods=f"offen offset:{(i & 1) * 2048}")
    A("buffer_store_dwordx2", v(22, 2), va, sWS, s(68), mods="offen")
    stamp(A, 3)
    A("s_waitcnt", "vmcnt(18) lgkmcnt(0)")
    A("s_barrier")
    for ks in range(18):
        for q in range(2):
            A("ds_read_b64_tr_b16", G[8 * ks + 2 * q:8 * ks + 2 * q + 2], vgo, mods=f"offset:{ks * 1152 + q * 144}")
    A("v_mul_u32_u24", vl, 1168, vj)
    A("v_lshl_add_u32", vl, vg, 4, vl)
    XF = v(28, 72)
    for ks in range(18):
        A("ds_read_b128", XF[4 * ks:4 * ks + 4], vl, mods=f"offset:{ks * 64}")
    stamp(A, 4)
    D = v(12, 4)
    for r in range(4):
        A("v_mov_b32", D[r], 0)
    A("s_waitcnt", "lgkmcnt(0)")
    LV = A.newlabel("k1_v")
    A("s_lshr_b32", s(58), s(2), 1)
    A("s_lshl_b32", s(58), s(58), 12)
    A("s_add_u32", s(58), s(58), WS_KV)
    A("s_and_b32", s(59), s(2), 1)
    A("s_cmp_ge_u32", s(28), 2)
    A("s_cbranch_scc1", LV)
    for ks in range(18):
        A("v_mfma_f32_16x16x32_bf16", D, G[8 * ks:8 * ks + 4], XF[4 * ks:4 * ks + 4], D)
    A("s_lshl_b32", s(60), s(30), 6)
    A("s_add_u32", s(58), s(58), s(60))
    A("s_lshl_b32", s(60), s(59), 8)
    A("s_add_u32", s(58), s(58), s(60))
    A("v_lshrrev_b32", va, 1, vg)
    A("v_lshlrev_b32", va, 5, va)
    A("v_add_u32", va, va, vj)
    A("v_lshlrev_b32", va, 4, va)
    A("v_and_b32", vb, 1, vg)
    A("v_lshl_add_u32", va, vb, 3, va)
    A("v_cmp_eq_u32", VCC, 0, vg)
    A("s_cmp_eq_u32", s(28), 1)
    A("s_cselect_b64", s(62, 2), VCC, 0)
    A("s_cselect_b64", s(64, 2), -1, 0)
    A("s_andn2_b64", s(66, 2), s(64, 2), s(62, 2))
    A("v_cndmask_b32", D[0], D[0], 0, s(66, 2))
    A("v_cndmask_b32", D[1], D[1], 0, s(66, 2))
    A("v_cndmask_b32", D[2], D[2], 0, s(64, 2))
    A("v_cndmask_b32", D[3], D[3], 0, s(64, 2))
    A("v_cndmask_b32", D[2], D[2], 1.0, s(62, 2))
    A("v_cvt_pk_bf16_f32", v(16), D[0], D[1])
    A("v_cvt_pk_bf16_f32", v(17), D[2], D[3])
    A("buffer_store_dwordx2", v(16, 2), va, sWS, s(58), mods="offen")
    stamp(A, 5)
    A("s_waitcnt", "vmcnt(0) lgkmcnt(0)")
    stamp(A, 6)
    A("s_waitcnt", "lgkmcnt(0)")
    stamp_flush(A, 7, 37, s(28), 0)
    A("s_endpgm")
    A.label(LV)
    for ks in range(18):
        A("v_mfma_f32_16x16x32_bf16", D, XF[4 * ks:4 * ks + 4], G[8 * ks:8 * ks + 4], D)
    A("s_lshl_b32", s(60), s(59), 10)
    A("s_add_u32", s(58), s(58), s(60))
    A("s_add_u32", s(58), s(58), 2048)
    A("s_lshl_b32", s(60), s(30), 4)
    A("s_add_u32", s(58), s(58), s(60))
    A("v_and_b32", va, 1, vg)
    A("v_lshlrev_b32", va, 5, va)
    A("v_add_u32", va, va, vj)
    A("v_lshlrev_b32", va, 4, va)
    A("v_lshrrev_b32", vb, 1, vg)
    A("v_lshl_add_u32", va, vb, 3, va)
    A("v_cmp_eq_u32", VCC, 2, vj)
    A("s_cmp_eq_u32", s(28), 3)
    A("s_cselect_b64", s(62, 2), VCC, 0)
    A("v_cmp_lt_u32", VCC, 2, vj)
    A("s_cselect_b64", s(64, 2), VCC, 0)
    for r in range(4):
        A("v_cndmask_b32", D[r], D[r], 1.0, s(62, 2))
        A("v_cndmask_b32", D[r], D[r], 0, s(64, 2))
    A("v_cvt_pk_bf16_f32", v(16), D[0], D[1])
    A("v_cvt_pk_bf16_f32", v(17), D[2], D[3])
    A("buffer_store_dwordx2", v(16, 2), va, sWS, s(58), mods="offen")
    A("s_endpgm")
    A.label(Lpack)
    srd(A, sWQ, s(6, 2), 576 * 1152 + 64)
    A("s_sub_u32", s(36), s(2), 128)
    A("s_lshl_b32", s(36), s(36), 2)
    A("s_add_u32", s(36), s(36), s(28))
    A("s_mul_i32", s(37), s(36), 43691)
    A("s_lshr_b32", s(37), s(37), 19)
    A("s_mul_i32", s(38), s(37), 12)
    A("s_sub_u32", s(38), s(36), s(38))
    A("s_mul_i32", s(38), s(38), 3)
    vi, vh, vr, vs = v(2), v(3), v(4), v(5)
    A("v_and_b32", vi, 31, v(1))
    A("v_bfe_u32", vh, vi, 2, 1)
    A("v_lshrrev_b32", vr, 3, vi)
    A("v_lshlrev_b32", vr, 2, vr)
    A("v_and_b32", v(6), 3, vi)
    A("v_or_b32", vr, vr, v(6))
    A("v_lshl_add_u32", vs, vh, 3, vr)
    A("v_and_b32", v(6), 8, vr)
    A("v_add_u32", vs, vs, v(6))
    A("v_lshrrev_b32", v(6), 5, v(1))
    A("v_mul_u32_u24", v(7), 8 * 1152, v(6))
    A("v_lshl_add_u32", v(7), vs, 1, v(7))
    A("v_mov_b32", v(9), 0x7FF00000)
    A("v_cmp_gt_u32", VCC, 18, vs)
    A("v_cndmask_b32", v(7), v(9), v(7), VCC)
    A("s_mul_i32", s(39), s(38), 16 * 1152)
    A("s_mul_i32", s(40), s(37), 36)
    A("s_add_u32", s(39), s(39), s(40))
    G = v(16, 24)
    for f in range(3):
        for half in range(3):
            A("s_add_u32", s(41 + half), s(39), f * 16 * 1152 + half * 3456)
        for j in range(8):
            A("buffer_load_ushort", G[8 * f + j], v(7), sWQ, s(41 + j // 3), mods=f"offen offset:{(j % 3) * 1152}")
    A("s_waitcnt", "vmcnt(0)")
    for f in range(3):
        for q in range(4):
            A("v_lshl_or_b32", G[8 * f + q], G[8 * f + 2 * q + 1], 16, G[8 * f + 2 * q])
    A("s_mul_i32", s(40), s(37), 36)
    A("s_add_u32", s(40), s(40), s(38))
    A("s_lshl_b32", s(40), s(40), 10)
    A("s_add_u32", s(40), s(40), WS_WQP)
    A("v_lshlrev_b32", v(8), 4, v(1))
    for f in range(3):
        A("buffer_store_dwordx4", G[8 * f:8 * f + 4], v(8), sWS, s(40), mods=f"offen offset:{f * 1024}")
    A.label(Lend)
    A("s_endpgm")
    return name


STAGE = 26624


def gemm_body(A, xstride, wstride, sXsrd, sWsrd, sXoff, sWoff, sN, sWave, init_acc, S0):
    ACC = v(0, 144)
    WF = v(144, 36)
    WX = v(180, 8)
    XF = [v(188, 16), v(204, 16)]
    vDX = v(220, 2)
    vDW = v(222, 5)
    vAX, vAW0, vAW1 = v(227), v(228), v(229)
    vCX, vCW0, vCW1 = v(230), v(231), v(232)
    vt = [v(233 + i) for i in range(8)]
    vtid = v(241)
    sP = [s(S0 + i) for i in range(7)]
    sStR, sStW, sK, sT0, sT1 = s(S0 + 7), s(S0 + 8), s(S0 + 9), s(S0 + 10), s(S0 + 11)
    A("v_mov_b32", vtid, v(0))
    lane = vt[0]
    A("v_and_b32", lane, 63, vtid)
    for i in range(2):
        A("s_lshl_b32", sT0, sWave, 1)
        A("s_add_u32", sT0, sT0, i)
        A("s_mul_i32", sT1, sT0, xstride)
        A("v_lshlrev_b32", vt[1], 4, lane)
        A("v_add_u32", vDX[i], sT1, vt[1])
        A("s_lshl_b32", sP[i], sT0, 10)
    for q in range(5):
        if q < 4:
            A("s_lshl_b32", sT0, sWave, 6)
            A("s_add_u32", sT0, sT0, 256 * q)
        else:
            A("s_lshl_b32", sT0, sWave, 5)
            A("s_add_u32", sT0, sT0, 1024)
        A("v_add_u32", vt[1], sT0, lane)
        A("v_mul_u32_u24", vt[2], 1821, vt[1])
        A("v_lshrrev_b32", vt[2], 16, vt[2])
        A("v_mul_u32_u24", vt[3], 36, vt[2])
        A("v_sub_u32", vt[3], vt[1], vt[3])
        A("v_lshrrev_b32", vt[4], 2, vt[2])
        A("v_and_b32", vt[4], 2, vt[4])
        A("v_xor_b32", vt[3], vt[3], vt[4])
        A("s_mov_b32", sT1, wstride)
        A("v_mul_lo_u32", vt[2], vt[2], sT1)
        A("v_lshl_add_u32", vDW[q], vt[3], 4, vt[2])
        A("s_lshl_b32", sP[2 + q], sT0, 4)
        A("s_add_u32", sP[2 + q], sP[2 + q], 8192)
    m_, g_ = vt[1], vt[2]
    A("v_and_b32", m_, 15, lane)
    A("v_lshrrev_b32", g_, 4, lane)
    A("s_lshr_b32", sT0, sWave, 1)
    A("s_lshl_b32", sT0, sT0, 12)
    A("v_lshlrev_b32", vt[3], 4, lane)
    A("v_add_u32", vAX, sT0, vt[3])
    A("v_lshrrev_b32", vt[3], 2, m_)
    A("v_lshl_add_u32", vt[3], g_, 3, vt[3])
    A("v_mul_u32_u24", vt[3], 36 * 16, vt[3])
    A("v_and_b32", vt[4], 3, lane)
    A("v_lshl_add_u32", vt[3], vt[4], 3, vt[3])
    A("s_and_b32", sT0, sWave, 1)
    A("s_mul_i32", sT1, sT0, 18 * 16)
    A("s_add_u32", sT1, sT1, 8192)
    A("v_add_u32", vt[3], sT1, vt[3])
    A("v_and_b32", vt[4], 1, g_)
    A("v_lshlrev_b32", vt[4], 5, vt[4])
    A("v_add_u32", vt[5], vt[3], vt[4])
    A("v_sub_u32", vt[6], vt[3], vt[4])
    A("s_cmp_eq_u32", sT0, 0)
    A("s_cselect_b64", s(S0 + 12, 2), -1, 0)
    A("v_cndmask_b32", vAW0, vt[6], vt[5], s(S0 + 12, 2))
    A("v_cndmask_b32", vAW1, vt[5], vt[6], s(S0 + 12, 2))

    def dma_stage(sStage):
        if "nodma" in EXP:
            return
        for i in range(2):
            A("s_add_u32", M0, sStage, sP[i])
            A("buffer_load_dwordx4", vDX[i], sXsrd, sXoff, mods="offen lds")
        for q in range(4):
            A("s_add_u32", M0, sStage, sP[2 + q])
            A("buffer_load_dwordx4", vDW[q], sWsrd, sWoff, mods="offen lds")
        A("s_add_u32", M0, sStage, sP[6])
        A("s_mov_b32", "exec_hi", 0)
        A("buffer_load_dwordx4", vDW[4], sWsrd, sWoff, mods="offen lds")
        A("s_mov_b64", EXEC, -1)
        A("s_add_u32", sXoff, sXoff, 1024)
        A("s_add_u32", sWoff, sWoff, 32 * wstride)

    def wreg(nt, par):
        if nt >= 7 and par:
            return WX[4 * (nt - 7):4 * (nt - 7) + 4]
        return WF[4 * nt:4 * nt + 4]

    def read_w(nt, par):
        a = vCW1 if nt & 1 else vCW0
        w = wreg(nt, par)
        A("ds_read_b64_tr_b16", w[0:2], a, mods=f"offset:{nt * 32}")
        A("ds_read_b64_tr_b16", w[2:4], a, mods=f"offset:{nt * 32 + 2304}")

    def read_x(mt, par):
        A("ds_read_b128", XF[par][4 * mt:4 * mt + 4], vCX, mods=f"offset:{mt * 1024}")

    def set_cur(sStage):
        A("v_add_u32", vCX, sStage, vAX)
        A("v_add_u32", vCW0, sStage, vAW0)
        A("v_add_u32", vCW1, sStage, vAW1)

    init_acc(ACC, 0)
    for st in range(3):
        A("s_mov_b32", sT0, st * STAGE)
        dma_stage(sT0)
    init_acc(ACC, 1)
    A("s_waitcnt", "vmcnt(14)")
    A("s_barrier")
    stamp(A, 1)
    A("s_mov_b32", sStR, 0)
    set_cur(sStR)
    for mt in range(4):
        read_x(mt, 0)
    for nt in range(9):
        read_w(nt, 0)
    A("s_mov_b32", sStR, STAGE)
    A("s_mov_b32", sStW, 0)
    A("s_mov_b32", sK, 0)
    Lloop = A.newlabel("gemm_loop")
    Ldone = A.newlabel("gemm_done")
    A.label(Lloop)
    for par in range(2):
        Lw0 = A.newlabel("gw0")
        Lw1 = A.newlabel("gw1")
        Lnd = A.newlabel("gnd")
        A("s_add_u32", sT0, sK, 2)
        A("s_cmp_lt_u32", sT0, sN)
        A("s_cbranch_scc1", Lw0)
        A("s_waitcnt", "vmcnt(0) lgkmcnt(0)")
        A("s_branch", Lw1)
        A.label(Lw0)
        A("s_waitcnt", "vmcnt(7) lgkmcnt(0)")
        A.label(Lw1)
        A("s_barrier")
        set_cur(sStR)
        A("s_add_u32", sT0, sK, 3)
        A("s_cmp_lt_u32", sT0, sN)
        A("s_cbranch_scc0", Lnd)
        dma_stage(sStW)
        A.label(Lnd)
        np_ = 1 - par
        if "nocomp" not in EXP:
            read_w(7, np_)
            read_w(8, np_)
        for nt in range(9 if "nocomp" not in EXP else 0):
            w = wreg(nt, par)
            for mt in range(4):
                acc = ACC[(nt * 4 + mt) * 4:(nt * 4 + mt) * 4 + 4]
                A("v_mfma_f32_16x16x32_bf16", acc, w, XF[par][4 * mt:4 * mt + 4], acc)
            if nt < 7:
                read_w(nt, np_)
            if nt < 4:
                read_x(nt, np_)
        A("s_mov_b32", sStW, sStR)
        A("s_add_u32", sStR, sStR, STAGE)
        A("s_cmp_eq_u32", sStR, 3 * STAGE)
        A("s_cselect_b32", sStR, 0, sStR)
        A("s_add_u32", sK, sK, 1)
        A("s_cmp_lt_u32", sK, sN)
        if par == 0:
            A("s_cbranch_scc0", Ldone)
        else:
            A("s_cbranch_scc1", Lloop)
    A.label(Ldone)
    A("s_waitcnt", "lgkmcnt(0)")
    return dict(ACC=ACC, vtid=vtid, vt=vt, tmp=v(144, 76))


C0 = -2.0 * 0.7978845608028654 * 1.4426950408889634
C1 = C0 * 0.044715


def gen_gemm1(A):
    stamp(A, 0)
    A("s_load_dwordx4", s(4, 4), s(0, 2), KA_W1)
    A("s_load_dwordx2", s(12, 2), s(0, 2), KA_WS)
    A("v_lshrrev_b32", v(1), 6, v(0))
    A("v_readfirstlane_b32", s(28), v(1))
    A("s_sub_u32", s(3), s(2), 256)
    A("s_lshr_b32", s(29), s(3), 5)
    A("s_lshl_b32", s(29), s(29), 1)
    A("s_bfe_u32", s(30), s(3), (1 << 16) | 2)
    A("s_add_u32", s(29), s(29), s(30))
    A("s_and_b32", s(30), s(3), 3)
    A("s_lshl_b32", s(30), s(30), 2)
    A("s_bfe_u32", s(31), s(3), (2 << 16) | 3)
    A("s_add_u32", s(30), s(30), s(31))
    A("s_waitcnt", "lgkmcnt(0)")
    sWS, sW, sB = s(16, 4), s(20, 4), s(24, 4)
    srd(A, sWS, s(12, 2), WS_SIZE)
    srd(A, sW, s(4, 2), 576 * 9216)
    srd(A, sB, s(6, 2), 4608 * 2)
    sXoff, sWoff, sN = s(32), s(33), s(34)
    A("s_mul_i32", sXoff, s(29), 8 * 18432)
    A("s_add_u32", sXoff, sXoff, WS_Y)
    A("s_mul_i32", sWoff, s(30), 576)
    A("s_mov_b32", sN, 18)

    def init_acc(ACC, phase):
        vt = [v(234 + i) for i in range(12)]
        BT = v(144, 18)
        if phase == 1:
            A("s_waitcnt", "vmcnt(21)")
            for nt in range(9):
                a0 = ACC[nt * 16:nt * 16 + 4]
                A("v_lshlrev_b32", a0[0], 16, BT[2 * nt])
                A("v_and_b32", a0[1], 0xFFFF0000, BT[2 * nt])
                A("v_lshlrev_b32", a0[2], 16, BT[2 * nt + 1])
                A("v_and_b32", a0[3], 0xFFFF0000, BT[2 * nt + 1])
                for mt in range(1, 4):
                    for r in range(4):
                        A("v_mov_b32", ACC[nt * 16 + mt * 4 + r], a0[r])
            return
        A("v_bfe_u32", vt[8], v(241), 4, 2)
        A("v_lshlrev_b32", vt[8], 3, vt[8])
        A("s_and_b32", s(35), s(28), 1)
        A("s_mul_i32", s(35), s(35), 288)
        A("s_add_u32", s(35), s(35), sWoff_save)
        for nt in range(9):
            A("buffer_load_dwordx2", BT[2 * nt:2 * nt + 2], vt[8], sB, s(35), mods=f"offen offset:{nt * 32}")

    sWoff_save = s(36)
    A("s_mov_b32", sWoff_save, sWoff)
    g = gemm_body(A, 18432, 9216, sWS, sW, sXoff, sWoff, sN, s(28), init_acc, 40)
    ACC, vtid = g["ACC"], g["vtid"]
    stamp(A, 2)
    A("s_mov_b32", s(60), f32bits(C1))
    A("s_mov_b32", s(61), f32bits(C0))
    t0, t1 = v(144), v(145)
    va, vb, vm, vg = v(146), v(147), v(148), v(149)
    PK = v(152, 4)
    A("v_and_b32", vm, 15, vtid)
    A("v_bfe_u32", vg, vtid, 4, 2)
    A("s_and_b32", s(62), s(28), 1)
    A("s_lshl_b32", s(63), s(62), 1)
    A("v_and_b32", t0, 1, vg)
    A("v_lshrrev_b32", t1, 1, vg)
    A("v_lshl_add_u32", t0, t0, 1, t1)
    A("v_add_u32", t0, s(63), t0)
    A("v_lshlrev_b32", t0, 8, t0)
    A("v_lshl_add_u32", va, vm, 4, t0)
    A("v_add_u32", t1, s(63), t1)
    A("v_lshlrev_b32", t1, 8, t1)
    A("v_lshl_add_u32", vb, vm, 4, t1)
    A("v_and_b32", t0, 1, vg)
    A("v_lshl_add_u32", vb, t0, 3, vb)
    A("s_lshr_b32", s(63), s(28), 1)
    A("s_lshl_b32", s(63), s(63), 2)
    A("s_lshl_b32", s(35), s(29), 3)
    A("s_add_u32", s(35), s(35), s(63))
    A("s_mul_i32", s(35), s(35), 162)
    A("s_mul_i32", s(63), s(30), 9)
    A("s_add_u32", s(35), s(35), s(63))
    A("s_lshl_b32", s(62), s(62), 2)
    A("s_add_u32", s(35), s(35), s(62))
    A("s_lshl_b32", s(35), s(35), 10)
    A("s_add_u32", s(35), s(35), WS_HO)
    for mt in range(4):
        A("s_add_u32", s(64 + mt), s(35), mt * 162 * 1024)
        A("s_add_u32", s(68 + mt), s(35), mt * 162 * 1024 + 4096)

    cC1, cC0, cONE = v(156, 2), v(158, 2), v(160, 2)
    TT = [v(162, 2), v(164, 2)]

    def gelu4(a):
        for h in range(2):
            x2, T2 = a[2 * h:2 * h + 2], TT[h]
            A("v_pk_mul_f32", T2, x2, x2)
            A("v_pk_fma_f32", T2, T2, cC1, cC0)
            A("v_pk_mul_f32", T2, T2, x2)
        for h in range(2):
            for e in range(2):
                A("v_exp_f32", TT[h][e], TT[h][e])
        for h in range(2):
            A("v_pk_add_f32", TT[h], TT[h], cONE)
        for h in range(2):
            for e in range(2):
                A("v_rcp_f32", TT[h][e], TT[h][e])
        for h in range(2):
            A("v_pk_mul_f32", a[2 * h:2 * h + 2], a[2 * h:2 * h + 2], TT[h])

    for e in range(2):
        A("v_mov_b32", cC1[e], s(60))
        A("v_mov_b32", cC0[e], s(61))
        A("v_mov_b32", cONE[e], 1.0)
    for mt in range(4):
        for p in range(5):
            tiles = [2 * p, 2 * p + 1] if p < 4 else [8]
            for ti, nt in enumerate(tiles):
                a = ACC[(nt * 4 + mt) * 4:(nt * 4 + mt) * 4 + 4]
                gelu4(a)
                A("v_cvt_pk_bf16_f32", PK[2 * ti], a[0], a[1])
                A("v_cvt_pk_bf16_f32", PK[2 * ti + 1], a[2], a[3])
            if p < 4:
                A("v_permlane16_swap_b32", PK[0], PK[2])
                A("v_permlane16_swap_b32", PK[1], PK[3])
                A("buffer_store_dwordx4", PK, va, sWS, s(64 + mt), mods=f"offen offset:{p * 1024}")
            else:
                A("buffer_store_dwordx2", PK[0:2], vb, sWS, s(68 + mt), mods="offen")
    stamp(A, 3)
    A("s_waitcnt", "vmcnt(0) lgkmcnt(0)")
    stamp(A, 4)
    A("s_waitcnt", "lgkmcnt(0)")
    stamp_flush(A, 5, 256 + 37, s(28), 0, base=32)
    A("s_endpgm")


QSCALE = (18 ** -0.5) * 1.4426950408889634


def gen_attn(A):
    stamp(A, 0)
    A("s_load_dwordx2", s(12, 2), s(0, 2), KA_WS)
    A("v_lshrrev_b32", v(1), 6, v(0))
    A("v_readfirstlane_b32", s(28), v(1))
    A("s_lshr_b32", s(29), s(2), 3)
    A("s_and_b32", s(30), s(2), 7)
    A("s_lshl_b32", s(30), s(30), 2)
    A("s_add_u32", s(30), s(30), s(28))
    A("s_waitcnt", "lgkmcnt(0)")
    sWS = s(16, 4)
    srd(A, sWS, s(12, 2), WS_SIZE)
    if "noprio" not in EXP:
        A("s_setprio", 3)
    vl16 = v(2)
    A("v_and_b32", v(1), 63, v(0))
    A("v_lshlrev_b32", vl16, 4, v(1))
    CH = 16384
    sKV = s(32)
    sPw = s(33)
    A("s_lshl_b32", sPw, s(28), 12)
    A("s_add_u32", sKV, sPw, WS_KV)

    def dma_chunk(sBuf):
        for i in range(4):
            A("s_add_u32", M0, sBuf, sPw)
            A("buffer_load_dwordx4", vl16, sWS, sKV, mods=f"offen offset:{i * 1024} lds")
        A("s_add_u32", sKV, sKV, CH)

    QA = [v(20, 16), v(36, 16)]
    BF = v(52, 48)
    AF = v(100, 144)
    XB = 32768
    A("s_mul_i32", s(36), s(30), 36 * 1024)
    A("s_add_u32", s(36), s(36), WS_WQP)
    A("s_lshr_b32", s(50), s(28), 1)
    A("s_lshl_b32", s(37), s(29), 1)
    A("s_add_u32", s(37), s(37), s(50))
    A("s_mul_i32", s(37), s(37), 36864)
    A("s_and_b32", s(50), s(28), 1)
    A("s_mul_i32", s(50), s(50), 6 * 1024)
    A("s_add_u32", s(37), s(37), s(50))
    A("s_add_u32", s(37), s(37), WS_XNF)
    A("s_add_u32", s(38), s(37), 4096)
    A("s_mul_i32", s(51), s(28), 6 * 1024)
    A("s_add_u32", s(51), s(51), XB)

    def dma_x(ph):
        for i in range(6):
            if i in (0, 4):
                A("s_add_u32", M0, s(51), (ph & 1) * 24576 + (4096 if i else 0))
            A("buffer_load_dwordx4", vl16, sWS, s(38 if i >= 4 else 37), mods=f"offen offset:{(i & 3) * 1024} lds")
        A("s_add_u32", s(37), s(37), 12 * 1024)
        A("s_add_u32", s(38), s(38), 12 * 1024)

    def load_a(ph):
        for i in range(12):
            if i % 4 == 0 and (ph or i):
                A("s_add_u32", s(36), s(36), 4096)
            A("buffer_load_dwordx4", AF[48 * ph + 4 * i:48 * ph + 4 * i + 4], vl16, sWS, s(36),
              mods=f"offen offset:{(i & 3) * 1024}")

    A("v_add_u32", v(3), XB, vl16)
    dma_x(0)
    load_a(0)
    dma_x(1)
    load_a(1)
    A("s_mov_b32", s(35), 0)
    dma_chunk(s(35))
    A("s_mov_b32", s(35), CH)
    dma_chunk(s(35))
    load_a(2)
    for ct in range(2):
        for r in range(16):
            A("v_mov_b32", QA[ct][r], 0)
    for ph in range(3):
        A("s_waitcnt", f"vmcnt({(38, 26, 0)[ph]})")
        A("s_barrier")
        for half in range(2):
            for i in range(6):
                for ct in range(2):
                    o = (ph & 1) * 24576 + (ct * 12 + half * 6 + i) * 1024
                    A("ds_read_b128", BF[8 * i + 4 * ct:8 * i + 4 * ct + 4], v(3), mods=f"offset:{o}")
            for i in range(6):
                A("s_waitcnt", f"lgkmcnt({10 - 2 * i})")
                ks = half * 6 + i
                for ct in range(2):
                    A("v_mfma_f32_32x32x16_bf16", QA[ct], AF[48 * ph + 4 * ks:48 * ph + 4 * ks + 4],
                      BF[8 * i + 4 * ct:8 * i + 4 * ct + 4], QA[ct])
        if ph == 0:
            A("s_barrier")
            dma_x(2)
    stamp(A, 1)
    QF = [[v(4, 4), v(8, 4)], [v(12, 4), v(16, 4)]]
    A("s_mov_b32", s(39), f32bits(QSCALE))
    for ct in range(2):
        for r in range(16):
            A("v_mul_f32", QA[ct][r], s(39), QA[ct][r])
        for f in range(2):
            for q in range(4):
                A("v_cvt_pk_bf16_f32", QF[ct][f][q], QA[ct][8 * f + 2 * q], QA[ct][8 * f + 2 * q + 1])
    KF = [[v(20, 4), v(24, 4)], [v(28, 4), v(32, 4)]]
    VF = [[v(36, 4), v(40, 4)], [v(44, 4), v(48, 4)]]
    PK = [v(52, 8), v(60, 8)]
    O = [v(68, 16), v(84, 16)]
    S = [[v(100, 16), v(116, 16)], [v(132, 16), v(148, 16)]]
    Mx = [v(164), v(165)]
    TM = [v(166), v(167)]
    t1, t2, t3, t4 = v(168), v(169), v(170), v(171)
    vCur, vNxt = v(172), v(173)
    sT, sLow, sC, sB0, sB1, sB2, sBig = s(40), s(41), s(42), s(43), s(44), s(45), s(53)
    resc = []

    def rd_k(buf, addr, tile):
        A("ds_read_b128", KF[buf][0], addr, mods=f"offset:{tile * 4096}")
        A("ds_read_b128", KF[buf][1], addr, mods=f"offset:{tile * 4096 + 1024}")

    def rd_v(buf, addr, tile):
        A("ds_read_b128", VF[buf][0], addr, mods=f"offset:{tile * 4096 + 2048}")
        A("ds_read_b128", VF[buf][1], addr, mods=f"offset:{tile * 4096 + 3072}")

    def qk(sb, kb, ct, f):
        A("v_mfma_f32_32x32x16_bf16", S[sb][ct], KF[kb][f], QF[ct][f], 0 if f == 0 else S[sb][ct])

    def tile_max(Sc):
        for ct in range(2):
            A("v_max3_f32", TM[ct], Sc[ct][0], Sc[ct][1], Sc[ct][2])
            for r in range(3, 15, 2):
                A("v_max3_f32", TM[ct], TM[ct], Sc[ct][r], Sc[ct][r + 1])
            A("v_max_f32", TM[ct], TM[ct], Sc[ct][15])

    def rescale(cur, from_l):
        for ct in range(2):
            src = O[ct][10] if from_l else TM[ct]
            A("v_mov_b32", t1, src)
            A("v_mov_b32", t2, src)
            A("v_permlane32_swap_b32", t1, t2)
            if from_l:
                A("v_log_f32", t1, t1)
                A("v_max_f32", t1, 0, t1)
            else:
                A("v_max_f32", t1, t1, t2)
                A("v_max_f32", t1, sLow, t1)
            A("v_add_f32", t1, Mx[ct], t1)
            A("v_and_b32", t1, 0xFFFF0000, t1)
            A("v_sub_f32", t2, t1, Mx[ct])
            A("v_mov_b32", Mx[ct], t1)
            A("v_xor_b32", t3, 0x80000000, t1)
            A("v_lshrrev_b32", QF[ct][1][1], 16, t3)
            for r in range(16):
                A("v_sub_f32", S[cur][ct][r], S[cur][ct][r], t2)
            A("v_sub_f32", t3, 0, t2)
            A("v_min_f32", t3, 0, t3)
            A("v_exp_f32", t3, t3)
            for r in range(16):
                A("v_mul_f32", O[ct][r], O[ct][r], t3)

    def attn_pass(safe):
        for ct in range(2):
            for r in range(16):
                A("v_mov_b32", O[ct][r], 0)
            A("v_mov_b32", Mx[ct], 0)
            A("v_mov_b32", QF[ct][1][1], 0)
        A("s_mov_b32", sT, 0xFF800000)
        A("s_mov_b32", sLow, 0xFF800000)
        A("s_mov_b32", sBig, f32bits(2.0 ** 24))
        A("s_waitcnt", "vmcnt(0)")
        A("s_barrier")
        A("v_mov_b32", vCur, vl16)
        A("v_add_u32", vNxt, CH, vl16)
        A("s_mov_b32", sB0, 0)
        A("s_mov_b32", sB1, CH)
        A("s_mov_b32", sB2, 2 * CH)
        rd_k(0, vCur, 0)
        rd_k(1, vCur, 1)
        rd_v(0, vCur, 0)
        A("s_waitcnt", "lgkmcnt(0)")
        for ct in range(2):
            qk(0, 0, ct, 0)
            qk(0, 0, ct, 1)
        if not safe:
            tile_max(S[0])
            rescale(0, False)
        A("s_mov_b32", sC, 0)
        stamp(A, 2)
        Lloop = A.newlabel("att_loop")
        A.label(Lloop)
        Lnd = A.newlabel("att_nd")
        A("s_waitcnt", "vmcnt(0) lgkmcnt(0)")
        A("s_barrier")
        A("s_cmp_lt_u32", sC, 14)
        A("s_cbranch_scc0", Lnd)
        dma_chunk(sB2)
        A.label(Lnd)
        if not safe:
            A("v_max_f32", t1, O[0][10], O[1][10])
            A("v_cmp_lt_f32", VCC, sBig, t1)
            Lr, Lb = A.newlabel("att_resc"), A.newlabel("att_back")
            A("s_cbranch_vccnz", Lr)
            A.label(Lb)
            resc.append((Lr, Lb, 0, True))
        for i in range(4):
            cur, nx = i & 1, 1 - (i & 1)
            Sc = S[cur]
            if safe:
                tile_max(Sc)
                A("v_max_f32", t1, TM[0], TM[1])
                A("v_cmp_lt_f32", VCC, sT, t1)
                Lr, Lb = A.newlabel("att_resc"), A.newlabel("att_back")
                A("s_cbranch_vccnz", Lr)
                A.label(Lb)
                resc.append((Lr, Lb, cur, False))
            A("s_waitcnt", "lgkmcnt(0)")
            ex = lambda ct, r: A("v_exp_f32", Sc[ct][r], Sc[ct][r])
            cv = lambda ct, q: A("v_cvt_pk_bf16_f32", PK[ct][q], Sc[ct][2 * q], Sc[ct][2 * q + 1])
            pv = lambda ct, j: A("v_mfma_f32_32x32x16_bf16", O[ct], VF[cur][j], PK[ct][4 * j:4 * j + 4], O[ct])
            qk(nx, nx, 0, 0)
            for r in range(0, 4):
                ex(0, r)
            qk(nx, nx, 0, 1)
            for r in range(4, 8):
                ex(0, r)
            qk(nx, nx, 1, 0)
            for r in range(8, 12):
                ex(0, r)
            qk(nx, nx, 1, 1)
            if i < 2:
                rd_k(cur, vCur, i + 2)
            else:
                rd_k(cur, vNxt, i - 2)
            for r in range(12, 16):
                ex(0, r)
            for q in range(8):
                cv(0, q)
            pv(0, 0)
            for r in range(0, 4):
                ex(1, r)
            pv(0, 1)
            for r in range(4, 12):
                ex(1, r)
            for q in range(4):
                cv(1, q)
            pv(1, 0)
            for r in range(12, 16):
                ex(1, r)
            for q in range(4, 8):
                cv(1, q)
            if i < 3:
                rd_v(nx, vCur, i + 1)
            else:
                rd_v(nx, vNxt, 0)
            pv(1, 1)
        A("s_mov_b32", s(46), sB0)
        A("s_mov_b32", sB0, sB1)
        A("s_mov_b32", sB1, sB2)
        A("s_mov_b32", sB2, s(46))
        A("v_add_u32", vCur, sB0, vl16)
        A("v_add_u32", vNxt, sB1, vl16)
        A("s_add_u32", sC, sC, 1)
        A("s_cmp_lt_u32", sC, 16)
        A("s_cbranch_scc1", Lloop)

    Lsafe, Lepi = A.newlabel("att_safe"), A.newlabel("att_epi")
    if "safeonly" in EXP:
        attn_pass(True)
    else:
        attn_pass(False)
        A("s_mov_b32", s(54), f32bits(2.0 ** 100))
        A("v_cmp_nlt_f32", VCC, O[0][10], s(54))
        A("v_cmp_nlt_f32", s(58, 2), O[1][10], s(54))
        A("s_or_b64", VCC, VCC, s(58, 2))
        A("s_cmp_lg_u64", VCC, 0)
        A("s_cselect_b32", s(55), 1, 0)
        A("v_mov_b32", t1, s(55))
        A("s_lshl_b32", s(56), s(28), 2)
        A("s_add_u32", s(56), s(56), 3 * CH)
        A("v_mov_b32", t2, s(56))
        A("ds_write_b32", t2, t1)
        A("s_waitcnt", "lgkmcnt(0)")
        A("s_barrier")
        A("v_mov_b32", t2, 3 * CH)
        A("ds_read_b128", v(176, 4), t2)
        A("s_waitcnt", "lgkmcnt(0)")
        A("v_or_b32", t1, v(176), v(177))
        A("v_or3_b32", t1, t1, v(178), v(179))
        A("v_readfirstlane_b32", s(55), t1)
        A("s_cmp_lg_u32", s(55), 0)
        A("s_cbranch_scc1", Lsafe)
    A.label(Lepi)
    stamp(A, 3)
    A("s_waitcnt", "lgkmcnt(0)")
    VA = [v(174 + i) for i in range(5)]
    A("v_and_b32", t1, 15, v(1))
    A("v_lshlrev_b32", t1, 4, t1)
    A("v_bfe_u32", t2, v(1), 4, 1)
    A("s_mov_b32", s(47), 162 * 1024)
    A("v_mul_lo_u32", t2, t2, s(47))
    A("v_add_u32", t1, t1, t2)
    A("v_lshrrev_b32", t2, 5, v(1))
    A("v_lshlrev_b32", t2, 2, t2)
    A("s_mul_i32", s(48), s(30), 18)
    A("s_add_u32", s(48), s(48), 4608)
    A("v_add_u32", t2, s(48), t2)
    for i, dc in enumerate((0, 2, 8, 10, 16)):
        A("v_add_u32", t3, dc, t2)
        A("v_lshrrev_b32", t4, 3, t3)
        A("v_lshl_add_u32", VA[i], t4, 8, t1)
        A("v_and_b32", t3, 7, t3)
        A("v_lshl_add_u32", VA[i], t3, 1, VA[i])
    A("s_mul_i32", s(48), s(29), 4 * 162 * 1024)
    A("s_add_u32", s(48), s(48), WS_HO)
    A("s_add_u32", s(49), s(48), 2 * 162 * 1024)
    for ct in range(2):
        A("v_mov_b32", t1, O[ct][10])
        A("v_mov_b32", t2, O[ct][10])
        A("v_permlane32_swap_b32", t1, t2)
        A("v_rcp_f32", t1, t1)
        for r in range(10):
            A("v_mul_f32", O[ct][r], O[ct][r], t1)
        for q in range(5):
            A("v_cvt_pk_bf16_f32", PK[ct][q], O[ct][2 * q], O[ct][2 * q + 1])
        for q in range(4):
            A("buffer_store_dword", PK[ct][q], VA[q], sWS, s(48 + ct), mods="offen")
    A("s_mov_b32", "exec_hi", 0)
    for ct in range(2):
        A("buffer_store_dword", PK[ct][4], VA[4], sWS, s(48 + ct), mods="offen")
    A("s_mov_b64", EXEC, -1)
    stamp(A, 4)
    A("s_waitcnt", "vmcnt(0) lgkmcnt(0)")
    stamp_flush(A, 5, 37, s(28), 0)
    A("s_endpgm")
    if "safeonly" not in EXP:
        A.label(Lsafe)
        A("s_add_u32", sKV, sPw, WS_KV)
        A("s_mov_b32", s(35), 0)
        dma_chunk(s(35))
        A("s_mov_b32", s(35), CH)
        dma_chunk(s(35))
        attn_pass(True)
        A("s_branch", Lepi)
    for (Lr, Lb, cur, from_l) in resc:
        A.label(Lr)
        rescale(cur, from_l)
        if not from_l:
            A("s_mov_b32", sT, f32bits(8.0))
            A("s_mov_b32", sLow, 0)
        A("s_branch", Lb)


def gen_k2(A):
    name = "k2_kernel"
    kernel_header(A, name)
    Lg, Lend = A.newlabel("k2_gemm"), A.newlabel("k2_end")
    A("s_cmp_ge_u32", s(2), 512)
    A("s_cbranch_scc1", Lend)
    A("s_cmp_ge_u32", s(2), 256)
    A("s_cbranch_scc1", Lend if "attonly" in EXP else Lg)
    if "gemmonly" in EXP:
        A("s_branch", Lend)
    gen_attn(A)
    A.label(Lg)
    gen_gemm1(A)
    A.label(Lend)
    A("s_endpgm")
    return name


K3_STAGE = 9600
K3_LDS = 4 * 4 * K3_STAGE


def gen_k3(A):
    name = "k3_kernel"
    kernel_header(A, name)
    Lend = A.newlabel("k3_end")
    A("s_cmp_ge_u32", s(2), 256)
    A("s_cbranch_scc1", Lend)
    A("s_load_dwordx2", s(4, 2), s(0, 2), KA_W2)
    A("s_load_dwordx2", s(6, 2), s(0, 2), KA_WO)
    A("s_load_dwordx2", s(12, 2), s(0, 2), KA_WS)
    stamp(A, 0)
    A("v_lshrrev_b32", v(1), 6, v(0))
    A("v_readfirstlane_b32", s(28), v(1))
    A("s_and_b32", s(31), s(2), 3)
    A("s_lshr_b32", s(30), s(2), 6)
    A("s_bfe_u32", s(29), s(2), (4 << 16) | 2)
    A("s_lshr_b32", s(26), s(28), 1)
    A("s_and_b32", s(27), s(28), 1)
    A("s_lshl_b32", s(25), s(31), 2)
    A("s_add_u32", s(25), s(25), s(26))
    A("s_waitcnt", "lgkmcnt(0)")
    sWS, sW = s(16, 4), s(20, 4)
    srd(A, sWS, s(12, 2), WS_SIZE)
    sCnt, sWoff = s(34), s(33)
    sX = [s(36 + i) for i in range(4)]
    sW2, sWoff2 = s(64, 4), s(68)
    sX2 = [s(69 + i) for i in range(4)]
    srd(A, sW, s(4, 2), 4608 * 1152)
    srd(A, sW2, s(6, 2), 576 * 1152)
    A("s_mul_i32", s(41), s(25), 9)
    A("s_cmp_gt_u32", s(25), 0)
    A("s_addc_u32", s(42), s(25), 0)
    A("s_cmp_gt_u32", s(25), 8)
    A("s_addc_u32", s(42), s(42), 0)
    A("s_and_b32", s(40), s(25), 7)
    A("s_cmp_eq_u32", s(40), 0)
    A("s_cselect_b32", sCnt, 11, 10)
    A("s_mul_i32", sWoff, s(41), 32 * 1152)
    A("s_mul_i32", s(46), s(30), 288)
    A("s_add_u32", sWoff, sWoff, s(46))
    A("s_mul_i32", sWoff2, s(42), 32 * 1152)
    A("s_add_u32", sWoff2, sWoff2, s(46))
    A("s_lshl_b32", s(46), s(29), 7)
    A("s_lshl_b32", s(47), s(27), 6)
    A("s_add_u32", s(46), s(46), s(47))
    A("s_lshr_b32", s(47), s(46), 4)
    A("s_mul_i32", s(47), s(47), 162)
    A("s_add_u32", s(48), s(47), s(42))
    A("s_add_u32", s(48), s(48), 144)
    A("s_add_u32", s(47), s(47), s(41))
    A("s_lshl_b32", s(47), s(47), 10)
    A("s_add_u32", s(47), s(47), WS_HO)
    A("s_lshl_b32", s(48), s(48), 10)
    A("s_add_u32", s(48), s(48), WS_HO)
    for mt in range(4):
        A("s_add_u32", sX[mt], s(47), mt * 162 * 1024)
        A("s_add_u32", sX2[mt], s(48), mt * 162 * 1024)
    ACC = v(0, 144)
    WF = v(144, 36)
    WX = v(180, 8)
    XF = [v(188, 16), v(204, 16), v(220, 16)]
    vDW = v(236, 5)
    vDX, vAW, vtid = v(241), v(242), v(246)
    vt = [v(247 + i) for i in range(7)]
    A("v_mov_b32", vtid, v(0))
    lane = vt[0]
    A("v_and_b32", lane, 63, vtid)
    sGB = s(49)
    A("s_mul_i32", sGB, s(26), 4 * K3_STAGE)
    sP = [s(50 + q) for q in range(5)]
    A("s_mul_i32", s(55), s(27), 300)
    for q in range(5):
        A("s_add_u32", s(56), s(55), 64 * q)
        A("v_add_u32", vt[1], s(56), lane)
        A("v_mul_u32_u24", vt[2], 432, vt[1])
        A("v_lshrrev_b32", vt[2], 16, vt[2])
        A("v_mul_u32_u24", vt[3], 152, vt[2])
        A("v_sub_u32", vt[3], vt[1], vt[3])
        A("v_mul_u32_u24", vt[4], 3641, vt[3])
        A("v_lshrrev_b32", vt[4], 16, vt[4])
        A("v_mul_u32_u24", vt[5], 18, vt[4])
        A("v_sub_u32", vt[5], vt[3], vt[5])
        A("v_lshl_add_u32", vt[4], vt[2], 3, vt[4])
        A("v_mul_u32_u24", vt[4], 1152, vt[4])
        A("v_lshl_add_u32", vt[4], vt[5], 4, vt[4])
        A("v_mov_b32", vt[5], 0x7FF00000)
        A("v_cmp_gt_u32", VCC, 144, vt[3])
        A("v_cndmask_b32", vDW[q], vt[5], vt[4], VCC)
        A("s_lshl_b32", sP[q], s(56), 4)
        A("s_add_u32", sP[q], sP[q], sGB)
    m_, g_ = vt[1], vt[2]
    A("v_and_b32", m_, 15, lane)
    A("v_lshrrev_b32", g_, 4, lane)
    A("v_lshlrev_b32", vDX, 4, lane)
    A("v_lshrrev_b32", vt[3], 2, m_)
    A("v_mul_u32_u24", vt[3], 18 * 16, vt[3])
    A("v_mul_u32_u24", vt[4], 152 * 16, g_)
    A("v_add_u32", vt[3], vt[3], vt[4])
    A("v_and_b32", vt[4], 3, lane)
    A("v_lshl_add_u32", vt[3], vt[4], 3, vt[3])
    A("v_add_u32", vAW, sGB, vt[3])

    def dma_w(st):
        if "k3now" in EXP:
            return
        for q in range(5):
            A("s_add_u32", M0, sP[q], (st % 4) * K3_STAGE)
            if q == 4:
                A("s_mov_b32", "exec_hi", 0xFFF)
            A("buffer_load_dwordx4", vDW[q], sW if st < 9 else sW2, sWoff if st < 9 else sWoff2, mods="offen lds")
            if q == 4:
                A("s_mov_b64", EXEC, -1)
        so = sWoff if st < 9 else sWoff2
        A("s_add_u32", so, so, 32 * 1152)

    def load_x(st):
        if "k3nox" in EXP:
            return
        for mt in range(4):
            sx = sX[mt] if st < 9 else sX2[mt]
            A("buffer_load_dwordx4", XF[st % 3][4 * mt:4 * mt + 4], vDX, sWS, sx, mods="offen")
            A("s_add_u32", sx, sx, 1024)

    def wreg(nt, par):
        if nt >= 7 and par:
            return WX[4 * (nt - 7):4 * (nt - 7) + 4]
        return WF[4 * nt:4 * nt + 4]

    def read_w(nt, st):
        w = wreg(nt, st & 1)
        o = (st % 4) * K3_STAGE + nt * 32
        A("ds_read_b64_tr_b16", w[0:2], vAW, mods=f"offset:{o}")
        A("ds_read_b64_tr_b16", w[2:4], vAW, mods=f"offset:{o + 1152}")

    dma_w(0)
    load_x(0)
    dma_w(1)
    load_x(1)
    dma_w(2)
    dma_w(3)
    for r in range(144):
        A("v_mov_b32", ACC[r], 0)
    stamp(A, 1)
    A("s_waitcnt", "vmcnt(19)")
    A("s_barrier")
    stamp(A, 2)
    for nt in range(9):
        read_w(nt, 0)
    for k in range(11):
        Lskip = A.newlabel("k3_skip")
        if k < 2:
            A("s_waitcnt", "vmcnt(14) lgkmcnt(0)")
        elif k <= 5:
            A("s_waitcnt", "vmcnt(9) lgkmcnt(0)")
        else:
            La, Lb, Lc = A.newlabel("k3w"), A.newlabel("k3w"), A.newlabel("k3w")
            if k + 3 < 11:
                A("s_cmp_lt_u32", k + 3, sCnt)
                A("s_cbranch_scc1", La)
            if k + 1 < 11:
                A("s_cmp_lt_u32", k + 1, sCnt)
                A("s_cbranch_scc1", Lb)
            A("s_waitcnt", "vmcnt(0) lgkmcnt(0)")
            A("s_branch", Lc)
            A.label(La)
            A("s_waitcnt", "vmcnt(9) lgkmcnt(0)")
            A("s_branch", Lc)
            A.label(Lb)
            A("s_waitcnt", "vmcnt(4) lgkmcnt(0)")
            A.label(Lc)
        A("s_barrier")
        if k >= 9:
            A("s_cmp_lt_u32", k, sCnt)
            A("s_cbranch_scc0", Lskip)
        if k + 4 < 11:
            if k + 4 >= 9:
                Ln = A.newlabel("k3n")
                A("s_cmp_lt_u32", k + 4, sCnt)
                A("s_cbranch_scc0", Ln)
            dma_w(k + 4)
            if k + 4 >= 9:
                A.label(Ln)
        if k + 2 < 11:
            if k + 2 >= 9:
                Ln = A.newlabel("k3n")
                A("s_cmp_lt_u32", k + 2, sCnt)
                A("s_cbranch_scc0", Ln)
            load_x(k + 2)
            if k + 2 >= 9:
                A.label(Ln)
        nxt = k + 1 < 11
        if nxt:
            read_w(7, k + 1)
            read_w(8, k + 1)
        for nt in range(9):
            w = wreg(nt, k & 1)
            for mt in range(4 if "k3nom" not in EXP else 0):
                acc = ACC[(nt * 4 + mt) * 4:(nt * 4 + mt) * 4 + 4]
                A("v_mfma_f32_16x16x32_bf16", acc, w, XF[k % 3][4 * mt:4 * mt + 4], acc)
            if nt < 7 and nxt:
                read_w(nt, k + 1)
        A.label(Lskip)
        if k in (0, 5):
            stamp(A, 3 + (k == 5))
    A("s_waitcnt", "vmcnt(0) lgkmcnt(0)")
    A("s_barrier")
    stamp(A, 5)
    vW_, vR_ = v(236), v(237)
    TMP = v(144, 72)
    A("v_and_b32", lane, 63, vtid)
    vl16 = v(240)
    A("v_lshlrev_b32", vl16, 4, lane)
    A("s_mul_i32", s(56), s(28), 18432)
    A("v_add_u32", vW_, s(56), vl16)
    A("s_xor_b32", s(57), s(28), 2)
    A("s_mul_i32", s(57), s(57), 18432)
    A("v_add_u32", vR_, s(57), vl16)

    def tile(nt, mt):
        return ACC[(nt * 4 + mt) * 4:(nt * 4 + mt) * 4 + 4]

    va, vb = v(238), v(239)
    A("v_and_b32", m_, 15, lane)
    A("v_lshrrev_b32", g_, 4, lane)
    A("v_add_u32", va, s(46), m_)
    A("v_mul_u32_u24", va, 1152, va)
    A("v_lshl_add_u32", vb, g_, 3, va)
    A("v_and_b32", vt[3], 1, g_)
    A("v_lshl_add_u32", va, vt[3], 5, va)
    A("v_lshrrev_b32", vt[3], 1, g_)
    A("v_lshl_add_u32", va, vt[3], 4, va)
    A("s_mul_i32", s(58), s(31), 2048 * 1152)
    A("s_mul_i32", s(59), s(30), 288)
    A("s_add_u32", s(58), s(58), s(59))
    A("s_add_u32", s(58), s(58), WS_PART)
    Lv = [A.newlabel("k3_v") for _ in range(4)]
    A("s_and_b32", s(59), s(26), 1)
    A("s_cmp_eq_u32", s(59), 1)
    A("s_cbranch_scc1", Lv[1])
    for b0 in range(2):
        if b0:
            A.label(Lv[1])
        keep = [2 * b0, 2 * b0 + 1]
        send = [2 - 2 * b0, 3 - 2 * b0]
        i = 0
        for nt in range(9):
            for mt in send:
                A("ds_write_b128", vW_, tile(nt, mt), mods=f"offset:{i * 1024}")
                i += 1
        A("s_waitcnt", "lgkmcnt(0)")
        A("s_barrier")
        for i in range(18):
            A("ds_read_b128", TMP[4 * i:4 * i + 4], vR_, mods=f"offset:{i * 1024}")
        i = 0
        for nt in range(9):
            for mt in keep:
                A("s_waitcnt", f"lgkmcnt({min(17 - i, 15)})")
                for r in range(4):
                    A("v_add_f32", tile(nt, mt)[r], tile(nt, mt)[r], TMP[4 * i + r])
                i += 1
        A("s_barrier")
        A("s_xor_b32", s(57), s(28), 4)
        A("s_mul_i32", s(57), s(57), 18432)
        A("v_add_u32", vR_, s(57), vl16)
        A("s_cmp_ge_u32", s(26), 2)
        A("s_cbranch_scc1", Lv[2 + b0])
        for b1 in range(2):
            if b1:
                A.label(Lv[2 + b0])
            km, sm = keep[b1], keep[1 - b1]
            for nt in range(9):
                A("ds_write_b128", vW_, tile(nt, sm), mods=f"offset:{nt * 1024}")
            A("s_waitcnt", "lgkmcnt(0)")
            A("s_barrier")
            for nt in range(9):
                A("ds_read_b128", TMP[4 * nt:4 * nt + 4], vR_, mods=f"offset:{nt * 1024}")
            A("s_add_u32", s(60), s(58), km * 16 * 1152)
            PK = v(220, 4)
            for p in range(5):
                tiles = [2 * p, 2 * p + 1] if p < 4 else [8]
                A("s_waitcnt", f"lgkmcnt({8 - tiles[-1]})")
                for ti, nt in enumerate(tiles):
                    a = tile(nt, km)
                    for r in range(4):
                        A("v_add_f32", a[r], a[r], TMP[4 * nt + r])
                    A("v_cvt_pk_bf16_f32", PK[2 * ti], a[0], a[1])
                    A("v_cvt_pk_bf16_f32", PK[2 * ti + 1], a[2], a[3])
                if p < 4:
                    A("v_permlane16_swap_b32", PK[0], PK[2])
                    A("v_permlane16_swap_b32", PK[1], PK[3])
                    A("buffer_store_dwordx4", PK, va, sWS, s(60), mods=f"offen offset:{p * 64}")
                else:
                    A("buffer_store_dwordx2", PK[0:2], vb, sWS, s(60), mods="offen offset:256")
            stamp(A, 6)
            A("s_waitcnt", "vmcnt(0)")
            stamp(A, 7)
            A("s_waitcnt", "lgkmcnt(0)")
            stamp_flush(A, 8, 37, s(28), 0)
            A("s_endpgm")
    A.label(Lend)
    A("s_endpgm")
    return name


def gen_k4(A):
    name = "k4_kernel"
    kernel_header(A, name)
    Lend = A.newlabel("k4_end")
    A("s_cmp_ge_u32", s(2), 576)
    A("s_cbranch_scc1", Lend)
    A("s_load_dwordx2", s(4, 2), s(0, 2), KA_X)
    A("s_load_dwordx4", s(8, 4), s(0, 2), KA_B2)
    A("s_load_dwordx2", s(12, 2), s(0, 2), KA_WS)
    A("s_lshl_b32", s(3), s(2), 8)
    A("v_add_u32", v(1), s(3), v(0))
    A("v_lshlrev_b32", v(2), 4, v(1))
    A("s_mov_b32", s(14), 59652324)
    A("v_mul_hi_u32", v(4), v(1), s(14))
    A("v_mul_u32_u24", v(4), 72, v(4))
    A("v_sub_u32", v(4), v(1), v(4))
    A("v_lshlrev_b32", v(4), 4, v(4))
    A("s_waitcnt", "lgkmcnt(0)")
    sX, sB, sO, sWS = s(16, 4), s(20, 4), s(24, 4), s(28, 4)
    srd(A, sX, s(4, 2), 2048 * 1152)
    srd(A, sB, s(8, 2), 1152)
    srd(A, sO, s(10, 2), 2048 * 1152)
    srd(A, sWS, s(12, 2), WS_SIZE)
    P = v(16, 24)
    for sp in range(4):
        A("s_mov_b32", s(32 + sp), WS_PART + sp * 2048 * 1152)
        A("buffer_load_dwordx4", P[4 * sp:4 * sp + 4], v(2), sWS, s(32 + sp), mods="offen")
    A("buffer_load_dwordx4", P[16:20], v(2), sX, 0, mods="offen")
    A("buffer_load_dwordx4", P[20:24], v(4), sB, 0, mods="offen")
    acc = v(40, 8)
    for sp in range(6):
        A("s_waitcnt", f"vmcnt({5 - sp})")
        for q in range(4):
            if sp == 0:
                A("v_lshlrev_b32", acc[2 * q], 16, P[q])
                A("v_and_b32", acc[2 * q + 1], 0xFFFF0000, P[q])
            else:
                A("v_lshlrev_b32", v(5), 16, P[4 * sp + q])
                A("v_and_b32", v(6), 0xFFFF0000, P[4 * sp + q])
                A("v_add_f32", acc[2 * q], acc[2 * q], v(5))
                A("v_add_f32", acc[2 * q + 1], acc[2 * q + 1], v(6))
    for q in range(4):
        A("v_cvt_pk_bf16_f32", v(8 + q), acc[2 * q], acc[2 * q + 1])
    A("buffer_store_dwordx4", v(8, 4), v(2), sO, 0, mods="offen")
    A.label(Lend)
    A("s_endpgm")
    return name


def main():
    A = Asm()
    hdr = open(os.path.join(os.path.dirname(__file__), "..", "cdna_kernels", NAME + ".s.ref")).read().splitlines()
    head = []
    for l in hdr:
        if l.startswith(";") and "@launch" not in l:
            head.append(l)
        elif not l.startswith(";"):
            break
    head += [
        "; @launch kernel=k1_kernel grid=(224,1,1) block=(256,1,1) lds=108800",
        "; @launch kernel=k2_kernel grid=(512,1,1) block=(256,1,1) lds=81920",
        f"; @launch kernel=k3_kernel grid=(256,1,1) block=(512,1,1) lds={K3_LDS}",
        "; @launch kernel=k4_kernel grid=(576,1,1) block=(256,1,1) lds=0",
        '.amdgcn_target "amdgcn-amd-amdhsa--gfx950"',
        ".text",
    ]
    names = [gen_k1(A), gen_k2(A), gen_k3(A), gen_k4(A)]
    body = A.render()
    out = "\n".join(head) + "\n" + body + '.section .rodata,"a"\n'
    vg = {"k1_kernel": 248, "k2_kernel": 256, "k3_kernel": 256, "k4_kernel": 48}
    for n in names:
        out += ".p2align 6\n" + kd(n, vg[n])
    path = os.environ.get("OUT") or os.path.join(os.path.dirname(__file__), "..", "cdna_kernels", NAME + ".s")
    open(path, "w").write(out)
    print("wrote", path, len(out), "bytes")


if __name__ == "__main__":
    main()
```

```python
import struct
import sys
import os

sys.path.insert(0, os.path.dirname(__file__))
from asmdsl import Asm, R, v, s, VCC, EXEC, M0

EXP = os.environ.get("EXP", "")
NAME = "parallel_sum__grouped_kv_mqa__mixer_channel_mlp__prompt"

KA_X, KA_WQ, KA_WK, KA_WV, KA_WO, KA_BX, KA_W1, KA_B1, KA_W2, KA_B2, KA_OUT, KA_DBG, KA_WS = [8 * i for i in range(13)]

WS_XNF = 0x0
WS_Y = 0x240000
WS_KV = 0x480000
WS_WQP = 0x4C0000
WS_HO = 0x600000
WS_PART = 0x1C00000
WS_SIZE = 0x10000000
HO_STRIDE = 5184 * 2


def f32bits(x):
    return struct.unpack("<I", struct.pack("<f", x))[0]


def srd(A, dst, base, nbytes):
    A("s_mov_b32", dst[0], base[0])
    A("s_and_b32", dst[1], base[1], 0xFFFF)
    A("s_mov_b32", dst[2], nbytes)
    A("s_mov_b32", dst[3], 0x00020000)


def stamp(A, i):
    if "stamp" in EXP:
        A("s_memtime", s(80 + 2 * i, 2))


def stamp_flush(A, n, wg, wave_sgpr, wave, base=0):
    if "stamp" not in EXP:
        return
    L = A.newlabel("stf")
    A("s_cmp_lg_u32", s(2), wg)
    A("s_cbranch_scc1", L)
    A("s_cmp_lg_u32", wave_sgpr, wave)
    A("s_cbranch_scc1", L)
    A("s_load_dwordx2", s(76, 2), s(0, 2), KA_DBG)
    A("s_waitcnt", "lgkmcnt(0)")
    srd(A, s(72, 4), s(76, 2), 256)
    A("v_mov_b32", v(1), 0)
    for i in range(n):
        A("v_mov_b32", v(0), s(80 + 2 * i))
        A("buffer_store_dword", v(0), v(1), s(72, 4), 0, mods=f"offen offset:{base + 4 * i}")
    A.label(L)


def kernel_header(A, name):
    A.raw(f".globl {name}")
    A.raw(".p2align 8")
    A.raw(f".type {name},@function")
    A.raw(f"{name}:")


def kd(name, vgpr=256, sgpr=102):
    acc = (vgpr + 3) // 4 * 4
    return f""".amdhsa_kernel {name}
  .amdhsa_next_free_vgpr {vgpr}
  .amdhsa_next_free_sgpr {sgpr}
  .amdhsa_accum_offset {acc}
  .amdhsa_group_segment_fixed_size 0
  .amdhsa_kernarg_size 104
  .amdhsa_user_sgpr_count 2
  .amdhsa_user_sgpr_kernarg_segment_ptr 1
  .amdhsa_system_sgpr_workgroup_id_x 1
.end_amdhsa_kernel
"""


def reduce16(A, x, t):
    for r in (8, 4, 2, 1):
        A("v_add_f32_dpp", t, x, x, mods=f"row_ror:{r} row_mask:0xf bank_mask:0xf")
        A("v_mov_b32", x, t)


def layernorm(A, Pin, Pout, F, T):
    for i in range(18):
        A("v_lshlrev_b32", F[2 * i], 16, Pin[i])
        A("v_and_b32", F[2 * i + 1], 0xFFFF0000, Pin[i])
    sm, t0, mean, acc, mb, rr = T[0], T[1], T[2], T[3], T[4], T[5]
    A("v_add_f32", sm, F[0], F[1])
    for i in range(2, 36):
        A("v_add_f32", sm, sm, F[i])
    reduce16(A, sm, t0)
    A("v_mul_f32", mean, f32bits(1.0 / 576.0), sm)
    A("v_mov_b32", acc, 0)
    for i in range(36):
        A("v_sub_f32", t0, F[i], mean)
        A("v_fmac_f32", acc, t0, t0)
    reduce16(A, acc, t0)
    A("v_mul_f32", acc, f32bits(1.0 / 576.0), acc)
    A("v_cvt_pk_bf16_f32", t0, mean, acc)
    A("v_lshlrev_b32", mb, 16, t0)
    A("v_and_b32", acc, 0xFFFF0000, t0)
    A("v_add_f32", acc, f32bits(1e-5), acc)
    A("v_cvt_pk_bf16_f32", t0, acc, acc)
    A("v_lshlrev_b32", acc, 16, t0)
    A("v_sqrt_f32", acc, acc)
    A("v_cvt_pk_bf16_f32", t0, acc, acc)
    A("v_lshlrev_b32", acc, 16, t0)
    A("v_rcp_f32", rr, acc)
    for i in range(18):
        a, b = F[2 * i], F[2 * i + 1]
        A("v_sub_f32", a, a, mb)
        A("v_sub_f32", b, b, mb)
        A("v_cvt_pk_bf16_f32", t0, a, b)
        A("v_lshlrev_b32", a, 16, t0)
        A("v_and_b32", b, 0xFFFF0000, t0)
        A("v_mul_f32", a, a, rr)
        A("v_mul_f32", b, b, rr)
        A("v_cvt_pk_bf16_f32", Pout[i], a, b)


def gen_k1(A):
    name = "k1_kernel"
    kernel_header(A, name)
    Lend = A.newlabel("k1_end")
    Lpack = A.newlabel("k1_pack")
    A("s_cmp_ge_u32", s(2), 224)
    A("s_cbranch_scc1", Lend)
    stamp(A, 0)
    A("s_load_dwordx8", s(4, 8), s(0, 2), KA_X)
    A("s_load_dwordx2", s(12, 2), s(0, 2), KA_WS)
    A("v_lshrrev_b32", v(1), 6, v(0))
    A("v_readfirstlane_b32", s(28), v(1))
    A("v_and_b32", v(1), 63, v(0))
    A("s_waitcnt", "lgkmcnt(0)")
    sX, sWS, sWK, sWQ = s(16, 4), s(20, 4), s(24, 4), s(32, 4)
    srd(A, sWS, s(12, 2), WS_SIZE)
    if "nopf" not in EXP:
        A("s_load_dwordx2", s(68, 2), s(0, 2), KA_W1)
        A("s_load_dwordx2", s(70, 2), s(0, 2), KA_W2)
        A("s_load_dwordx2", s(72, 2), s(0, 2), KA_WO)
        A("v_lshlrev_b32", v(250), 7, v(1))
        A("s_lshl_b32", s(74), s(2), 2)
        A("s_add_u32", s(74), s(74), s(28))
        A("s_lshl_b32", s(74), s(74), 1)
        A("s_waitcnt", "lgkmcnt(0)")
        for i in range(2):
            sP = s(76, 4)
            A("s_add_u32", s(75), s(74), i)
            A("s_sub_u32", s(80), s(75), 648)
            A("s_sub_u32", s(81), s(75), 1296)
            A("s_cmp_lt_u32", s(75), 1296)
            A("s_cselect_b32", s(82), s(70), s(72))
            A("s_cselect_b32", s(83), s(71), s(73))
            A("s_cselect_b32", s(84), s(80), s(81))
            A("s_cmp_lt_u32", s(75), 648)
            A("s_cselect_b32", s(82), s(68), s(82))
            A("s_cselect_b32", s(83), s(69), s(83))
            A("s_cselect_b32", s(84), s(75), s(84))
            A("s_mov_b32", s(85), 648 * 8192)
            A("s_cmp_lt_u32", s(75), 1296)
            A("s_cselect_b32", s(85), s(85), 81 * 8192)
            A("s_mov_b32", sP[0], s(82))
            A("s_and_b32", sP[1], s(83), 0xFFFF)
            A("s_mov_b32", sP[2], s(85))
            A("s_mov_b32", sP[3], 0x00020000)
            A("s_lshl_b32", s(84), s(84), 13)
            A("buffer_load_dword", v(251 + i), v(250), sP, s(84), mods="offen")
    A("s_cmp_ge_u32", s(2), 128)
    A("s_cbranch_scc1", Lpack)
    srd(A, sX, s(4, 2), 2048 * 1152)
    A("s_cmp_ge_u32", s(28), 2)
    A("s_cselect_b32", s(14), s(10), s(8))
    A("s_cselect_b32", s(15), s(11), s(9))
    srd(A, sWK, s(14, 2), 576 * 36)
    vj, vrow, vtok, vxo = v(2), v(3), v(4), v(5)
    A("v_and_b32", vj, 15, v(0))
    A("v_lshrrev_b32", vrow, 4, v(0))
    A("s_lshl_b32", s(29), s(2), 4)
    A("v_add_u32", vtok, s(29), vrow)
    A("v_mul_u32_u24", vxo, 1152, vtok)
    A("v_lshl_add_u32", vxo, vj, 3, vxo)
    PX = v(28, 18)
    for i in range(9):
        A("buffer_load_dwordx2", PX[2 * i:2 * i + 2], vxo, sX, 0, mods=f"offen offset:{i * 128}")
    vg, vgo = v(6), v(7)
    WB = 18688
    WR = 22528
    A("v_lshrrev_b32", vg, 4, v(1))
    A("s_and_b32", s(30), s(28), 1)
    A("s_lshr_b32", s(31), s(28), 1)
    A("s_mul_i32", s(31), s(31), 2 * WR)
    A("s_add_u32", s(31), s(31), WB)
    A("s_mul_i32", s(41), s(30), WR + 4)
    A("s_add_u32", s(41), s(41), s(31))
    A("v_lshlrev_b32", v(9), 4, v(1))
    for i in range(21):
        if i % 4 == 0:
            A("s_add_u32", M0, s(41), i * 1024)
            A("s_mov_b32", s(42), i * 1024)
        A("buffer_load_dwordx4", v(9), sWK, s(42), mods=f"offen offset:{(i & 3) * 1024} lds")
    A("s_lshl_b32", s(30), s(30), 4)
    A("v_lshrrev_b32", v(8), 2, vj)
    A("v_lshl_add_u32", vgo, vg, 3, v(8))
    A("v_mul_u32_u24", vgo, 36, vgo)
    A("v_and_b32", v(8), 1, v(8))
    A("v_mul_u32_u24", v(8), WR + 4, v(8))
    A("v_add_u32", vgo, vgo, v(8))
    A("v_and_b32", v(8), 3, vj)
    A("v_lshl_add_u32", vgo, v(8), 3, vgo)
    A("s_lshl_b32", s(43), s(30), 1)
    A("s_add_u32", s(43), s(43), s(31))
    A("v_add_u32", vgo, s(43), vgo)
    G = v(100, 144)
    F = v(48, 36)
    T = v(10, 8)
    PN = v(84, 16 + 2)
    PN = v(28, 18)
    stamp(A, 1)
    A("s_waitcnt", "vmcnt(21)")
    stamp(A, 2)
    layernorm(A, PX, PN, F, T)
    for i in range(9):
        A("s_mov_b32", s(48 + i), WS_XNF + i * 4096)
    va, vb = v(18), v(19)
    A("v_lshrrev_b32", va, 5, vtok)
    A("v_mul_u32_u24", va, 36864, va)
    A("v_lshrrev_b32", vb, 2, vj)
    A("v_lshl_add_u32", va, vb, 10, va)
    A("v_bfe_u32", vb, vj, 1, 1)
    A("v_lshlrev_b32", vb, 5, vb)
    A("v_and_b32", v(20), 31, vtok)
    A("v_add_u32", vb, vb, v(20))
    A("v_lshl_add_u32", va, vb, 4, va)
    A("v_and_b32", vb, 1, vj)
    A("v_lshl_add_u32", va, vb, 3, va)
    for i in range(9):
        A("buffer_store_dwordx2", PN[2 * i:2 * i + 2], va, sWS, s(48 + i), mods="offen")
    vl = v(21)
    A("v_mul_u32_u24", vl, 1168, vrow)
    A("v_lshl_add_u32", vl, vj, 3, vl)
    for i in range(9):
        A("ds_write_b64", vl, PN[2 * i:2 * i + 2], mods=f"offset:{i * 128}")
    PY = v(84, 16)
    PY = [v(84 + i) for i in range(16)] + [v(22), v(23)]
    PYr = v(84, 16)
    class _P:
        def __getitem__(self, i):
            return PY[i]
    layernorm(A, PN, _P(), F, T)
    A("v_lshrrev_b32", va, 4, vtok)
    A("v_mul_u32_u24", va, 18432, va)
    A("v_lshrrev_b32", vb, 1, vj)
    A("v_lshl_add_u32", va, vb, 8, va)
    A("v_and_b32", vb, 15, vtok)
    A("v_lshl_add_u32", va, vb, 4, va)
    A("v_and_b32", vb, 1, vj)
    A("v_lshl_add_u32", va, vb, 3, va)
    for i in range(5):
        A("s_mov_b32", s(64 + i), WS_Y + i * 4096)
    for i in range(8):
        A("buffer_store_dwordx2", PYr[2 * i:2 * i + 2], va, sWS, s(64 + i // 2), mods=f"offen offset:{(i & 1) * 2048}")
    A("buffer_store_dwordx2", v(22, 2), va, sWS, s(68), mods="offen")
    stamp(A, 3)
    A("s_waitcnt", "vmcnt(18) lgkmcnt(0)")
    A("s_barrier")
    for ks in range(18):
        for q in range(2):
            A("ds_read_b64_tr_b16", G[8 * ks + 2 * q:8 * ks + 2 * q + 2], vgo, mods=f"offset:{ks * 1152 + q * 144}")
    A("v_mul_u32_u24", vl, 1168, vj)
    A("v_lshl_add_u32", vl, vg, 4, vl)
    XF = v(28, 72)
    for ks in range(18):
        A("ds_read_b128", XF[4 * ks:4 * ks + 4], vl, mods=f"offset:{ks * 64}")
    stamp(A, 4)
    D = v(12, 4)
    for r in range(4):
        A("v_mov_b32", D[r], 0)
    A("s_waitcnt", "lgkmcnt(0)")
    LV = A.newlabel("k1_v")
    A("s_lshr_b32", s(58), s(2), 1)
    A("s_lshl_b32", s(58), s(58), 12)
    A("s_add_u32", s(58), s(58), WS_KV)
    A("s_and_b32", s(59), s(2), 1)
    A("s_cmp_ge_u32", s(28), 2)
    A("s_cbranch_scc1", LV)
    for ks in range(18):
        A("v_mfma_f32_16x16x32_bf16", D, G[8 * ks:8 * ks + 4], XF[4 * ks:4 * ks + 4], D)
    A("s_lshl_b32", s(60), s(30), 6)
    A("s_add_u32", s(58), s(58), s(60))
    A("s_lshl_b32", s(60), s(59), 8)
    A("s_add_u32", s(58), s(58), s(60))
    A("v_lshrrev_b32", va, 1, vg)
    A("v_lshlrev_b32", va, 5, va)
    A("v_add_u32", va, va, vj)
    A("v_lshlrev_b32", va, 4, va)
    A("v_and_b32", vb, 1, vg)
    A("v_lshl_add_u32", va, vb, 3, va)
    A("v_cmp_eq_u32", VCC, 0, vg)
    A("s_cmp_eq_u32", s(28), 1)
    A("s_cselect_b64", s(62, 2), VCC, 0)
    A("s_cselect_b64", s(64, 2), -1, 0)
    A("s_andn2_b64", s(66, 2), s(64, 2), s(62, 2))
    A("v_cndmask_b32", D[0], D[0], 0, s(66, 2))
    A("v_cndmask_b32", D[1], D[1], 0, s(66, 2))
    A("v_cndmask_b32", D[2], D[2], 0, s(64, 2))
    A("v_cndmask_b32", D[3], D[3], 0, s(64, 2))
    A("v_cndmask_b32", D[2], D[2], 1.0, s(62, 2))
    A("v_cvt_pk_bf16_f32", v(16), D[0], D[1])
    A("v_cvt_pk_bf16_f32", v(17), D[2], D[3])
    A("buffer_store_dwordx2", v(16, 2), va, sWS, s(58), mods="offen")
    stamp(A, 5)
    A("s_waitcnt", "vmcnt(0) lgkmcnt(0)")
    stamp(A, 6)
    A("s_waitcnt", "lgkmcnt(0)")
    stamp_flush(A, 7, 37, s(28), 0)
    A("s_endpgm")
    A.label(LV)
    for ks in range(18):
        A("v_mfma_f32_16x16x32_bf16", D, XF[4 * ks:4 * ks + 4], G[8 * ks:8 * ks + 4], D)
    A("s_lshl_b32", s(60), s(59), 10)
    A("s_add_u32", s(58), s(58), s(60))
    A("s_add_u32", s(58), s(58), 2048)
    A("s_lshl_b32", s(60), s(30), 4)
    A("s_add_u32", s(58), s(58), s(60))
    A("v_and_b32", va, 1, vg)
    A("v_lshlrev_b32", va, 5, va)
    A("v_add_u32", va, va, vj)
    A("v_lshlrev_b32", va, 4, va)
    A("v_lshrrev_b32", vb, 1, vg)
    A("v_lshl_add_u32", va, vb, 3, va)
    A("v_cmp_eq_u32", VCC, 2, vj)
    A("s_cmp_eq_u32", s(28), 3)
    A("s_cselect_b64", s(62, 2), VCC, 0)
    A("v_cmp_lt_u32", VCC, 2, vj)
    A("s_cselect_b64", s(64, 2), VCC, 0)
    for r in range(4):
        A("v_cndmask_b32", D[r], D[r], 1.0, s(62, 2))
        A("v_cndmask_b32", D[r], D[r], 0, s(64, 2))
    A("v_cvt_pk_bf16_f32", v(16), D[0], D[1])
    A("v_cvt_pk_bf16_f32", v(17), D[2], D[3])
    A("buffer_store_dwordx2", v(16, 2), va, sWS, s(58), mods="offen")
    A("s_endpgm")
    A.label(Lpack)
    srd(A, sWQ, s(6, 2), 576 * 1152 + 64)
    A("s_sub_u32", s(36), s(2), 128)
    A("s_lshl_b32", s(36), s(36), 2)
    A("s_add_u32", s(36), s(36), s(28))
    A("s_mul_i32", s(37), s(36), 43691)
    A("s_lshr_b32", s(37), s(37), 19)
    A("s_mul_i32", s(38), s(37), 12)
    A("s_sub_u32", s(38), s(36), s(38))
    A("s_mul_i32", s(38), s(38), 3)
    vi, vh, vr, vs = v(2), v(3), v(4), v(5)
    A("v_and_b32", vi, 31, v(1))
    A("v_bfe_u32", vh, vi, 2, 1)
    A("v_lshrrev_b32", vr, 3, vi)
    A("v_lshlrev_b32", vr, 2, vr)
    A("v_and_b32", v(6), 3, vi)
    A("v_or_b32", vr, vr, v(6))
    A("v_lshl_add_u32", vs, vh, 3, vr)
    A("v_and_b32", v(6), 8, vr)
    A("v_add_u32", vs, vs, v(6))
    A("v_lshrrev_b32", v(6), 5, v(1))
    A("v_mul_u32_u24", v(7), 8 * 1152, v(6))
    A("v_lshl_add_u32", v(7), vs, 1, v(7))
    A("v_mov_b32", v(9), 0x7FF00000)
    A("v_cmp_gt_u32", VCC, 18, vs)
    A("v_cndmask_b32", v(7), v(9), v(7), VCC)
    A("s_mul_i32", s(39), s(38), 16 * 1152)
    A("s_mul_i32", s(40), s(37), 36)
    A("s_add_u32", s(39), s(39), s(40))
    G = v(16, 24)
    for f in range(3):
        for half in range(3):
            A("s_add_u32", s(41 + half), s(39), f * 16 * 1152 + half * 3456)
        for j in range(8):
            A("buffer_load_ushort", G[8 * f + j], v(7), sWQ, s(41 + j // 3), mods=f"offen offset:{(j % 3) * 1152}")
    A("s_waitcnt", "vmcnt(0)")
    for f in range(3):
        for q in range(4):
            A("v_lshl_or_b32", G[8 * f + q], G[8 * f + 2 * q + 1], 16, G[8 * f + 2 * q])
    A("s_mul_i32", s(40), s(37), 36)
    A("s_add_u32", s(40), s(40), s(38))
    A("s_mul_i32", s(40), s(40), 576)
    A("s_add_u32", s(40), s(40), WS_WQP)
    A("v_mul_u32_u24", v(8), 288, v(6))
    A("v_lshl_add_u32", v(8), vi, 4, v(8))
    A("v_cmp_gt_u32", VCC, 18, vi)
    A("v_cndmask_b32", v(8), v(9), v(8), VCC)
    for f in range(3):
        A("buffer_store_dwordx4", G[8 * f:8 * f + 4], v(8), sWS, s(40), mods=f"offen offset:{f * 576}")
    A.label(Lend)
    A("s_endpgm")
    return name


STAGE = 26624


def gemm_body(A, xstride, wstride, sXsrd, sWsrd, sXoff, sWoff, sN, sWave, init_acc, S0):
    ACC = v(0, 144)
    WF = v(144, 36)
    WX = v(180, 8)
    XF = [v(188, 16), v(204, 16)]
    vDX = v(220, 2)
    vDW = v(222, 5)
    vAX, vAW0, vAW1 = v(227), v(228), v(229)
    vCX, vCW0, vCW1 = v(230), v(231), v(232)
    vt = [v(233 + i) for i in range(8)]
    vtid = v(241)
    sP = [s(S0 + i) for i in range(7)]
    sStR, sStW, sK, sT0, sT1 = s(S0 + 7), s(S0 + 8), s(S0 + 9), s(S0 + 10), s(S0 + 11)
    A("v_mov_b32", vtid, v(0))
    lane = vt[0]
    A("v_and_b32", lane, 63, vtid)
    for i in range(2):
        A("s_lshl_b32", sT0, sWave, 1)
        A("s_add_u32", sT0, sT0, i)
        A("s_mul_i32", sT1, sT0, xstride)
        A("v_lshlrev_b32", vt[1], 4, lane)
        A("v_add_u32", vDX[i], sT1, vt[1])
        A("s_lshl_b32", sP[i], sT0, 10)
    for q in range(5):
        if q < 4:
            A("s_lshl_b32", sT0, sWave, 6)
            A("s_add_u32", sT0, sT0, 256 * q)
        else:
            A("s_lshl_b32", sT0, sWave, 5)
            A("s_add_u32", sT0, sT0, 1024)
        A("v_add_u32", vt[1], sT0, lane)
        A("v_mul_u32_u24", vt[2], 1821, vt[1])
        A("v_lshrrev_b32", vt[2], 16, vt[2])
        A("v_mul_u32_u24", vt[3], 36, vt[2])
        A("v_sub_u32", vt[3], vt[1], vt[3])
        A("v_lshrrev_b32", vt[4], 2, vt[2])
        A("v_and_b32", vt[4], 2, vt[4])
        A("v_xor_b32", vt[3], vt[3], vt[4])
        A("s_mov_b32", sT1, wstride)
        A("v_mul_lo_u32", vt[2], vt[2], sT1)
        A("v_lshl_add_u32", vDW[q], vt[3], 4, vt[2])
        A("s_lshl_b32", sP[2 + q], sT0, 4)
        A("s_add_u32", sP[2 + q], sP[2 + q], 8192)
    m_, g_ = vt[1], vt[2]
    A("v_and_b32", m_, 15, lane)
    A("v_lshrrev_b32", g_, 4, lane)
    A("s_lshr_b32", sT0, sWave, 1)
    A("s_lshl_b32", sT0, sT0, 12)
    A("v_lshlrev_b32", vt[3], 4, lane)
    A("v_add_u32", vAX, sT0, vt[3])
    A("v_lshrrev_b32", vt[3], 2, m_)
    A("v_lshl_add_u32", vt[3], g_, 3, vt[3])
    A("v_mul_u32_u24", vt[3], 36 * 16, vt[3])
    A("v_and_b32", vt[4], 3, lane)
    A("v_lshl_add_u32", vt[3], vt[4], 3, vt[3])
    A("s_and_b32", sT0, sWave, 1)
    A("s_mul_i32", sT1, sT0, 18 * 16)
    A("s_add_u32", sT1, sT1, 8192)
    A("v_add_u32", vt[3], sT1, vt[3])
    A("v_and_b32", vt[4], 1, g_)
    A("v_lshlrev_b32", vt[4], 5, vt[4])
    A("v_add_u32", vt[5], vt[3], vt[4])
    A("v_sub_u32", vt[6], vt[3], vt[4])
    A("s_cmp_eq_u32", sT0, 0)
    A("s_cselect_b64", s(S0 + 12, 2), -1, 0)
    A("v_cndmask_b32", vAW0, vt[6], vt[5], s(S0 + 12, 2))
    A("v_cndmask_b32", vAW1, vt[5], vt[6], s(S0 + 12, 2))

    def dma_stage(sStage):
        if "nodma" in EXP:
            return
        for i in range(2):
            A("s_add_u32", M0, sStage, sP[i])
            A("buffer_load_dwordx4", vDX[i], sXsrd, sXoff, mods="offen lds")
        for q in range(4):
            A("s_add_u32", M0, sStage, sP[2 + q])
            A("buffer_load_dwordx4", vDW[q], sWsrd, sWoff, mods="offen lds")
        A("s_add_u32", M0, sStage, sP[6])
        A("s_mov_b32", "exec_hi", 0)
        A("buffer_load_dwordx4", vDW[4], sWsrd, sWoff, mods="offen lds")
        A("s_mov_b64", EXEC, -1)
        A("s_add_u32", sXoff, sXoff, 1024)
        A("s_add_u32", sWoff, sWoff, 32 * wstride)

    def wreg(nt, par):
        if nt >= 7 and par:
            return WX[4 * (nt - 7):4 * (nt - 7) + 4]
        return WF[4 * nt:4 * nt + 4]

    def read_w(nt, par):
        a = vCW1 if nt & 1 else vCW0
        w = wreg(nt, par)
        A("ds_read_b64_tr_b16", w[0:2], a, mods=f"offset:{nt * 32}")
        A("ds_read_b64_tr_b16", w[2:4], a, mods=f"offset:{nt * 32 + 2304}")

    def read_x(mt, par):
        A("ds_read_b128", XF[par][4 * mt:4 * mt + 4], vCX, mods=f"offset:{mt * 1024}")

    def set_cur(sStage):
        A("v_add_u32", vCX, sStage, vAX)
        A("v_add_u32", vCW0, sStage, vAW0)
        A("v_add_u32", vCW1, sStage, vAW1)

    init_acc(ACC, 0)
    for st in range(3):
        A("s_mov_b32", sT0, st * STAGE)
        dma_stage(sT0)
    init_acc(ACC, 1)
    A("s_waitcnt", "vmcnt(14)")
    A("s_barrier")
    stamp(A, 1)
    A("s_mov_b32", sStR, 0)
    set_cur(sStR)
    for mt in range(4):
        read_x(mt, 0)
    for nt in range(9):
        read_w(nt, 0)
    A("s_mov_b32", sStR, STAGE)
    A("s_mov_b32", sStW, 0)
    A("s_mov_b32", sK, 0)
    Lloop = A.newlabel("gemm_loop")
    Ldone = A.newlabel("gemm_done")
    A.label(Lloop)
    for par in range(2):
        Lw0 = A.newlabel("gw0")
        Lw1 = A.newlabel("gw1")
        Lnd = A.newlabel("gnd")
        A("s_add_u32", sT0, sK, 2)
        A("s_cmp_lt_u32", sT0, sN)
        A("s_cbranch_scc1", Lw0)
        A("s_waitcnt", "vmcnt(0) lgkmcnt(0)")
        A("s_branch", Lw1)
        A.label(Lw0)
        A("s_waitcnt", "vmcnt(7) lgkmcnt(0)")
        A.label(Lw1)
        A("s_barrier")
        set_cur(sStR)
        A("s_add_u32", sT0, sK, 3)
        A("s_cmp_lt_u32", sT0, sN)
        A("s_cbranch_scc0", Lnd)
        dma_stage(sStW)
        A.label(Lnd)
        np_ = 1 - par
        if "nocomp" not in EXP:
            read_w(7, np_)
            read_w(8, np_)
        for nt in range(9 if "nocomp" not in EXP else 0):
            w = wreg(nt, par)
            for mt in range(4):
                acc = ACC[(nt * 4 + mt) * 4:(nt * 4 + mt) * 4 + 4]
                A("v_mfma_f32_16x16x32_bf16", acc, w, XF[par][4 * mt:4 * mt + 4], acc)
            if nt < 7:
                read_w(nt, np_)
            if nt < 4:
                read_x(nt, np_)
        A("s_mov_b32", sStW, sStR)
        A("s_add_u32", sStR, sStR, STAGE)
        A("s_cmp_eq_u32", sStR, 3 * STAGE)
        A("s_cselect_b32", sStR, 0, sStR)
        A("s_add_u32", sK, sK, 1)
        A("s_cmp_lt_u32", sK, sN)
        if par == 0:
            A("s_cbranch_scc0", Ldone)
        else:
            A("s_cbranch_scc1", Lloop)
    A.label(Ldone)
    A("s_waitcnt", "lgkmcnt(0)")
    return dict(ACC=ACC, vtid=vtid, vt=vt, tmp=v(144, 76))


C0 = -2.0 * 0.7978845608028654 * 1.4426950408889634
C1 = C0 * 0.044715


def gen_gemm1(A):
    stamp(A, 0)
    A("s_load_dwordx4", s(4, 4), s(0, 2), KA_W1)
    A("s_load_dwordx2", s(12, 2), s(0, 2), KA_WS)
    A("v_lshrrev_b32", v(1), 6, v(0))
    A("v_readfirstlane_b32", s(28), v(1))
    A("s_sub_u32", s(3), s(2), 256)
    A("s_lshr_b32", s(29), s(3), 5)
    A("s_lshl_b32", s(29), s(29), 1)
    A("s_bfe_u32", s(30), s(3), (1 << 16) | 2)
    A("s_add_u32", s(29), s(29), s(30))
    A("s_and_b32", s(30), s(3), 3)
    A("s_lshl_b32", s(30), s(30), 2)
    A("s_bfe_u32", s(31), s(3), (2 << 16) | 3)
    A("s_add_u32", s(30), s(30), s(31))
    A("s_waitcnt", "lgkmcnt(0)")
    sWS, sW, sB = s(16, 4), s(20, 4), s(24, 4)
    srd(A, sWS, s(12, 2), WS_SIZE)
    srd(A, sW, s(4, 2), 576 * 9216)
    srd(A, sB, s(6, 2), 4608 * 2)
    sXoff, sWoff, sN = s(32), s(33), s(34)
    A("s_mul_i32", sXoff, s(29), 8 * 18432)
    A("s_add_u32", sXoff, sXoff, WS_Y)
    A("s_mul_i32", sWoff, s(30), 576)
    A("s_mov_b32", sN, 18)

    def init_acc(ACC, phase):
        vt = [v(234 + i) for i in range(12)]
        BT = v(144, 18)
        if phase == 1:
            A("s_waitcnt", "vmcnt(21)")
            for nt in range(9):
                a0 = ACC[nt * 16:nt * 16 + 4]
                A("v_lshlrev_b32", a0[0], 16, BT[2 * nt])
                A("v_and_b32", a0[1], 0xFFFF0000, BT[2 * nt])
                A("v_lshlrev_b32", a0[2], 16, BT[2 * nt + 1])
                A("v_and_b32", a0[3], 0xFFFF0000, BT[2 * nt + 1])
                for mt in range(1, 4):
                    for r in range(4):
                        A("v_mov_b32", ACC[nt * 16 + mt * 4 + r], a0[r])
            return
        A("v_bfe_u32", vt[8], v(241), 4, 2)
        A("v_lshlrev_b32", vt[8], 3, vt[8])
        A("s_and_b32", s(35), s(28), 1)
        A("s_mul_i32", s(35), s(35), 288)
        A("s_add_u32", s(35), s(35), sWoff_save)
        for nt in range(9):
            A("buffer_load_dwordx2", BT[2 * nt:2 * nt + 2], vt[8], sB, s(35), mods=f"offen offset:{nt * 32}")

    sWoff_save = s(36)
    A("s_mov_b32", sWoff_save, sWoff)
    g = gemm_body(A, 18432, 9216, sWS, sW, sXoff, sWoff, sN, s(28), init_acc, 40)
    ACC, vtid = g["ACC"], g["vtid"]
    stamp(A, 2)
    A("s_mov_b32", s(60), f32bits(C1))
    A("s_mov_b32", s(61), f32bits(C0))
    t0, t1 = v(144), v(145)
    va, vb, vm, vg = v(146), v(147), v(148), v(149)
    PK = v(152, 4)
    A("v_and_b32", vm, 15, vtid)
    A("v_bfe_u32", vg, vtid, 4, 2)
    A("s_and_b32", s(62), s(28), 1)
    A("s_lshl_b32", s(63), s(62), 1)
    A("v_and_b32", t0, 1, vg)
    A("v_lshrrev_b32", t1, 1, vg)
    A("v_lshl_add_u32", t0, t0, 1, t1)
    A("v_add_u32", t0, s(63), t0)
    A("v_lshlrev_b32", t0, 8, t0)
    A("v_lshl_add_u32", va, vm, 4, t0)
    A("v_add_u32", t1, s(63), t1)
    A("v_lshlrev_b32", t1, 8, t1)
    A("v_lshl_add_u32", vb, vm, 4, t1)
    A("v_and_b32", t0, 1, vg)
    A("v_lshl_add_u32", vb, t0, 3, vb)
    A("s_lshr_b32", s(63), s(28), 1)
    A("s_lshl_b32", s(63), s(63), 2)
    A("s_lshl_b32", s(35), s(29), 3)
    A("s_add_u32", s(35), s(35), s(63))
    A("s_mul_i32", s(35), s(35), 162)
    A("s_mul_i32", s(63), s(30), 9)
    A("s_add_u32", s(35), s(35), s(63))
    A("s_lshl_b32", s(62), s(62), 2)
    A("s_add_u32", s(35), s(35), s(62))
    A("s_lshl_b32", s(35), s(35), 10)
    A("s_add_u32", s(35), s(35), WS_HO)
    for mt in range(4):
        A("s_add_u32", s(64 + mt), s(35), mt * 162 * 1024)
        A("s_add_u32", s(68 + mt), s(35), mt * 162 * 1024 + 4096)

    cC1, cC0, cONE = v(156, 2), v(158, 2), v(160, 2)
    TT = [v(162, 2), v(164, 2)]

    def gelu4(a):
        for h in range(2):
            x2, T2 = a[2 * h:2 * h + 2], TT[h]
            A("v_pk_mul_f32", T2, x2, x2)
            A("v_pk_fma_f32", T2, T2, cC1, cC0)
            A("v_pk_mul_f32", T2, T2, x2)
        for h in range(2):
            for e in range(2):
                A("v_exp_f32", TT[h][e], TT[h][e])
        for h in range(2):
            A("v_pk_add_f32", TT[h], TT[h], cONE)
        for h in range(2):
            for e in range(2):
                A("v_rcp_f32", TT[h][e], TT[h][e])
        for h in range(2):
            A("v_pk_mul_f32", a[2 * h:2 * h + 2], a[2 * h:2 * h + 2], TT[h])

    for e in range(2):
        A("v_mov_b32", cC1[e], s(60))
        A("v_mov_b32", cC0[e], s(61))
        A("v_mov_b32", cONE[e], 1.0)
    for mt in range(4):
        for p in range(5):
            tiles = [2 * p, 2 * p + 1] if p < 4 else [8]
            for ti, nt in enumerate(tiles):
                a = ACC[(nt * 4 + mt) * 4:(nt * 4 + mt) * 4 + 4]
                gelu4(a)
                A("v_cvt_pk_bf16_f32", PK[2 * ti], a[0], a[1])
                A("v_cvt_pk_bf16_f32", PK[2 * ti + 1], a[2], a[3])
            if p < 4:
                A("v_permlane16_swap_b32", PK[0], PK[2])
                A("v_permlane16_swap_b32", PK[1], PK[3])
                A("buffer_store_dwordx4", PK, va, sWS, s(64 + mt), mods=f"offen offset:{p * 1024}")
            else:
                A("buffer_store_dwordx2", PK[0:2], vb, sWS, s(68 + mt), mods="offen")
    stamp(A, 3)
    A("s_waitcnt", "vmcnt(0) lgkmcnt(0)")
    stamp(A, 4)
    A("s_waitcnt", "lgkmcnt(0)")
    stamp_flush(A, 5, 256 + 37, s(28), 0, base=32)
    A("s_endpgm")


QSCALE = (18 ** -0.5) * 1.4426950408889634


def gen_attn(A):
    stamp(A, 0)
    A("s_load_dwordx2", s(12, 2), s(0, 2), KA_WS)
    A("v_lshrrev_b32", v(1), 6, v(0))
    A("v_readfirstlane_b32", s(28), v(1))
    A("s_and_b32", s(29), s(2), 7)
    A("s_lshl_b32", s(29), s(29), 2)
    A("s_bfe_u32", s(30), s(2), (2 << 16) | 3)
    A("s_add_u32", s(29), s(29), s(30))
    A("s_lshr_b32", s(30), s(2), 5)
    A("s_lshl_b32", s(30), s(30), 2)
    A("s_add_u32", s(30), s(30), s(28))
    A("s_waitcnt", "lgkmcnt(0)")
    sWS = s(16, 4)
    srd(A, sWS, s(12, 2), WS_SIZE)
    if "noprio" not in EXP:
        A("s_setprio", 3)
    vl16 = v(2)
    A("v_and_b32", v(1), 63, v(0))
    A("v_lshlrev_b32", vl16, 4, v(1))
    CH = 16384
    sKV = s(32)
    sPw = s(33)
    A("s_lshl_b32", sPw, s(28), 12)
    A("s_add_u32", sKV, sPw, WS_KV)

    def dma_chunk(sBuf):
        for i in range(4):
            A("s_add_u32", M0, sBuf, sPw)
            A("buffer_load_dwordx4", vl16, sWS, sKV, mods=f"offen offset:{i * 1024} lds")
        A("s_add_u32", sKV, sKV, CH)

    QA = [v(20, 16), v(36, 16)]
    BF = v(52, 48)
    AF = v(100, 144)
    XB = 32768
    vAo = v(244)
    A("s_mul_i32", s(36), s(30), 36 * 576)
    A("s_add_u32", s(36), s(36), WS_WQP)
    A("v_and_b32", v(245), 31, v(1))
    A("v_lshrrev_b32", v(246), 5, v(1))
    A("v_mul_u32_u24", v(246), 288, v(246))
    A("v_lshl_add_u32", vAo, v(245), 4, v(246))
    A("v_mov_b32", v(246), 0x7FF00000)
    A("v_cmp_gt_u32", VCC, 18, v(245))
    A("v_cndmask_b32", vAo, v(246), vAo, VCC)
    A("s_lshr_b32", s(50), s(28), 1)
    A("s_lshl_b32", s(37), s(29), 1)
    A("s_add_u32", s(37), s(37), s(50))
    A("s_mul_i32", s(37), s(37), 36864)
    A("s_and_b32", s(50), s(28), 1)
    A("s_mul_i32", s(50), s(50), 6 * 1024)
    A("s_add_u32", s(37), s(37), s(50))
    A("s_add_u32", s(37), s(37), WS_XNF)
    A("s_add_u32", s(38), s(37), 4096)
    A("s_mul_i32", s(51), s(28), 6 * 1024)
    A("s_add_u32", s(51), s(51), XB)

    def dma_x(ph):
        for i in range(6):
            if i in (0, 4):
                A("s_add_u32", M0, s(51), (ph & 1) * 24576 + (4096 if i else 0))
            A("buffer_load_dwordx4", vl16, sWS, s(38 if i >= 4 else 37), mods=f"offen offset:{(i & 3) * 1024} lds")
        A("s_add_u32", s(37), s(37), 12 * 1024)
        A("s_add_u32", s(38), s(38), 12 * 1024)

    def load_a(ph):
        for i in range(12):
            if i % 6 == 0 and (ph or i):
                A("s_add_u32", s(36), s(36), 6 * 576)
            A("buffer_load_dwordx4", AF[48 * ph + 4 * i:48 * ph + 4 * i + 4], vAo, sWS, s(36),
              mods=f"offen offset:{(i % 6) * 576}")

    A("v_add_u32", v(3), XB, vl16)
    dma_x(0)
    load_a(0)
    dma_x(1)
    load_a(1)
    A("s_mov_b32", s(35), 0)
    dma_chunk(s(35))
    A("s_mov_b32", s(35), CH)
    dma_chunk(s(35))
    load_a(2)
    for ct in range(2):
        for r in range(16):
            A("v_mov_b32", QA[ct][r], 0)
    for ph in range(3):
        A("s_waitcnt", f"vmcnt({(38, 26, 0)[ph]})")
        A("s_barrier")
        for half in range(2):
            for i in range(6):
                for ct in range(2):
                    o = (ph & 1) * 24576 + (ct * 12 + half * 6 + i) * 1024
                    A("ds_read_b128", BF[8 * i + 4 * ct:8 * i + 4 * ct + 4], v(3), mods=f"offset:{o}")
            for i in range(6):
                A("s_waitcnt", f"lgkmcnt({10 - 2 * i})")
                ks = half * 6 + i
                for ct in range(2):
                    A("v_mfma_f32_32x32x16_bf16", QA[ct], AF[48 * ph + 4 * ks:48 * ph + 4 * ks + 4],
                      BF[8 * i + 4 * ct:8 * i + 4 * ct + 4], QA[ct])
        if ph == 0:
            A("s_barrier")
            dma_x(2)
    stamp(A, 1)
    QF = [[v(4, 4), v(8, 4)], [v(12, 4), v(16, 4)]]
    A("s_mov_b32", s(39), f32bits(QSCALE))
    for ct in range(2):
        for r in range(16):
            A("v_mul_f32", QA[ct][r], s(39), QA[ct][r])
        for f in range(2):
            for q in range(4):
                A("v_cvt_pk_bf16_f32", QF[ct][f][q], QA[ct][8 * f + 2 * q], QA[ct][8 * f + 2 * q + 1])
    KF = [[v(20, 4), v(24, 4)], [v(28, 4), v(32, 4)]]
    VF = [[v(36, 4), v(40, 4)], [v(44, 4), v(48, 4)]]
    PK = [v(52, 8), v(60, 8)]
    O = [v(68, 16), v(84, 16)]
    S = [[v(100, 16), v(116, 16)], [v(132, 16), v(148, 16)]]
    Mx = [v(164), v(165)]
    TM = [v(166), v(167)]
    t1, t2, t3, t4 = v(168), v(169), v(170), v(171)
    vCur, vNxt = v(172), v(173)
    sT, sLow, sC, sB0, sB1, sB2, sBig = s(40), s(41), s(42), s(43), s(44), s(45), s(53)
    resc = []

    def rd_k(buf, addr, tile):
        A("ds_read_b128", KF[buf][0], addr, mods=f"offset:{tile * 4096}")
        A("ds_read_b128", KF[buf][1], addr, mods=f"offset:{tile * 4096 + 1024}")

    def rd_v(buf, addr, tile):
        A("ds_read_b128", VF[buf][0], addr, mods=f"offset:{tile * 4096 + 2048}")
        A("ds_read_b128", VF[buf][1], addr, mods=f"offset:{tile * 4096 + 3072}")

    def qk(sb, kb, ct, f):
        A("v_mfma_f32_32x32x16_bf16", S[sb][ct], KF[kb][f], QF[ct][f], 0 if f == 0 else S[sb][ct])

    def tile_max(Sc):
        for ct in range(2):
            A("v_max3_f32", TM[ct], Sc[ct][0], Sc[ct][1], Sc[ct][2])
            for r in range(3, 15, 2):
                A("v_max3_f32", TM[ct], TM[ct], Sc[ct][r], Sc[ct][r + 1])
            A("v_max_f32", TM[ct], TM[ct], Sc[ct][15])

    def rescale(cur, from_l):
        for ct in range(2):
            src = O[ct][10] if from_l else TM[ct]
            A("v_mov_b32", t1, src)
            A("v_mov_b32", t2, src)
            A("v_permlane32_swap_b32", t1, t2)
            if from_l:
                A("v_log_f32", t1, t1)
                A("v_max_f32", t1, 0, t1)
            else:
                A("v_max_f32", t1, t1, t2)
                A("v_max_f32", t1, sLow, t1)
            A("v_add_f32", t1, Mx[ct], t1)
            A("v_and_b32", t1, 0xFFFF0000, t1)
            A("v_sub_f32", t2, t1, Mx[ct])
            A("v_mov_b32", Mx[ct], t1)
            A("v_xor_b32", t3, 0x80000000, t1)
            A("v_lshrrev_b32", QF[ct][1][1], 16, t3)
            for r in range(16):
                A("v_sub_f32", S[cur][ct][r], S[cur][ct][r], t2)
            A("v_sub_f32", t3, 0, t2)
            A("v_min_f32", t3, 0, t3)
            A("v_exp_f32", t3, t3)
            for r in range(16):
                A("v_mul_f32", O[ct][r], O[ct][r], t3)

    def attn_pass(safe):
        for ct in range(2):
            for r in range(16):
                A("v_mov_b32", O[ct][r], 0)
            A("v_mov_b32", Mx[ct], 0)
            A("v_mov_b32", QF[ct][1][1], 0)
        A("s_mov_b32", sT, 0xFF800000)
        A("s_mov_b32", sLow, 0xFF800000)
        A("s_mov_b32", sBig, f32bits(2.0 ** 24))
        A("s_waitcnt", "vmcnt(0)")
        A("s_barrier")
        A("v_mov_b32", vCur, vl16)
        A("v_add_u32", vNxt, CH, vl16)
        A("s_mov_b32", sB0, 0)
        A("s_mov_b32", sB1, CH)
        A("s_mov_b32", sB2, 2 * CH)
        rd_k(0, vCur, 0)
        rd_k(1, vCur, 1)
        rd_v(0, vCur, 0)
        A("s_waitcnt", "lgkmcnt(0)")
        for ct in range(2):
            qk(0, 0, ct, 0)
            qk(0, 0, ct, 1)
        if not safe:
            tile_max(S[0])
            rescale(0, False)
        A("s_mov_b32", sC, 0)
        stamp(A, 2)
        Lloop = A.newlabel("att_loop")
        A.label(Lloop)
        Lnd = A.newlabel("att_nd")
        A("s_waitcnt", "vmcnt(0) lgkmcnt(0)")
        A("s_barrier")
        A("s_cmp_lt_u32", sC, 14)
        A("s_cbranch_scc0", Lnd)
        dma_chunk(sB2)
        A.label(Lnd)
        if not safe:
            A("v_max_f32", t1, O[0][10], O[1][10])
            A("v_cmp_lt_f32", VCC, sBig, t1)
            Lr, Lb = A.newlabel("att_resc"), A.newlabel("att_back")
            A("s_cbranch_vccnz", Lr)
            A.label(Lb)
            resc.append((Lr, Lb, 0, True))
        for i in range(4):
            cur, nx = i & 1, 1 - (i & 1)
            Sc = S[cur]
            if safe:
                tile_max(Sc)
                A("v_max_f32", t1, TM[0], TM[1])
                A("v_cmp_lt_f32", VCC, sT, t1)
                Lr, Lb = A.newlabel("att_resc"), A.newlabel("att_back")
                A("s_cbranch_vccnz", Lr)
                A.label(Lb)
                resc.append((Lr, Lb, cur, False))
            A("s_waitcnt", "lgkmcnt(0)")
            ex = lambda ct, r: A("v_exp_f32", Sc[ct][r], Sc[ct][r])
            cv = lambda ct, q: A("v_cvt_pk_bf16_f32", PK[ct][q], Sc[ct][2 * q], Sc[ct][2 * q + 1])
            pv = lambda ct, j: A("v_mfma_f32_32x32x16_bf16", O[ct], VF[cur][j], PK[ct][4 * j:4 * j + 4], O[ct])
            qk(nx, nx, 0, 0)
            for r in range(0, 4):
                ex(0, r)
            qk(nx, nx, 0, 1)
            for r in range(4, 8):
                ex(0, r)
            qk(nx, nx, 1, 0)
            for r in range(8, 12):
                ex(0, r)
            qk(nx, nx, 1, 1)
            if i < 2:
                rd_k(cur, vCur, i + 2)
            else:
                rd_k(cur, vNxt, i - 2)
            for r in range(12, 16):
                ex(0, r)
            for q in range(8):
                cv(0, q)
            pv(0, 0)
            for r in range(0, 4):
                ex(1, r)
            pv(0, 1)
            for r in range(4, 12):
                ex(1, r)
            for q in range(4):
                cv(1, q)
            pv(1, 0)
            for r in range(12, 16):
                ex(1, r)
            for q in range(4, 8):
                cv(1, q)
            if i < 3:
                rd_v(nx, vCur, i + 1)
            else:
                rd_v(nx, vNxt, 0)
            pv(1, 1)
        A("s_mov_b32", s(46), sB0)
        A("s_mov_b32", sB0, sB1)
        A("s_mov_b32", sB1, sB2)
        A("s_mov_b32", sB2, s(46))
        A("v_add_u32", vCur, sB0, vl16)
        A("v_add_u32", vNxt, sB1, vl16)
        A("s_add_u32", sC, sC, 1)
        A("s_cmp_lt_u32", sC, 16)
        A("s_cbranch_scc1", Lloop)

    Lsafe, Lepi = A.newlabel("att_safe"), A.newlabel("att_epi")
    if "safeonly" in EXP:
        attn_pass(True)
    else:
        attn_pass(False)
        A("s_mov_b32", s(54), f32bits(2.0 ** 100))
        A("v_cmp_nlt_f32", VCC, O[0][10], s(54))
        A("v_cmp_nlt_f32", s(58, 2), O[1][10], s(54))
        A("s_or_b64", VCC, VCC, s(58, 2))
        A("s_cmp_lg_u64", VCC, 0)
        A("s_cselect_b32", s(55), 1, 0)
        A("v_mov_b32", t1, s(55))
        A("s_lshl_b32", s(56), s(28), 2)
        A("s_add_u32", s(56), s(56), 3 * CH)
        A("v_mov_b32", t2, s(56))
        A("ds_write_b32", t2, t1)
        A("s_waitcnt", "lgkmcnt(0)")
        A("s_barrier")
        A("v_mov_b32", t2, 3 * CH)
        A("ds_read_b128", v(176, 4), t2)
        A("s_waitcnt", "lgkmcnt(0)")
        A("v_or_b32", t1, v(176), v(177))
        A("v_or3_b32", t1, t1, v(178), v(179))
        A("v_readfirstlane_b32", s(55), t1)
        A("s_cmp_lg_u32", s(55), 0)
        A("s_cbranch_scc1", Lsafe)
    A.label(Lepi)
    stamp(A, 3)
    A("s_waitcnt", "lgkmcnt(0)")
    VA = [v(174 + i) for i in range(5)]
    A("v_and_b32", t1, 15, v(1))
    A("v_lshlrev_b32", t1, 4, t1)
    A("v_bfe_u32", t2, v(1), 4, 1)
    A("s_mov_b32", s(47), 162 * 1024)
    A("v_mul_lo_u32", t2, t2, s(47))
    A("v_add_u32", t1, t1, t2)
    A("v_lshrrev_b32", t2, 5, v(1))
    A("v_lshlrev_b32", t2, 2, t2)
    A("s_mul_i32", s(48), s(30), 18)
    A("s_add_u32", s(48), s(48), 4608)
    A("v_add_u32", t2, s(48), t2)
    for i, dc in enumerate((0, 2, 8, 10, 16)):
        A("v_add_u32", t3, dc, t2)
        A("v_lshrrev_b32", t4, 3, t3)
        A("v_lshl_add_u32", VA[i], t4, 8, t1)
        A("v_and_b32", t3, 7, t3)
        A("v_lshl_add_u32", VA[i], t3, 1, VA[i])
    A("s_mul_i32", s(48), s(29), 4 * 162 * 1024)
    A("s_add_u32", s(48), s(48), WS_HO)
    A("s_add_u32", s(49), s(48), 2 * 162 * 1024)
    for ct in range(2):
        A("v_mov_b32", t1, O[ct][10])
        A("v_mov_b32", t2, O[ct][10])
        A("v_permlane32_swap_b32", t1, t2)
        A("v_rcp_f32", t1, t1)
        for r in range(10):
            A("v_mul_f32", O[ct][r], O[ct][r], t1)
        for q in range(5):
            A("v_cvt_pk_bf16_f32", PK[ct][q], O[ct][2 * q], O[ct][2 * q + 1])
        for q in range(4):
            A("buffer_store_dword", PK[ct][q], VA[q], sWS, s(48 + ct), mods="offen")
    A("s_mov_b32", "exec_hi", 0)
    for ct in range(2):
        A("buffer_store_dword", PK[ct][4], VA[4], sWS, s(48 + ct), mods="offen")
    A("s_mov_b64", EXEC, -1)
    stamp(A, 4)
    A("s_waitcnt", "vmcnt(0) lgkmcnt(0)")
    stamp_flush(A, 5, 37, s(28), 0)
    A("s_endpgm")
    if "safeonly" not in EXP:
        A.label(Lsafe)
        A("s_add_u32", sKV, sPw, WS_KV)
        A("s_mov_b32", s(35), 0)
        dma_chunk(s(35))
        A("s_mov_b32", s(35), CH)
        dma_chunk(s(35))
        attn_pass(True)
        A("s_branch", Lepi)
    for (Lr, Lb, cur, from_l) in resc:
        A.label(Lr)
        rescale(cur, from_l)
        if not from_l:
            A("s_mov_b32", sT, f32bits(8.0))
            A("s_mov_b32", sLow, 0)
        A("s_branch", Lb)


def gen_k2(A):
    name = "k2_kernel"
    kernel_header(A, name)
    Lg, Lend = A.newlabel("k2_gemm"), A.newlabel("k2_end")
    A("s_cmp_ge_u32", s(2), 512)
    A("s_cbranch_scc1", Lend)
    A("s_cmp_ge_u32", s(2), 256)
    A("s_cbranch_scc1", Lend if "attonly" in EXP else Lg)
    if "gemmonly" in EXP:
        A("s_branch", Lend)
    gen_attn(A)
    A.label(Lg)
    gen_gemm1(A)
    A.label(Lend)
    A("s_endpgm")
    return name


K3_STAGE = 9600
K3_LDS = 4 * 4 * K3_STAGE


def gen_k3(A):
    name = "k3_kernel"
    kernel_header(A, name)
    Lend = A.newlabel("k3_end")
    A("s_cmp_ge_u32", s(2), 256)
    A("s_cbranch_scc1", Lend)
    A("s_load_dwordx2", s(4, 2), s(0, 2), KA_W2)
    A("s_load_dwordx2", s(6, 2), s(0, 2), KA_WO)
    A("s_load_dwordx2", s(12, 2), s(0, 2), KA_WS)
    stamp(A, 0)
    A("v_lshrrev_b32", v(1), 6, v(0))
    A("v_readfirstlane_b32", s(28), v(1))
    A("s_and_b32", s(31), s(2), 3)
    A("s_lshr_b32", s(30), s(2), 6)
    A("s_bfe_u32", s(29), s(2), (4 << 16) | 2)
    A("s_lshr_b32", s(26), s(28), 1)
    A("s_and_b32", s(27), s(28), 1)
    A("s_lshl_b32", s(25), s(31), 2)
    A("s_add_u32", s(25), s(25), s(26))
    A("s_waitcnt", "lgkmcnt(0)")
    sWS, sW = s(16, 4), s(20, 4)
    srd(A, sWS, s(12, 2), WS_SIZE)
    sCnt, sWoff = s(34), s(33)
    sX = [s(36 + i) for i in range(4)]
    sW2, sWoff2 = s(64, 4), s(68)
    sX2 = [s(69 + i) for i in range(4)]
    srd(A, sW, s(4, 2), 4608 * 1152)
    srd(A, sW2, s(6, 2), 576 * 1152)
    A("s_mul_i32", s(41), s(25), 9)
    A("s_cmp_gt_u32", s(25), 0)
    A("s_addc_u32", s(42), s(25), 0)
    A("s_cmp_gt_u32", s(25), 8)
    A("s_addc_u32", s(42), s(42), 0)
    A("s_and_b32", s(40), s(25), 7)
    A("s_cmp_eq_u32", s(40), 0)
    A("s_cselect_b32", sCnt, 11, 10)
    A("s_mul_i32", sWoff, s(41), 32 * 1152)
    A("s_mul_i32", s(46), s(30), 288)
    A("s_add_u32", sWoff, sWoff, s(46))
    A("s_mul_i32", sWoff2, s(42), 32 * 1152)
    A("s_add_u32", sWoff2, sWoff2, s(46))
    A("s_lshl_b32", s(46), s(29), 7)
    A("s_lshl_b32", s(47), s(27), 6)
    A("s_add_u32", s(46), s(46), s(47))
    A("s_lshr_b32", s(47), s(46), 4)
    A("s_mul_i32", s(47), s(47), 162)
    A("s_add_u32", s(48), s(47), s(42))
    A("s_add_u32", s(48), s(48), 144)
    A("s_add_u32", s(47), s(47), s(41))
    A("s_lshl_b32", s(47), s(47), 10)
    A("s_add_u32", s(47), s(47), WS_HO)
    A("s_lshl_b32", s(48), s(48), 10)
    A("s_add_u32", s(48), s(48), WS_HO)
    for mt in range(4):
        A("s_add_u32", sX[mt], s(47), mt * 162 * 1024)
        A("s_add_u32", sX2[mt], s(48), mt * 162 * 1024)
    ACC = v(0, 144)
    WF = v(144, 36)
    WX = v(180, 8)
    XF = [v(188, 16), v(204, 16), v(220, 16)]
    vDW = v(236, 5)
    vDX, vAW, vtid = v(241), v(242), v(246)
    vt = [v(247 + i) for i in range(7)]
    A("v_mov_b32", vtid, v(0))
    lane = vt[0]
    A("v_and_b32", lane, 63, vtid)
    sGB = s(49)
    A("s_mul_i32", sGB, s(26), 4 * K3_STAGE)
    sP = [s(50 + q) for q in range(5)]
    A("s_mul_i32", s(55), s(27), 300)
    for q in range(5):
        A("s_add_u32", s(56), s(55), 64 * q)
        A("v_add_u32", vt[1], s(56), lane)
        A("v_mul_u32_u24", vt[2], 432, vt[1])
        A("v_lshrrev_b32", vt[2], 16, vt[2])
        A("v_mul_u32_u24", vt[3], 152, vt[2])
        A("v_sub_u32", vt[3], vt[1], vt[3])
        A("v_mul_u32_u24", vt[4], 3641, vt[3])
        A("v_lshrrev_b32", vt[4], 16, vt[4])
        A("v_mul_u32_u24", vt[5], 18, vt[4])
        A("v_sub_u32", vt[5], vt[3], vt[5])
        A("v_lshl_add_u32", vt[4], vt[2], 3, vt[4])
        A("v_mul_u32_u24", vt[4], 1152, vt[4])
        A("v_lshl_add_u32", vt[4], vt[5], 4, vt[4])
        A("v_mov_b32", vt[5], 0x7FF00000)
        A("v_cmp_gt_u32", VCC, 144, vt[3])
        A("v_cndmask_b32", vDW[q], vt[5], vt[4], VCC)
        A("s_lshl_b32", sP[q], s(56), 4)
        A("s_add_u32", sP[q], sP[q], sGB)
    m_, g_ = vt[1], vt[2]
    A("v_and_b32", m_, 15, lane)
    A("v_lshrrev_b32", g_, 4, lane)
    A("v_lshlrev_b32", vDX, 4, lane)
    A("v_lshrrev_b32", vt[3], 2, m_)
    A("v_mul_u32_u24", vt[3], 18 * 16, vt[3])
    A("v_mul_u32_u24", vt[4], 152 * 16, g_)
    A("v_add_u32", vt[3], vt[3], vt[4])
    A("v_and_b32", vt[4], 3, lane)
    A("v_lshl_add_u32", vt[3], vt[4], 3, vt[3])
    A("v_add_u32", vAW, sGB, vt[3])

    def dma_w(st):
        if "k3now" in EXP:
            return
        for q in range(5):
            A("s_add_u32", M0, sP[q], (st % 4) * K3_STAGE)
            if q == 4:
                A("s_mov_b32", "exec_hi", 0xFFF)
            A("buffer_load_dwordx4", vDW[q], sW if st < 9 else sW2, sWoff if st < 9 else sWoff2, mods="offen lds")
            if q == 4:
                A("s_mov_b64", EXEC, -1)
        so = sWoff if st < 9 else sWoff2
        A("s_add_u32", so, so, 32 * 1152)

    def load_x(st):
        if "k3nox" in EXP:
            return
        for mt in range(4):
            sx = sX[mt] if st < 9 else sX2[mt]
            A("buffer_load_dwordx4", XF[st % 3][4 * mt:4 * mt + 4], vDX, sWS, sx, mods="offen")
            A("s_add_u32", sx, sx, 1024)

    def wreg(nt, par):
        if nt >= 7 and par:
            return WX[4 * (nt - 7):4 * (nt - 7) + 4]
        return WF[4 * nt:4 * nt + 4]

    def read_w(nt, st):
        w = wreg(nt, st & 1)
        o = (st % 4) * K3_STAGE + nt * 32
        A("ds_read_b64_tr_b16", w[0:2], vAW, mods=f"offset:{o}")
        A("ds_read_b64_tr_b16", w[2:4], vAW, mods=f"offset:{o + 1152}")

    dma_w(0)
    load_x(0)
    dma_w(1)
    load_x(1)
    dma_w(2)
    dma_w(3)
    for r in range(144):
        A("v_mov_b32", ACC[r], 0)
    stamp(A, 1)
    A("s_waitcnt", "vmcnt(19)")
    A("s_barrier")
    stamp(A, 2)
    for nt in range(9):
        read_w(nt, 0)
    for k in range(11):
        Lskip = A.newlabel("k3_skip")
        if k < 2:
            A("s_waitcnt", "vmcnt(14) lgkmcnt(0)")
        elif k <= 5:
            A("s_waitcnt", "vmcnt(9) lgkmcnt(0)")
        else:
            La, Lb, Lc = A.newlabel("k3w"), A.newlabel("k3w"), A.newlabel("k3w")
            if k + 3 < 11:
                A("s_cmp_lt_u32", k + 3, sCnt)
                A("s_cbranch_scc1", La)
            if k + 1 < 11:
                A("s_cmp_lt_u32", k + 1, sCnt)
                A("s_cbranch_scc1", Lb)
            A("s_waitcnt", "vmcnt(0) lgkmcnt(0)")
            A("s_branch", Lc)
            A.label(La)
            A("s_waitcnt", "vmcnt(9) lgkmcnt(0)")
            A("s_branch", Lc)
            A.label(Lb)
            A("s_waitcnt", "vmcnt(4) lgkmcnt(0)")
            A.label(Lc)
        A("s_barrier")
        if k >= 9:
            A("s_cmp_lt_u32", k, sCnt)
            A("s_cbranch_scc0", Lskip)
        if k + 4 < 11:
            if k + 4 >= 9:
                Ln = A.newlabel("k3n")
                A("s_cmp_lt_u32", k + 4, sCnt)
                A("s_cbranch_scc0", Ln)
            dma_w(k + 4)
            if k + 4 >= 9:
                A.label(Ln)
        if k + 2 < 11:
            if k + 2 >= 9:
                Ln = A.newlabel("k3n")
                A("s_cmp_lt_u32", k + 2, sCnt)
                A("s_cbranch_scc0", Ln)
            load_x(k + 2)
            if k + 2 >= 9:
                A.label(Ln)
        nxt = k + 1 < 11
        if nxt:
            read_w(7, k + 1)
            read_w(8, k + 1)
        for nt in range(9):
            w = wreg(nt, k & 1)
            for mt in range(4 if "k3nom" not in EXP else 0):
                acc = ACC[(nt * 4 + mt) * 4:(nt * 4 + mt) * 4 + 4]
                A("v_mfma_f32_16x16x32_bf16", acc, w, XF[k % 3][4 * mt:4 * mt + 4], acc)
            if nt < 7 and nxt:
                read_w(nt, k + 1)
        A.label(Lskip)
        if k in (0, 5):
            stamp(A, 3 + (k == 5))
    A("s_waitcnt", "vmcnt(0) lgkmcnt(0)")
    A("s_barrier")
    stamp(A, 5)
    vW_, vR_ = v(236), v(237)
    TMP = v(144, 72)
    A("v_and_b32", lane, 63, vtid)
    vl16 = v(240)
    A("v_lshlrev_b32", vl16, 4, lane)
    A("s_mul_i32", s(56), s(28), 18432)
    A("v_add_u32", vW_, s(56), vl16)
    A("s_xor_b32", s(57), s(28), 2)
    A("s_mul_i32", s(57), s(57), 18432)
    A("v_add_u32", vR_, s(57), vl16)

    def tile(nt, mt):
        return ACC[(nt * 4 + mt) * 4:(nt * 4 + mt) * 4 + 4]

    va, vb = v(238), v(239)
    A("v_and_b32", m_, 15, lane)
    A("v_lshrrev_b32", g_, 4, lane)
    A("v_add_u32", va, s(46), m_)
    A("v_mul_u32_u24", va, 1152, va)
    A("v_lshl_add_u32", vb, g_, 3, va)
    A("v_and_b32", vt[3], 1, g_)
    A("v_lshl_add_u32", va, vt[3], 5, va)
    A("v_lshrrev_b32", vt[3], 1, g_)
    A("v_lshl_add_u32", va, vt[3], 4, va)
    A("s_mul_i32", s(58), s(31), 2048 * 1152)
    A("s_mul_i32", s(59), s(30), 288)
    A("s_add_u32", s(58), s(58), s(59))
    A("s_add_u32", s(58), s(58), WS_PART)
    Lv = [A.newlabel("k3_v") for _ in range(4)]
    A("s_and_b32", s(59), s(26), 1)
    A("s_cmp_eq_u32", s(59), 1)
    A("s_cbranch_scc1", Lv[1])
    for b0 in range(2):
        if b0:
            A.label(Lv[1])
        keep = [2 * b0, 2 * b0 + 1]
        send = [2 - 2 * b0, 3 - 2 * b0]
        i = 0
        for nt in range(9):
            for mt in send:
                A("ds_write_b128", vW_, tile(nt, mt), mods=f"offset:{i * 1024}")
                i += 1
        A("s_waitcnt", "lgkmcnt(0)")
        A("s_barrier")
        for i in range(18):
            A("ds_read_b128", TMP[4 * i:4 * i + 4], vR_, mods=f"offset:{i * 1024}")
        i = 0
        for nt in range(9):
            for mt in keep:
                A("s_waitcnt", f"lgkmcnt({min(17 - i, 15)})")
                for r in range(4):
                    A("v_add_f32", tile(nt, mt)[r], tile(nt, mt)[r], TMP[4 * i + r])
                i += 1
        A("s_barrier")
        A("s_xor_b32", s(57), s(28), 4)
        A("s_mul_i32", s(57), s(57), 18432)
        A("v_add_u32", vR_, s(57), vl16)
        A("s_cmp_ge_u32", s(26), 2)
        A("s_cbranch_scc1", Lv[2 + b0])
        for b1 in range(2):
            if b1:
                A.label(Lv[2 + b0])
            km, sm = keep[b1], keep[1 - b1]
            for nt in range(9):
                A("ds_write_b128", vW_, tile(nt, sm), mods=f"offset:{nt * 1024}")
            A("s_waitcnt", "lgkmcnt(0)")
            A("s_barrier")
            for nt in range(9):
                A("ds_read_b128", TMP[4 * nt:4 * nt + 4], vR_, mods=f"offset:{nt * 1024}")
            A("s_add_u32", s(60), s(58), km * 16 * 1152)
            PK = v(220, 4)
            for p in range(5):
                tiles = [2 * p, 2 * p + 1] if p < 4 else [8]
                A("s_waitcnt", f"lgkmcnt({8 - tiles[-1]})")
                for ti, nt in enumerate(tiles):
                    a = tile(nt, km)
                    for r in range(4):
                        A("v_add_f32", a[r], a[r], TMP[4 * nt + r])
                    A("v_cvt_pk_bf16_f32", PK[2 * ti], a[0], a[1])
                    A("v_cvt_pk_bf16_f32", PK[2 * ti + 1], a[2], a[3])
                if p < 4:
                    A("v_permlane16_swap_b32", PK[0], PK[2])
                    A("v_permlane16_swap_b32", PK[1], PK[3])
                    A("buffer_store_dwordx4", PK, va, sWS, s(60), mods=f"offen offset:{p * 64}")
                else:
                    A("buffer_store_dwordx2", PK[0:2], vb, sWS, s(60), mods="offen offset:256")
            stamp(A, 6)
            A("s_waitcnt", "vmcnt(0)")
            stamp(A, 7)
            A("s_waitcnt", "lgkmcnt(0)")
            stamp_flush(A, 8, 37, s(28), 0)
            A("s_endpgm")
    A.label(Lend)
    A("s_endpgm")
    return name


def gen_k4(A):
    name = "k4_kernel"
    kernel_header(A, name)
    Lend = A.newlabel("k4_end")
    A("s_cmp_ge_u32", s(2), 576)
    A("s_cbranch_scc1", Lend)
    A("s_load_dwordx2", s(4, 2), s(0, 2), KA_X)
    A("s_load_dwordx4", s(8, 4), s(0, 2), KA_B2)
    A("s_load_dwordx2", s(12, 2), s(0, 2), KA_WS)
    A("s_lshl_b32", s(3), s(2), 8)
    A("v_add_u32", v(1), s(3), v(0))
    A("v_lshlrev_b32", v(2), 4, v(1))
    A("s_mov_b32", s(14), 59652324)
    A("v_mul_hi_u32", v(4), v(1), s(14))
    A("v_mul_u32_u24", v(4), 72, v(4))
    A("v_sub_u32", v(4), v(1), v(4))
    A("v_lshlrev_b32", v(4), 4, v(4))
    A("s_waitcnt", "lgkmcnt(0)")
    sX, sB, sO, sWS = s(16, 4), s(20, 4), s(24, 4), s(28, 4)
    srd(A, sX, s(4, 2), 2048 * 1152)
    srd(A, sB, s(8, 2), 1152)
    srd(A, sO, s(10, 2), 2048 * 1152)
    srd(A, sWS, s(12, 2), WS_SIZE)
    P = v(16, 24)
    for sp in range(4):
        A("s_mov_b32", s(32 + sp), WS_PART + sp * 2048 * 1152)
        A("buffer_load_dwordx4", P[4 * sp:4 * sp + 4], v(2), sWS, s(32 + sp), mods="offen")
    A("buffer_load_dwordx4", P[16:20], v(2), sX, 0, mods="offen")
    A("buffer_load_dwordx4", P[20:24], v(4), sB, 0, mods="offen")
    acc = v(40, 8)
    for sp in range(6):
        A("s_waitcnt", f"vmcnt({5 - sp})")
        for q in range(4):
            if sp == 0:
                A("v_lshlrev_b32", acc[2 * q], 16, P[q])
                A("v_and_b32", acc[2 * q + 1], 0xFFFF0000, P[q])
            else:
                A("v_lshlrev_b32", v(5), 16, P[4 * sp + q])
                A("v_and_b32", v(6), 0xFFFF0000, P[4 * sp + q])
                A("v_add_f32", acc[2 * q], acc[2 * q], v(5))
                A("v_add_f32", acc[2 * q + 1], acc[2 * q + 1], v(6))
    for q in range(4):
        A("v_cvt_pk_bf16_f32", v(8 + q), acc[2 * q], acc[2 * q + 1])
    A("buffer_store_dwordx4", v(8, 4), v(2), sO, 0, mods="offen")
    A.label(Lend)
    A("s_endpgm")
    return name


def main():
    A = Asm()
    hdr = open(os.path.join(os.path.dirname(__file__), "..", "cdna_kernels", NAME + ".s.ref")).read().splitlines()
    head = []
    for l in hdr:
        if l.startswith(";") and "@launch" not in l:
            head.append(l)
        elif not l.startswith(";"):
            break
    head += [
        "; @launch kernel=k1_kernel grid=(224,1,1) block=(256,1,1) lds=108800",
        "; @launch kernel=k2_kernel grid=(512,1,1) block=(256,1,1) lds=81920",
        f"; @launch kernel=k3_kernel grid=(256,1,1) block=(512,1,1) lds={K3_LDS}",
        "; @launch kernel=k4_kernel grid=(576,1,1) block=(256,1,1) lds=0",
        '.amdgcn_target "amdgcn-amd-amdhsa--gfx950"',
        ".text",
    ]
    names = [gen_k1(A), gen_k2(A), gen_k3(A), gen_k4(A)]
    body = A.render()
    out = "\n".join(head) + "\n" + body + '.section .rodata,"a"\n'
    vg = {"k1_kernel": 256, "k2_kernel": 256, "k3_kernel": 256, "k4_kernel": 48}
    for n in names:
        out += ".p2align 6\n" + kd(n, vg[n])
    path = os.environ.get("OUT") or os.path.join(os.path.dirname(__file__), "..", "cdna_kernels", NAME + ".s")
    open(path, "w").write(out)
    print("wrote", path, len(out), "bytes")


if __name__ == "__main__":
    main()
```

```python
import re
import os
STORE_MOD = os.environ.get("STMOD", "")


class R:
    __slots__ = ("k", "i", "n")

    def __init__(self, k, i, n=1):
        self.k, self.i, self.n = k, i, n

    def __str__(self):
        if self.n == 1:
            return f"{self.k}{self.i}"
        return f"{self.k}[{self.i}:{self.i + self.n - 1}]"

    __repr__ = __str__

    def __getitem__(self, j):
        if isinstance(j, slice):
            st = j.start or 0
            en = self.n if j.stop is None else j.stop
            assert 0 <= st < en <= self.n, (self, j)
            return R(self.k, self.i + st, en - st)
        assert 0 <= j < self.n, (self, j)
        return R(self.k, self.i + j, 1)

    def regs(self):
        return {(self.k, self.i + j) for j in range(self.n)}


def v(i, n=1):
    return R("v", i, n)


def s(i, n=1):
    return R("s", i, n)


VCC = R("vcc", 0, 2)
EXEC = R("exec", 0, 2)
M0 = R("m0", 0, 1)


def _fmt(o):
    if isinstance(o, R):
        if o.k in ("vcc", "exec", "m0"):
            return o.k
        return str(o)
    if isinstance(o, float):
        return repr(o)
    if isinstance(o, int):
        if -16 <= o <= 64:
            return str(o)
        return hex(o & 0xFFFFFFFF)
    return str(o)


TRANS = ("v_exp_f32", "v_log_f32", "v_rcp_f32", "v_rsq_f32", "v_sqrt_f32", "v_sin_f32", "v_cos_f32")


class Ins:
    __slots__ = ("op", "ops", "mods", "wr", "rd", "cls", "label", "target", "nops", "passes", "text", "srcc")

    def __init__(self):
        self.wr = set()
        self.rd = set()
        self.cls = ""
        self.label = None
        self.target = None
        self.nops = 0
        self.passes = 0
        self.text = None
        self.srcc = set()


def regs_of(o):
    return o.regs() if isinstance(o, R) else set()


class Asm:
    def __init__(self):
        self.ins = []
        self.lblc = 0

    def newlabel(self, base="L"):
        self.lblc += 1
        return f"{base}_{self.lblc}"

    def label(self, name):
        i = Ins()
        i.op = "label"
        i.label = name
        i.cls = "label"
        i.text = f"{name}:"
        self.ins.append(i)

    def raw(self, text):
        i = Ins()
        i.op = "raw"
        i.cls = "raw"
        i.text = text
        self.ins.append(i)

    def comment(self, t):
        self.raw("    ; " + t)

    def __call__(self, op, *ops, mods=""):
        if op.startswith("buffer_store") and STORE_MOD:
            mods = mods + " " + STORE_MOD
        i = Ins()
        i.op = op
        i.ops = ops
        i.mods = mods
        self._classify(i)
        i.text = "    " + op + (" " + ", ".join(_fmt(o) for o in ops) if ops else "") + (" " + mods if mods else "")
        self.ins.append(i)
        return i

    def _classify(self, i):
        op, ops = i.op, i.ops
        if op.startswith("v_mfma"):
            i.cls = "mfma"
            i.passes = 8 if "32x32" in op else 4
            i.wr |= regs_of(ops[0])
            for o in ops[1:]:
                i.rd |= regs_of(o)
            i.srcc = regs_of(ops[3])
        elif op.startswith("v_"):
            i.cls = "trans" if op in TRANS else "valu"
            if op.startswith("v_permlane") and "swap" in op:
                i.cls = "permlane"
                i.wr |= regs_of(ops[0]) | regs_of(ops[1])
                i.rd |= regs_of(ops[0]) | regs_of(ops[1])
            elif op.startswith("v_cmp"):
                i.wr |= regs_of(ops[0])
                if op.startswith("v_cmpx"):
                    i.wr |= EXEC.regs()
                for o in ops[1:]:
                    i.rd |= regs_of(o)
            elif op in ("v_add_co_u32", "v_sub_co_u32", "v_addc_co_u32"):
                i.wr |= regs_of(ops[0]) | regs_of(ops[1])
                for o in ops[2:]:
                    i.rd |= regs_of(o)
            else:
                i.wr |= regs_of(ops[0])
                for o in ops[1:]:
                    i.rd |= regs_of(o)
                if op.startswith("v_fmac") or op.startswith("v_pk_fmac") or "writelane" in op:
                    i.rd |= regs_of(ops[0])
            if "dpp" in i.mods or "row_" in i.mods or "quad_perm" in i.mods or op.endswith("_dpp"):
                i.cls = "dpp"
            if op in ("v_readfirstlane_b32", "v_readlane_b32"):
                i.cls = "readlane"
        elif op.startswith("ds_read") or op.startswith("ds_bpermute") or op.startswith("ds_swizzle") or op.startswith("ds_permute"):
            i.cls = "ds"
            i.wr |= regs_of(ops[0])
            for o in ops[1:]:
                i.rd |= regs_of(o)
        elif op.startswith("ds_write"):
            i.cls = "ds"
            i.rd |= regs_of(ops[0])
            for o in ops[1:]:
                i.rd |= regs_of(o)
        elif op.startswith("buffer_load") or op.startswith("global_load"):
            i.cls = "vmem"
            if " lds" in (" " + i.mods) or "_lds_" in op:
                i.cls = "vmem_lds"
                for o in ops:
                    i.rd |= regs_of(o)
                i.rd |= M0.regs()
            else:
                i.wr |= regs_of(ops[0])
                for o in ops[1:]:
                    i.rd |= regs_of(o)
        elif op.startswith("buffer_atomic"):
            i.cls = "vmem"
            i.wr |= regs_of(ops[0])
            for o in ops:
                i.rd |= regs_of(o)
        elif op.startswith("buffer_store") or op.startswith("global_store"):
            i.cls = "vmem_st"
            for o in ops:
                i.rd |= regs_of(o)
            i.srcc = regs_of(ops[0] if op.startswith("buffer") else ops[1])
            i.passes = 1 if ("x4" in op or "x3" in op) else 0
        elif op.startswith("s_cbranch") or op == "s_branch":
            i.cls = "branch"
            i.target = ops[0]
        elif op == "s_nop":
            i.cls = "nop"
        elif op.startswith("s_load") or op.startswith("s_buffer_load") or op == "s_memtime":
            i.cls = "smem"
            i.wr |= regs_of(ops[0])
            for o in ops[1:]:
                i.rd |= regs_of(o)
        elif op.startswith("s_cmp") or op in ("s_waitcnt", "s_barrier", "s_endpgm", "s_setprio", "s_sleep"):
            i.cls = "salu"
            for o in ops:
                i.rd |= regs_of(o)
        elif op.startswith("s_"):
            i.cls = "salu"
            i.wr |= regs_of(ops[0])
            for o in ops[1:]:
                i.rd |= regs_of(o)
            if "saveexec" in op:
                i.wr |= EXEC.regs()
        else:
            raise ValueError("unknown op " + op)

    @staticmethod
    def _need(p, c):
        n = 0
        pv = p.cls in ("valu", "trans", "dpp", "permlane", "readlane")
        cv = c.cls in ("valu", "trans", "dpp", "permlane", "readlane")
        vg = lambda st: {r for r in st if r[0] in ("v", "a")}
        sg = lambda st: {r for r in st if r[0] in ("s", "vcc")}
        if pv:
            pw = vg(p.wr)
            if pw:
                if c.cls == "mfma" and pw & c.rd:
                    n = max(n, 2)
                if c.cls == "dpp" and pw & c.rd:
                    n = max(n, 2)
                if c.cls == "permlane" and pw & c.rd:
                    n = max(n, 2)
                if c.cls == "readlane" and pw & c.rd:
                    n = max(n, 1)
                if p.cls == "trans" and cv and c.cls != "trans" and pw & (c.rd | c.wr):
                    n = max(n, 1)
                if p.cls == "trans" and c.cls in ("vmem_st", "ds", "vmem", "mfma") and pw & c.rd:
                    n = max(n, 2)
            ps = sg(p.wr)
            if ps:
                if cv and ps & c.rd:
                    n = max(n, 2)
                if c.cls == "readlane" and ps & c.rd:
                    n = max(n, 4)
                if c.cls in ("vmem", "vmem_lds", "vmem_st") and ps & c.rd:
                    n = max(n, 5)
                if c.cls in ("salu", "smem", "branch") and ps & c.rd:
                    n = max(n, 1)
            if EXEC.regs() & p.wr:
                if c.cls in ("dpp",):
                    n = max(n, 5)
                if c.cls in ("readlane", "permlane", "mfma"):
                    n = max(n, 4)
        if p.cls == "mfma":
            big = p.passes == 8
            if c.cls == "mfma":
                ab = set()
                for o in c.ops[1:3]:
                    ab |= regs_of(o)
                if p.wr & ab:
                    n = max(n, 12 if big else 8)
                if p.wr & c.srcc:
                    same = (p.wr == c.srcc) and (p.passes == c.passes)
                    if not same:
                        n = max(n, 10 if big else 6)
                if (p.wr & c.wr) and not (p.wr & c.srcc):
                    n = max(n, 10 if big else 6)
            elif cv or c.cls in ("vmem", "vmem_st", "ds", "vmem_lds"):
                if p.wr & (c.rd | c.wr):
                    n = max(n, 12 if big else 8)
                if cv and (p.srcc & c.wr):
                    n = max(n, 7 if big else 3)
        if p.cls == "vmem_st" and p.passes:
            if (cv or c.cls in ("vmem", "ds")) and (p.srcc & c.wr):
                n = max(n, 2)
        if p.cls == "salu" and M0.regs() & p.wr and c.cls == "vmem_lds":
            n = max(n, 1)
        return n

    def pad(self):
        ins = self.ins
        lab = {}
        for idx, i in enumerate(ins):
            if i.cls == "label":
                lab[i.label] = idx
        preds_extra = {}
        for idx, i in enumerate(ins):
            if i.cls == "branch":
                preds_extra.setdefault(lab[i.target], []).append(idx)
        MAXD = 14
        for idx, c in enumerate(ins):
            if c.cls in ("label", "raw", "nop"):
                continue
            need = 0
            stack = [(idx - 1, 0)]
            seen = {}
            while stack:
                j, d = stack.pop()
                while j >= 0 and d < MAXD:
                    if seen.get(j, 99) <= d:
                        break
                    seen[j] = d
                    p = ins[j]
                    if p.cls == "label":
                        for b in preds_extra.get(j, []):
                            stack.append((b, d))
                        pj = j - 1
                        while pj >= 0 and ins[pj].cls in ("raw",):
                            pj -= 1
                        if pj >= 0 and (ins[pj].op in ("s_branch", "s_endpgm")):
                            break
                        j -= 1
                        continue
                    if p.cls == "raw":
                        j -= 1
                        continue
                    if p.cls == "nop":
                        d += int(p.ops[0]) + 1
                        j -= 1
                        continue
                    r = self._need(p, c)
                    if r > d:
                        need = max(need, r - d)
                    d += 1 + p.nops_after if hasattr(p, "nops_after") else 1
                    j -= 1
            c.nops = need

    def render(self):
        self.pad()
        out = []
        for i in self.ins:
            if i.nops:
                n = i.nops
                while n > 0:
                    k = min(n, 16)
                    out.append(f"    s_nop {k - 1}")
                    n -= k
            out.append(i.text)
        return "\n".join(out) + "\n"
```

```python
import struct
import sys
import os

sys.path.insert(0, os.path.dirname(__file__))
from asmdsl import Asm, R, v, s, VCC, EXEC, M0

EXP = os.environ.get("EXP", "")
NAME = "parallel_sum__grouped_kv_mqa__mixer_channel_mlp__prompt"

KA_X, KA_WQ, KA_WK, KA_WV, KA_WO, KA_BX, KA_W1, KA_B1, KA_W2, KA_B2, KA_OUT, KA_DBG, KA_WS = [8 * i for i in range(13)]

WS_XNF = 0x0
WS_Y = 0x240000
WS_KV = 0x480000
WS_WQP = 0x4C0000
WS_HO = 0x600000
WS_PART = 0x1C00000
WS_SIZE = 0x10000000
HO_STRIDE = 5184 * 2


def f32bits(x):
    return struct.unpack("<I", struct.pack("<f", x))[0]


def srd(A, dst, base, nbytes):
    A("s_mov_b32", dst[0], base[0])
    A("s_and_b32", dst[1], base[1], 0xFFFF)
    A("s_mov_b32", dst[2], nbytes)
    A("s_mov_b32", dst[3], 0x00020000)


def stamp(A, i):
    if "stamp" in EXP:
        A("s_memtime", s(80 + 2 * i, 2))


def stamp_flush(A, n, wg, wave_sgpr, wave, base=0):
    if "stamp" not in EXP:
        return
    L = A.newlabel("stf")
    A("s_cmp_lg_u32", s(2), wg)
    A("s_cbranch_scc1", L)
    A("s_cmp_lg_u32", wave_sgpr, wave)
    A("s_cbranch_scc1", L)
    A("s_load_dwordx2", s(76, 2), s(0, 2), KA_DBG)
    A("s_waitcnt", "lgkmcnt(0)")
    srd(A, s(72, 4), s(76, 2), 256)
    A("v_mov_b32", v(1), 0)
    for i in range(n):
        A("v_mov_b32", v(0), s(80 + 2 * i))
        A("buffer_store_dword", v(0), v(1), s(72, 4), 0, mods=f"offen offset:{base + 4 * i}")
    A.label(L)


def kernel_header(A, name):
    A.raw(f".globl {name}")
    A.raw(".p2align 8")
    A.raw(f".type {name},@function")
    A.raw(f"{name}:")


def kd(name, vgpr=256, sgpr=102):
    acc = (vgpr + 3) // 4 * 4
    return f""".amdhsa_kernel {name}
  .amdhsa_next_free_vgpr {vgpr}
  .amdhsa_next_free_sgpr {sgpr}
  .amdhsa_accum_offset {acc}
  .amdhsa_group_segment_fixed_size 0
  .amdhsa_kernarg_size 104
  .amdhsa_user_sgpr_count 2
  .amdhsa_user_sgpr_kernarg_segment_ptr 1
  .amdhsa_system_sgpr_workgroup_id_x 1
.end_amdhsa_kernel
"""


def reduce16(A, x, t):
    for r in (8, 4, 2, 1):
        A("v_add_f32_dpp", t, x, x, mods=f"row_ror:{r} row_mask:0xf bank_mask:0xf")
        A("v_mov_b32", x, t)


def layernorm(A, Pin, Pout, F, T):
    for i in range(18):
        A("v_lshlrev_b32", F[2 * i], 16, Pin[i])
        A("v_and_b32", F[2 * i + 1], 0xFFFF0000, Pin[i])
    sm, t0, mean, acc, mb, rr = T[0], T[1], T[2], T[3], T[4], T[5]
    A("v_add_f32", sm, F[0], F[1])
    for i in range(2, 36):
        A("v_add_f32", sm, sm, F[i])
    reduce16(A, sm, t0)
    A("v_mul_f32", mean, f32bits(1.0 / 576.0), sm)
    A("v_mov_b32", acc, 0)
    for i in range(36):
        A("v_sub_f32", t0, F[i], mean)
        A("v_fmac_f32", acc, t0, t0)
    reduce16(A, acc, t0)
    A("v_mul_f32", acc, f32bits(1.0 / 576.0), acc)
    A("v_cvt_pk_bf16_f32", t0, mean, acc)
    A("v_lshlrev_b32", mb, 16, t0)
    A("v_and_b32", acc, 0xFFFF0000, t0)
    A("v_add_f32", acc, f32bits(1e-5), acc)
    A("v_cvt_pk_bf16_f32", t0, acc, acc)
    A("v_lshlrev_b32", acc, 16, t0)
    A("v_sqrt_f32", acc, acc)
    A("v_cvt_pk_bf16_f32", t0, acc, acc)
    A("v_lshlrev_b32", acc, 16, t0)
    A("v_rcp_f32", rr, acc)
    for i in range(18):
        a, b = F[2 * i], F[2 * i + 1]
        A("v_sub_f32", a, a, mb)
        A("v_sub_f32", b, b, mb)
        A("v_cvt_pk_bf16_f32", t0, a, b)
        A("v_lshlrev_b32", a, 16, t0)
        A("v_and_b32", b, 0xFFFF0000, t0)
        A("v_mul_f32", a, a, rr)
        A("v_mul_f32", b, b, rr)
        A("v_cvt_pk_bf16_f32", Pout[i], a, b)


def gen_k1(A):
    name = "k1_kernel"
    kernel_header(A, name)
    Lend = A.newlabel("k1_end")
    Lpack = A.newlabel("k1_pack")
    A("s_cmp_ge_u32", s(2), 224)
    A("s_cbranch_scc1", Lend)
    stamp(A, 0)
    A("s_load_dwordx8", s(4, 8), s(0, 2), KA_X)
    A("s_load_dwordx2", s(12, 2), s(0, 2), KA_WS)
    A("v_lshrrev_b32", v(1), 6, v(0))
    A("v_readfirstlane_b32", s(28), v(1))
    A("v_and_b32", v(1), 63, v(0))
    A("s_waitcnt", "lgkmcnt(0)")
    sX, sWS, sWK, sWQ = s(16, 4), s(20, 4), s(24, 4), s(32, 4)
    srd(A, sWS, s(12, 2), WS_SIZE)
    if "nopf" not in EXP:
        A("s_load_dwordx2", s(68, 2), s(0, 2), KA_W1)
        A("s_load_dwordx2", s(70, 2), s(0, 2), KA_W2)
        A("s_load_dwordx2", s(72, 2), s(0, 2), KA_WO)
        A("v_lshlrev_b32", v(250), 7, v(1))
        A("s_lshl_b32", s(74), s(2), 2)
        A("s_add_u32", s(74), s(74), s(28))
        A("s_lshl_b32", s(74), s(74), 1)
        A("s_waitcnt", "lgkmcnt(0)")
        for i in range(2):
            sP = s(76, 4)
            A("s_add_u32", s(75), s(74), i)
            A("s_sub_u32", s(80), s(75), 648)
            A("s_sub_u32", s(81), s(75), 1296)
            A("s_cmp_lt_u32", s(75), 1296)
            A("s_cselect_b32", s(82), s(70), s(72))
            A("s_cselect_b32", s(83), s(71), s(73))
            A("s_cselect_b32", s(84), s(80), s(81))
            A("s_cmp_lt_u32", s(75), 648)
            A("s_cselect_b32", s(82), s(68), s(82))
            A("s_cselect_b32", s(83), s(69), s(83))
            A("s_cselect_b32", s(84), s(75), s(84))
            A("s_mov_b32", s(85), 648 * 8192)
            A("s_cmp_lt_u32", s(75), 1296)
            A("s_cselect_b32", s(85), s(85), 81 * 8192)
            A("s_mov_b32", sP[0], s(82))
            A("s_and_b32", sP[1], s(83), 0xFFFF)
            A("s_mov_b32", sP[2], s(85))
            A("s_mov_b32", sP[3], 0x00020000)
            A("s_lshl_b32", s(84), s(84), 13)
            A("buffer_load_dword", v(251 + i), v(250), sP, s(84), mods="offen")
    A("s_cmp_ge_u32", s(2), 128)
    A("s_cbranch_scc1", Lpack)
    srd(A, sX, s(4, 2), 2048 * 1152)
    A("s_cmp_ge_u32", s(28), 2)
    A("s_cselect_b32", s(14), s(10), s(8))
    A("s_cselect_b32", s(15), s(11), s(9))
    srd(A, sWK, s(14, 2), 576 * 36)
    vj, vrow, vtok, vxo = v(2), v(3), v(4), v(5)
    A("v_and_b32", vj, 15, v(0))
    A("v_lshrrev_b32", vrow, 4, v(0))
    A("s_lshl_b32", s(29), s(2), 4)
    A("v_add_u32", vtok, s(29), vrow)
    A("v_mul_u32_u24", vxo, 1152, vtok)
    A("v_lshl_add_u32", vxo, vj, 3, vxo)
    PX = v(28, 18)
    for i in range(9):
        A("buffer_load_dwordx2", PX[2 * i:2 * i + 2], vxo, sX, 0, mods=f"offen offset:{i * 128}")
    vg, vgo = v(6), v(7)
    WB = 18688
    WR = 22528
    A("v_lshrrev_b32", vg, 4, v(1))
    A("s_and_b32", s(30), s(28), 1)
    A("s_lshr_b32", s(31), s(28), 1)
    A("s_mul_i32", s(31), s(31), 2 * WR)
    A("s_add_u32", s(31), s(31), WB)
    A("s_mul_i32", s(41), s(30), WR + 4)
    A("s_add_u32", s(41), s(41), s(31))
    A("v_lshlrev_b32", v(9), 4, v(1))
    for i in range(21):
        if i % 4 == 0:
            A("s_add_u32", M0, s(41), i * 1024)
            A("s_mov_b32", s(42), i * 1024)
        A("buffer_load_dwordx4", v(9), sWK, s(42), mods=f"offen offset:{(i & 3) * 1024} lds")
    A("s_lshl_b32", s(30), s(30), 4)
    A("v_lshrrev_b32", v(8), 2, vj)
    A("v_lshl_add_u32", vgo, vg, 3, v(8))
    A("v_mul_u32_u24", vgo, 36, vgo)
    A("v_and_b32", v(8), 1, v(8))
    A("v_mul_u32_u24", v(8), WR + 4, v(8))
    A("v_add_u32", vgo, vgo, v(8))
    A("v_and_b32", v(8), 3, vj)
    A("v_lshl_add_u32", vgo, v(8), 3, vgo)
    A("s_lshl_b32", s(43), s(30), 1)
    A("s_add_u32", s(43), s(43), s(31))
    A("v_add_u32", vgo, s(43), vgo)
    G = v(100, 144)
    F = v(48, 36)
    T = v(10, 8)
    PN = v(84, 16 + 2)
    PN = v(28, 18)
    stamp(A, 1)
    A("s_waitcnt", "vmcnt(21)")
    stamp(A, 2)
    layernorm(A, PX, PN, F, T)
    for i in range(9):
        A("s_mov_b32", s(48 + i), WS_XNF + i * 4096)
    va, vb = v(18), v(19)
    A("v_lshrrev_b32", va, 5, vtok)
    A("v_mul_u32_u24", va, 36864, va)
    A("v_lshrrev_b32", vb, 2, vj)
    A("v_lshl_add_u32", va, vb, 10, va)
    A("v_bfe_u32", vb, vj, 1, 1)
    A("v_lshlrev_b32", vb, 5, vb)
    A("v_and_b32", v(20), 31, vtok)
    A("v_add_u32", vb, vb, v(20))
    A("v_lshl_add_u32", va, vb, 4, va)
    A("v_and_b32", vb, 1, vj)
    A("v_lshl_add_u32", va, vb, 3, va)
    for i in range(9):
        A("buffer_store_dwordx2", PN[2 * i:2 * i + 2], va, sWS, s(48 + i), mods="offen")
    vl = v(21)
    A("v_mul_u32_u24", vl, 1168, vrow)
    A("v_lshl_add_u32", vl, vj, 3, vl)
    for i in range(9):
        A("ds_write_b64", vl, PN[2 * i:2 * i + 2], mods=f"offset:{i * 128}")
    PY = v(84, 16)
    PY = [v(84 + i) for i in range(16)] + [v(22), v(23)]
    PYr = v(84, 16)
    class _P:
        def __getitem__(self, i):
            return PY[i]
    layernorm(A, PN, _P(), F, T)
    A("v_lshrrev_b32", va, 4, vtok)
    A("v_mul_u32_u24", va, 18432, va)
    A("v_lshrrev_b32", vb, 1, vj)
    A("v_lshl_add_u32", va, vb, 8, va)
    A("v_and_b32", vb, 15, vtok)
    A("v_lshl_add_u32", va, vb, 4, va)
    A("v_and_b32", vb, 1, vj)
    A("v_lshl_add_u32", va, vb, 3, va)
    for i in range(5):
        A("s_mov_b32", s(64 + i), WS_Y + i * 4096)
    for i in range(8):
        A("buffer_store_dwordx2", PYr[2 * i:2 * i + 2], va, sWS, s(64 + i // 2), mods=f"offen offset:{(i & 1) * 2048}")
    A("buffer_store_dwordx2", v(22, 2), va, sWS, s(68), mods="offen")
    stamp(A, 3)
    A("s_waitcnt", "vmcnt(18) lgkmcnt(0)")
    A("s_barrier")
    for ks in range(18):
        for q in range(2):
            A("ds_read_b64_tr_b16", G[8 * ks + 2 * q:8 * ks + 2 * q + 2], vgo, mods=f"offset:{ks * 1152 + q * 144}")
    A("v_mul_u32_u24", vl, 1168, vj)
    A("v_lshl_add_u32", vl, vg, 4, vl)
    XF = v(28, 72)
    for ks in range(18):
        A("ds_read_b128", XF[4 * ks:4 * ks + 4], vl, mods=f"offset:{ks * 64}")
    stamp(A, 4)
    D = v(12, 4)
    for r in range(4):
        A("v_mov_b32", D[r], 0)
    A("s_waitcnt", "lgkmcnt(0)")
    LV = A.newlabel("k1_v")
    A("s_lshr_b32", s(58), s(2), 1)
    A("s_lshl_b32", s(58), s(58), 12)
    A("s_add_u32", s(58), s(58), WS_KV)
    A("s_and_b32", s(59), s(2), 1)
    A("s_cmp_ge_u32", s(28), 2)
    A("s_cbranch_scc1", LV)
    for ks in range(18):
        A("v_mfma_f32_16x16x32_bf16", D, G[8 * ks:8 * ks + 4], XF[4 * ks:4 * ks + 4], D)
    A("s_lshl_b32", s(60), s(30), 6)
    A("s_add_u32", s(58), s(58), s(60))
    A("s_lshl_b32", s(60), s(59), 8)
    A("s_add_u32", s(58), s(58), s(60))
    A("v_lshrrev_b32", va, 1, vg)
    A("v_lshlrev_b32", va, 5, va)
    A("v_add_u32", va, va, vj)
    A("v_lshlrev_b32", va, 4, va)
    A("v_and_b32", vb, 1, vg)
    A("v_lshl_add_u32", va, vb, 3, va)
    A("v_cmp_eq_u32", VCC, 0, vg)
    A("s_cmp_eq_u32", s(28), 1)
    A("s_cselect_b64", s(62, 2), VCC, 0)
    A("s_cselect_b64", s(64, 2), -1, 0)
    A("s_andn2_b64", s(66, 2), s(64, 2), s(62, 2))
    A("v_cndmask_b32", D[0], D[0], 0, s(66, 2))
    A("v_cndmask_b32", D[1], D[1], 0, s(66, 2))
    A("v_cndmask_b32", D[2], D[2], 0, s(64, 2))
    A("v_cndmask_b32", D[3], D[3], 0, s(64, 2))
    A("v_cndmask_b32", D[2], D[2], 1.0, s(62, 2))
    A("v_cvt_pk_bf16_f32", v(16), D[0], D[1])
    A("v_cvt_pk_bf16_f32", v(17), D[2], D[3])
    A("buffer_store_dwordx2", v(16, 2), va, sWS, s(58), mods="offen")
    stamp(A, 5)
    A("s_waitcnt", "vmcnt(0) lgkmcnt(0)")
    stamp(A, 6)
    A("s_waitcnt", "lgkmcnt(0)")
    stamp_flush(A, 7, 37, s(28), 0)
    A("s_endpgm")
    A.label(LV)
    for ks in range(18):
        A("v_mfma_f32_16x16x32_bf16", D, XF[4 * ks:4 * ks + 4], G[8 * ks:8 * ks + 4], D)
    A("s_lshl_b32", s(60), s(59), 10)
    A("s_add_u32", s(58), s(58), s(60))
    A("s_add_u32", s(58), s(58), 2048)
    A("s_lshl_b32", s(60), s(30), 4)
    A("s_add_u32", s(58), s(58), s(60))
    A("v_and_b32", va, 1, vg)
    A("v_lshlrev_b32", va, 5, va)
    A("v_add_u32", va, va, vj)
    A("v_lshlrev_b32", va, 4, va)
    A("v_lshrrev_b32", vb, 1, vg)
    A("v_lshl_add_u32", va, vb, 3, va)
    A("v_cmp_eq_u32", VCC, 2, vj)
    A("s_cmp_eq_u32", s(28), 3)
    A("s_cselect_b64", s(62, 2), VCC, 0)
    A("v_cmp_lt_u32", VCC, 2, vj)
    A("s_cselect_b64", s(64, 2), VCC, 0)
    for r in range(4):
        A("v_cndmask_b32", D[r], D[r], 1.0, s(62, 2))
        A("v_cndmask_b32", D[r], D[r], 0, s(64, 2))
    A("v_cvt_pk_bf16_f32", v(16), D[0], D[1])
    A("v_cvt_pk_bf16_f32", v(17), D[2], D[3])
    A("buffer_store_dwordx2", v(16, 2), va, sWS, s(58), mods="offen")
    A("s_endpgm")
    A.label(Lpack)
    srd(A, sWQ, s(6, 2), 576 * 1152 + 64)
    A("s_sub_u32", s(36), s(2), 128)
    A("s_lshl_b32", s(36), s(36), 2)
    A("s_add_u32", s(36), s(36), s(28))
    A("s_mul_i32", s(37), s(36), 43691)
    A("s_lshr_b32", s(37), s(37), 19)
    A("s_mul_i32", s(38), s(37), 12)
    A("s_sub_u32", s(38), s(36), s(38))
    A("s_mul_i32", s(38), s(38), 3)
    vi, vh, vr, vs = v(2), v(3), v(4), v(5)
    A("v_and_b32", vi, 31, v(1))
    A("v_bfe_u32", vh, vi, 2, 1)
    A("v_lshrrev_b32", vr, 3, vi)
    A("v_lshlrev_b32", vr, 2, vr)
    A("v_and_b32", v(6), 3, vi)
    A("v_or_b32", vr, vr, v(6))
    A("v_lshl_add_u32", vs, vh, 3, vr)
    A("v_and_b32", v(6), 8, vr)
    A("v_add_u32", vs, vs, v(6))
    A("v_lshrrev_b32", v(6), 5, v(1))
    A("v_mul_u32_u24", v(7), 8 * 1152, v(6))
    A("v_lshl_add_u32", v(7), vs, 1, v(7))
    A("v_mov_b32", v(9), 0x7FF00000)
    A("v_cmp_gt_u32", VCC, 18, vs)
    A("v_cndmask_b32", v(7), v(9), v(7), VCC)
    A("s_mul_i32", s(39), s(38), 16 * 1152)
    A("s_mul_i32", s(40), s(37), 36)
    A("s_add_u32", s(39), s(39), s(40))
    G = v(16, 24)
    for f in range(3):
        for half in range(3):
            A("s_add_u32", s(41 + half), s(39), f * 16 * 1152 + half * 3456)
        for j in range(8):
            A("buffer_load_ushort", G[8 * f + j], v(7), sWQ, s(41 + j // 3), mods=f"offen offset:{(j % 3) * 1152}")
    A("s_waitcnt", "vmcnt(0)")
    for f in range(3):
        for q in range(4):
            A("v_lshl_or_b32", G[8 * f + q], G[8 * f + 2 * q + 1], 16, G[8 * f + 2 * q])
    A("s_mul_i32", s(40), s(37), 36)
    A("s_add_u32", s(40), s(40), s(38))
    A("s_mul_i32", s(40), s(40), 576)
    A("s_add_u32", s(40), s(40), WS_WQP)
    A("v_mul_u32_u24", v(8), 288, v(6))
    A("v_lshl_add_u32", v(8), vi, 4, v(8))
    A("v_cmp_gt_u32", VCC, 18, vi)
    A("v_cndmask_b32", v(8), v(9), v(8), VCC)
    for f in range(3):
        A("buffer_store_dwordx4", G[8 * f:8 * f + 4], v(8), sWS, s(40), mods=f"offen offset:{f * 576}")
    A.label(Lend)
    A("s_endpgm")
    return name


STAGE = 26624


def gemm_body(A, xstride, wstride, sXsrd, sWsrd, sXoff, sWoff, sN, sWave, init_acc, S0):
    ACC = v(0, 144)
    WF = v(144, 36)
    WX = v(180, 8)
    XF = [v(188, 16), v(204, 16)]
    vDX = v(220, 2)
    vDW = v(222, 5)
    vAX, vAW0, vAW1 = v(227), v(228), v(229)
    vCX, vCW0, vCW1 = v(230), v(231), v(232)
    vt = [v(233 + i) for i in range(8)]
    vtid = v(241)
    sP = [s(S0 + i) for i in range(7)]
    sStR, sStW, sK, sT0, sT1 = s(S0 + 7), s(S0 + 8), s(S0 + 9), s(S0 + 10), s(S0 + 11)
    A("v_mov_b32", vtid, v(0))
    lane = vt[0]
    A("v_and_b32", lane, 63, vtid)
    for i in range(2):
        A("s_lshl_b32", sT0, sWave, 1)
        A("s_add_u32", sT0, sT0, i)
        A("s_mul_i32", sT1, sT0, xstride)
        A("v_lshlrev_b32", vt[1], 4, lane)
        A("v_add_u32", vDX[i], sT1, vt[1])
        A("s_lshl_b32", sP[i], sT0, 10)
    for q in range(5):
        if q < 4:
            A("s_lshl_b32", sT0, sWave, 6)
            A("s_add_u32", sT0, sT0, 256 * q)
        else:
            A("s_lshl_b32", sT0, sWave, 5)
            A("s_add_u32", sT0, sT0, 1024)
        A("v_add_u32", vt[1], sT0, lane)
        A("v_mul_u32_u24", vt[2], 1821, vt[1])
        A("v_lshrrev_b32", vt[2], 16, vt[2])
        A("v_mul_u32_u24", vt[3], 36, vt[2])
        A("v_sub_u32", vt[3], vt[1], vt[3])
        A("v_lshrrev_b32", vt[4], 2, vt[2])
        A("v_and_b32", vt[4], 2, vt[4])
        A("v_xor_b32", vt[3], vt[3], vt[4])
        A("s_mov_b32", sT1, wstride)
        A("v_mul_lo_u32", vt[2], vt[2], sT1)
        A("v_lshl_add_u32", vDW[q], vt[3], 4, vt[2])
        A("s_lshl_b32", sP[2 + q], sT0, 4)
        A("s_add_u32", sP[2 + q], sP[2 + q], 8192)
    m_, g_ = vt[1], vt[2]
    A("v_and_b32", m_, 15, lane)
    A("v_lshrrev_b32", g_, 4, lane)
    A("s_lshr_b32", sT0, sWave, 1)
    A("s_lshl_b32", sT0, sT0, 12)
    A("v_lshlrev_b32", vt[3], 4, lane)
    A("v_add_u32", vAX, sT0, vt[3])
    A("v_lshrrev_b32", vt[3], 2, m_)
    A("v_lshl_add_u32", vt[3], g_, 3, vt[3])
    A("v_mul_u32_u24", vt[3], 36 * 16, vt[3])
    A("v_and_b32", vt[4], 3, lane)
    A("v_lshl_add_u32", vt[3], vt[4], 3, vt[3])
    A("s_and_b32", sT0, sWave, 1)
    A("s_mul_i32", sT1, sT0, 18 * 16)
    A("s_add_u32", sT1, sT1, 8192)
    A("v_add_u32", vt[3], sT1, vt[3])
    A("v_and_b32", vt[4], 1, g_)
    A("v_lshlrev_b32", vt[4], 5, vt[4])
    A("v_add_u32", vt[5], vt[3], vt[4])
    A("v_sub_u32", vt[6], vt[3], vt[4])
    A("s_cmp_eq_u32", sT0, 0)
    A("s_cselect_b64", s(S0 + 12, 2), -1, 0)
    A("v_cndmask_b32", vAW0, vt[6], vt[5], s(S0 + 12, 2))
    A("v_cndmask_b32", vAW1, vt[5], vt[6], s(S0 + 12, 2))

    def dma_stage(sStage):
        if "nodma" in EXP:
            return
        for i in range(2):
            A("s_add_u32", M0, sStage, sP[i])
            A("buffer_load_dwordx4", vDX[i], sXsrd, sXoff, mods="offen lds")
        for q in range(4):
            A("s_add_u32", M0, sStage, sP[2 + q])
            A("buffer_load_dwordx4", vDW[q], sWsrd, sWoff, mods="offen lds")
        A("s_add_u32", M0, sStage, sP[6])
        A("s_mov_b32", "exec_hi", 0)
        A("buffer_load_dwordx4", vDW[4], sWsrd, sWoff, mods="offen lds")
        A("s_mov_b64", EXEC, -1)
        A("s_add_u32", sXoff, sXoff, 1024)
        A("s_add_u32", sWoff, sWoff, 32 * wstride)

    def wreg(nt, par):
        if nt >= 7 and par:
            return WX[4 * (nt - 7):4 * (nt - 7) + 4]
        return WF[4 * nt:4 * nt + 4]

    def read_w(nt, par):
        a = vCW1 if nt & 1 else vCW0
        w = wreg(nt, par)
        A("ds_read_b64_tr_b16", w[0:2], a, mods=f"offset:{nt * 32}")
        A("ds_read_b64_tr_b16", w[2:4], a, mods=f"offset:{nt * 32 + 2304}")

    def read_x(mt, par):
        A("ds_read_b128", XF[par][4 * mt:4 * mt + 4], vCX, mods=f"offset:{mt * 1024}")

    def set_cur(sStage):
        A("v_add_u32", vCX, sStage, vAX)
        A("v_add_u32", vCW0, sStage, vAW0)
        A("v_add_u32", vCW1, sStage, vAW1)

    init_acc(ACC, 0)
    for st in range(3):
        A("s_mov_b32", sT0, st * STAGE)
        dma_stage(sT0)
    init_acc(ACC, 1)
    A("s_waitcnt", "vmcnt(14)")
    A("s_barrier")
    stamp(A, 1)
    A("s_mov_b32", sStR, 0)
    set_cur(sStR)
    for mt in range(4):
        read_x(mt, 0)
    for nt in range(9):
        read_w(nt, 0)
    A("s_mov_b32", sStR, STAGE)
    A("s_mov_b32", sStW, 0)
    A("s_mov_b32", sK, 0)
    Lloop = A.newlabel("gemm_loop")
    Ldone = A.newlabel("gemm_done")
    A.label(Lloop)
    for par in range(2):
        Lw0 = A.newlabel("gw0")
        Lw1 = A.newlabel("gw1")
        Lnd = A.newlabel("gnd")
        A("s_add_u32", sT0, sK, 2)
        A("s_cmp_lt_u32", sT0, sN)
        A("s_cbranch_scc1", Lw0)
        A("s_waitcnt", "vmcnt(0) lgkmcnt(0)")
        A("s_branch", Lw1)
        A.label(Lw0)
        A("s_waitcnt", "vmcnt(7) lgkmcnt(0)")
        A.label(Lw1)
        A("s_barrier")
        set_cur(sStR)
        A("s_add_u32", sT0, sK, 3)
        A("s_cmp_lt_u32", sT0, sN)
        A("s_cbranch_scc0", Lnd)
        dma_stage(sStW)
        A.label(Lnd)
        np_ = 1 - par
        if "nocomp" not in EXP:
            read_w(7, np_)
            read_w(8, np_)
        for nt in range(9 if "nocomp" not in EXP else 0):
            w = wreg(nt, par)
            for mt in range(4):
                acc = ACC[(nt * 4 + mt) * 4:(nt * 4 + mt) * 4 + 4]
                A("v_mfma_f32_16x16x32_bf16", acc, w, XF[par][4 * mt:4 * mt + 4], acc)
            if nt < 7:
                read_w(nt, np_)
            if nt < 4:
                read_x(nt, np_)
        A("s_mov_b32", sStW, sStR)
        A("s_add_u32", sStR, sStR, STAGE)
        A("s_cmp_eq_u32", sStR, 3 * STAGE)
        A("s_cselect_b32", sStR, 0, sStR)
        A("s_add_u32", sK, sK, 1)
        A("s_cmp_lt_u32", sK, sN)
        if par == 0:
            A("s_cbranch_scc0", Ldone)
        else:
            A("s_cbranch_scc1", Lloop)
    A.label(Ldone)
    A("s_waitcnt", "lgkmcnt(0)")
    return dict(ACC=ACC, vtid=vtid, vt=vt, tmp=v(144, 76))


C0 = -2.0 * 0.7978845608028654 * 1.4426950408889634
C1 = C0 * 0.044715


def gen_gemm1(A):
    stamp(A, 0)
    A("s_load_dwordx4", s(4, 4), s(0, 2), KA_W1)
    A("s_load_dwordx2", s(12, 2), s(0, 2), KA_WS)
    A("v_lshrrev_b32", v(1), 6, v(0))
    A("v_readfirstlane_b32", s(28), v(1))
    A("s_sub_u32", s(3), s(2), 256)
    A("s_lshr_b32", s(29), s(3), 5)
    A("s_lshl_b32", s(29), s(29), 1)
    A("s_bfe_u32", s(30), s(3), (1 << 16) | 2)
    A("s_add_u32", s(29), s(29), s(30))
    A("s_and_b32", s(30), s(3), 3)
    A("s_lshl_b32", s(30), s(30), 2)
    A("s_bfe_u32", s(31), s(3), (2 << 16) | 3)
    A("s_add_u32", s(30), s(30), s(31))
    A("s_waitcnt", "lgkmcnt(0)")
    sWS, sW, sB = s(16, 4), s(20, 4), s(24, 4)
    srd(A, sWS, s(12, 2), WS_SIZE)
    srd(A, sW, s(4, 2), 576 * 9216)
    srd(A, sB, s(6, 2), 4608 * 2)
    sXoff, sWoff, sN = s(32), s(33), s(34)
    A("s_mul_i32", sXoff, s(29), 8 * 18432)
    A("s_add_u32", sXoff, sXoff, WS_Y)
    A("s_mul_i32", sWoff, s(30), 576)
    A("s_mov_b32", sN, 18)

    def init_acc(ACC, phase):
        vt = [v(234 + i) for i in range(12)]
        BT = v(144, 18)
        if phase == 1:
            A("s_waitcnt", "vmcnt(21)")
            for nt in range(9):
                a0 = ACC[nt * 16:nt * 16 + 4]
                A("v_lshlrev_b32", a0[0], 16, BT[2 * nt])
                A("v_and_b32", a0[1], 0xFFFF0000, BT[2 * nt])
                A("v_lshlrev_b32", a0[2], 16, BT[2 * nt + 1])
                A("v_and_b32", a0[3], 0xFFFF0000, BT[2 * nt + 1])
                for mt in range(1, 4):
                    for r in range(4):
                        A("v_mov_b32", ACC[nt * 16 + mt * 4 + r], a0[r])
            return
        A("v_bfe_u32", vt[8], v(241), 4, 2)
        A("v_lshlrev_b32", vt[8], 3, vt[8])
        A("s_and_b32", s(35), s(28), 1)
        A("s_mul_i32", s(35), s(35), 288)
        A("s_add_u32", s(35), s(35), sWoff_save)
        for nt in range(9):
            A("buffer_load_dwordx2", BT[2 * nt:2 * nt + 2], vt[8], sB, s(35), mods=f"offen offset:{nt * 32}")

    sWoff_save = s(36)
    A("s_mov_b32", sWoff_save, sWoff)
    g = gemm_body(A, 18432, 9216, sWS, sW, sXoff, sWoff, sN, s(28), init_acc, 40)
    ACC, vtid = g["ACC"], g["vtid"]
    stamp(A, 2)
    A("s_mov_b32", s(60), f32bits(C1))
    A("s_mov_b32", s(61), f32bits(C0))
    t0, t1 = v(144), v(145)
    va, vb, vm, vg = v(146), v(147), v(148), v(149)
    PK = v(152, 4)
    A("v_and_b32", vm, 15, vtid)
    A("v_bfe_u32", vg, vtid, 4, 2)
    A("s_and_b32", s(62), s(28), 1)
    A("s_lshl_b32", s(63), s(62), 1)
    A("v_and_b32", t0, 1, vg)
    A("v_lshrrev_b32", t1, 1, vg)
    A("v_lshl_add_u32", t0, t0, 1, t1)
    A("v_add_u32", t0, s(63), t0)
    A("v_lshlrev_b32", t0, 8, t0)
    A("v_lshl_add_u32", va, vm, 4, t0)
    A("v_add_u32", t1, s(63), t1)
    A("v_lshlrev_b32", t1, 8, t1)
    A("v_lshl_add_u32", vb, vm, 4, t1)
    A("v_and_b32", t0, 1, vg)
    A("v_lshl_add_u32", vb, t0, 3, vb)
    A("s_lshr_b32", s(63), s(28), 1)
    A("s_lshl_b32", s(63), s(63), 2)
    A("s_lshl_b32", s(35), s(29), 3)
    A("s_add_u32", s(35), s(35), s(63))
    A("s_mul_i32", s(35), s(35), 162)
    A("s_mul_i32", s(63), s(30), 9)
    A("s_add_u32", s(35), s(35), s(63))
    A("s_lshl_b32", s(62), s(62), 2)
    A("s_add_u32", s(35), s(35), s(62))
    A("s_lshl_b32", s(35), s(35), 10)
    A("s_add_u32", s(35), s(35), WS_HO)
    for mt in range(4):
        A("s_add_u32", s(64 + mt), s(35), mt * 162 * 1024)
        A("s_add_u32", s(68 + mt), s(35), mt * 162 * 1024 + 4096)

    cC1, cC0, cONE = v(156, 2), v(158, 2), v(160, 2)
    TT = [v(162, 2), v(164, 2)]

    def gelu4(a):
        for h in range(2):
            x2, T2 = a[2 * h:2 * h + 2], TT[h]
            A("v_pk_mul_f32", T2, x2, x2)
            A("v_pk_fma_f32", T2, T2, cC1, cC0)
            A("v_pk_mul_f32", T2, T2, x2)
        for h in range(2):
            for e in range(2):
                A("v_exp_f32", TT[h][e], TT[h][e])
        for h in range(2):
            A("v_pk_add_f32", TT[h], TT[h], cONE)
        for h in range(2):
            for e in range(2):
                A("v_rcp_f32", TT[h][e], TT[h][e])
        for h in range(2):
            A("v_pk_mul_f32", a[2 * h:2 * h + 2], a[2 * h:2 * h + 2], TT[h])

    for e in range(2):
        A("v_mov_b32", cC1[e], s(60))
        A("v_mov_b32", cC0[e], s(61))
        A("v_mov_b32", cONE[e], 1.0)
    for mt in range(4):
        for p in range(5):
            tiles = [2 * p, 2 * p + 1] if p < 4 else [8]
            for ti, nt in enumerate(tiles):
                a = ACC[(nt * 4 + mt) * 4:(nt * 4 + mt) * 4 + 4]
                gelu4(a)
                A("v_cvt_pk_bf16_f32", PK[2 * ti], a[0], a[1])
                A("v_cvt_pk_bf16_f32", PK[2 * ti + 1], a[2], a[3])
            if p < 4:
                A("v_permlane16_swap_b32", PK[0], PK[2])
                A("v_permlane16_swap_b32", PK[1], PK[3])
                A("buffer_store_dwordx4", PK, va, sWS, s(64 + mt), mods=f"offen offset:{p * 1024}")
            else:
                A("buffer_store_dwordx2", PK[0:2], vb, sWS, s(68 + mt), mods="offen")
    stamp(A, 3)
    A("s_waitcnt", "vmcnt(0) lgkmcnt(0)")
    stamp(A, 4)
    A("s_waitcnt", "lgkmcnt(0)")
    stamp_flush(A, 5, 256 + 37, s(28), 0, base=32)
    A("s_endpgm")


QSCALE = (18 ** -0.5) * 1.4426950408889634


def gen_attn(A):
    stamp(A, 0)
    A("s_load_dwordx2", s(12, 2), s(0, 2), KA_WS)
    A("v_lshrrev_b32", v(1), 6, v(0))
    A("v_readfirstlane_b32", s(28), v(1))
    A("s_and_b32", s(29), s(2), 7)
    A("s_lshl_b32", s(29), s(29), 2)
    A("s_bfe_u32", s(30), s(2), (2 << 16) | 3)
    A("s_add_u32", s(29), s(29), s(30))
    A("s_lshr_b32", s(30), s(2), 5)
    A("s_lshl_b32", s(30), s(30), 2)
    A("s_add_u32", s(30), s(30), s(28))
    A("s_waitcnt", "lgkmcnt(0)")
    sWS = s(16, 4)
    srd(A, sWS, s(12, 2), WS_SIZE)
    if "noprio" not in EXP:
        A("s_setprio", 3)
    vl16 = v(2)
    A("v_and_b32", v(1), 63, v(0))
    A("v_lshlrev_b32", vl16, 4, v(1))
    CH = 16384
    sKV = s(32)
    sPw = s(33)
    A("s_lshl_b32", sPw, s(28), 12)
    A("s_add_u32", sKV, sPw, WS_KV)

    def dma_chunk(sBuf):
        for i in range(4):
            A("s_add_u32", M0, sBuf, sPw)
            A("buffer_load_dwordx4", vl16, sWS, sKV, mods=f"offen offset:{i * 1024} lds")
        A("s_add_u32", sKV, sKV, CH)

    QA = [v(20, 16), v(36, 16)]
    BF = v(52, 48)
    AF = v(100, 144)
    XB = 32768
    vAo = v(244)
    A("s_mul_i32", s(36), s(30), 36 * 576)
    A("s_add_u32", s(36), s(36), WS_WQP)
    A("v_and_b32", v(245), 31, v(1))
    A("v_lshrrev_b32", v(246), 5, v(1))
    A("v_mul_u32_u24", v(246), 288, v(246))
    A("v_lshl_add_u32", vAo, v(245), 4, v(246))
    A("v_mov_b32", v(246), 0x7FF00000)
    A("v_cmp_gt_u32", VCC, 18, v(245))
    A("v_cndmask_b32", vAo, v(246), vAo, VCC)
    A("s_lshr_b32", s(50), s(28), 1)
    A("s_lshl_b32", s(37), s(29), 1)
    A("s_add_u32", s(37), s(37), s(50))
    A("s_mul_i32", s(37), s(37), 36864)
    A("s_and_b32", s(50), s(28), 1)
    A("s_mul_i32", s(50), s(50), 6 * 1024)
    A("s_add_u32", s(37), s(37), s(50))
    A("s_add_u32", s(37), s(37), WS_XNF)
    A("s_add_u32", s(38), s(37), 4096)
    A("s_mul_i32", s(51), s(28), 6 * 1024)
    A("s_add_u32", s(51), s(51), XB)

    def dma_x(ph):
        for i in range(6):
            if i in (0, 4):
                A("s_add_u32", M0, s(51), (ph & 1) * 24576 + (4096 if i else 0))
            A("buffer_load_dwordx4", vl16, sWS, s(38 if i >= 4 else 37), mods=f"offen offset:{(i & 3) * 1024} lds")
        A("s_add_u32", s(37), s(37), 12 * 1024)
        A("s_add_u32", s(38), s(38), 12 * 1024)

    def load_a(ph):
        for i in range(12):
            if i % 6 == 0 and (ph or i):
                A("s_add_u32", s(36), s(36), 6 * 576)
            A("buffer_load_dwordx4", AF[48 * ph + 4 * i:48 * ph + 4 * i + 4], vAo, sWS, s(36),
              mods=f"offen offset:{(i % 6) * 576}")

    A("v_add_u32", v(3), XB, vl16)
    dma_x(0)
    load_a(0)
    dma_x(1)
    load_a(1)
    A("s_mov_b32", s(35), 0)
    dma_chunk(s(35))
    A("s_mov_b32", s(35), CH)
    dma_chunk(s(35))
    load_a(2)
    for ct in range(2):
        for r in range(16):
            A("v_mov_b32", QA[ct][r], 0)
    for ph in range(3):
        A("s_waitcnt", f"vmcnt({(38, 26, 0)[ph]})")
        A("s_barrier")
        for half in range(2):
            for i in range(6):
                for ct in range(2):
                    o = (ph & 1) * 24576 + (ct * 12 + half * 6 + i) * 1024
                    A("ds_read_b128", BF[8 * i + 4 * ct:8 * i + 4 * ct + 4], v(3), mods=f"offset:{o}")
            for i in range(6):
                A("s_waitcnt", f"lgkmcnt({10 - 2 * i})")
                ks = half * 6 + i
                for ct in range(2):
                    A("v_mfma_f32_32x32x16_bf16", QA[ct], AF[48 * ph + 4 * ks:48 * ph + 4 * ks + 4],
                      BF[8 * i + 4 * ct:8 * i + 4 * ct + 4], QA[ct])
        if ph == 0:
            A("s_barrier")
            dma_x(2)
    stamp(A, 1)
    QF = [[v(4, 4), v(8, 4)], [v(12, 4), v(16, 4)]]
    A("s_mov_b32", s(39), f32bits(QSCALE))
    for ct in range(2):
        for r in range(16):
            A("v_mul_f32", QA[ct][r], s(39), QA[ct][r])
        for f in range(2):
            for q in range(4):
                A("v_cvt_pk_bf16_f32", QF[ct][f][q], QA[ct][8 * f + 2 * q], QA[ct][8 * f + 2 * q + 1])
    KF = [[v(20, 4), v(24, 4)], [v(28, 4), v(32, 4)]]
    VF = [[v(36, 4), v(40, 4)], [v(44, 4), v(48, 4)]]
    PK = [v(52, 8), v(60, 8)]
    O = [v(68, 16), v(84, 16)]
    S = [[v(100, 16), v(116, 16)], [v(132, 16), v(148, 16)]]
    Mx = [v(164), v(165)]
    TM = [v(166), v(167)]
    t1, t2, t3, t4 = v(168), v(169), v(170), v(171)
    vCur, vNxt = v(172), v(173)
    sT, sLow, sC, sB0, sB1, sB2, sBig = s(40), s(41), s(42), s(43), s(44), s(45), s(53)
    resc = []

    def rd_k(buf, addr, tile):
        A("ds_read_b128", KF[buf][0], addr, mods=f"offset:{tile * 4096}")
        A("ds_read_b128", KF[buf][1], addr, mods=f"offset:{tile * 4096 + 1024}")

    def rd_v(buf, addr, tile):
        A("ds_read_b128", VF[buf][0], addr, mods=f"offset:{tile * 4096 + 2048}")
        A("ds_read_b128", VF[buf][1], addr, mods=f"offset:{tile * 4096 + 3072}")

    def qk(sb, kb, ct, f):
        A("v_mfma_f32_32x32x16_bf16", S[sb][ct], KF[kb][f], QF[ct][f], 0 if f == 0 else S[sb][ct])

    def tile_max(Sc):
        for ct in range(2):
            A("v_max3_f32", TM[ct], Sc[ct][0], Sc[ct][1], Sc[ct][2])
            for r in range(3, 15, 2):
                A("v_max3_f32", TM[ct], TM[ct], Sc[ct][r], Sc[ct][r + 1])
            A("v_max_f32", TM[ct], TM[ct], Sc[ct][15])

    def rescale(cur, from_l):
        for ct in range(2):
            src = O[ct][10] if from_l else TM[ct]
            A("v_mov_b32", t1, src)
            A("v_mov_b32", t2, src)
            A("v_permlane32_swap_b32", t1, t2)
            if from_l:
                A("v_log_f32", t1, t1)
                A("v_max_f32", t1, 0, t1)
            else:
                A("v_max_f32", t1, t1, t2)
                A("v_max_f32", t1, sLow, t1)
            A("v_add_f32", t1, Mx[ct], t1)
            A("v_and_b32", t1, 0xFFFF0000, t1)
            A("v_sub_f32", t2, t1, Mx[ct])
            A("v_mov_b32", Mx[ct], t1)
            A("v_xor_b32", t3, 0x80000000, t1)
            A("v_lshrrev_b32", QF[ct][1][1], 16, t3)
            for r in range(16):
                A("v_sub_f32", S[cur][ct][r], S[cur][ct][r], t2)
            A("v_sub_f32", t3, 0, t2)
            A("v_min_f32", t3, 0, t3)
            A("v_exp_f32", t3, t3)
            for r in range(16):
                A("v_mul_f32", O[ct][r], O[ct][r], t3)

    def attn_pass(safe):
        for ct in range(2):
            for r in range(16):
                A("v_mov_b32", O[ct][r], 0)
            A("v_mov_b32", Mx[ct], 0)
            A("v_mov_b32", QF[ct][1][1], 0)
        A("s_mov_b32", sT, 0xFF800000)
        A("s_mov_b32", sLow, 0xFF800000)
        A("s_mov_b32", sBig, f32bits(2.0 ** 24))
        A("s_waitcnt", "vmcnt(0)")
        A("s_barrier")
        A("v_mov_b32", vCur, vl16)
        A("v_add_u32", vNxt, CH, vl16)
        A("s_mov_b32", sB0, 0)
        A("s_mov_b32", sB1, CH)
        A("s_mov_b32", sB2, 2 * CH)
        rd_k(0, vCur, 0)
        rd_k(1, vCur, 1)
        rd_v(0, vCur, 0)
        A("s_waitcnt", "lgkmcnt(0)")
        for ct in range(2):
            qk(0, 0, ct, 0)
            qk(0, 0, ct, 1)
        if not safe:
            tile_max(S[0])
            rescale(0, False)
        A("s_mov_b32", sC, 0)
        stamp(A, 2)
        Lloop = A.newlabel("att_loop")
        A.label(Lloop)
        Lnd = A.newlabel("att_nd")
        A("s_waitcnt", "vmcnt(0) lgkmcnt(0)")
        A("s_barrier")
        A("s_cmp_lt_u32", sC, 14)
        A("s_cbranch_scc0", Lnd)
        dma_chunk(sB2)
        A.label(Lnd)
        if not safe:
            A("v_max_f32", t1, O[0][10], O[1][10])
            A("v_cmp_lt_f32", VCC, sBig, t1)
            Lr, Lb = A.newlabel("att_resc"), A.newlabel("att_back")
            A("s_cbranch_vccnz", Lr)
            A.label(Lb)
            resc.append((Lr, Lb, 0, True))
        for i in range(4):
            cur, nx = i & 1, 1 - (i & 1)
            Sc = S[cur]
            if safe:
                tile_max(Sc)
                A("v_max_f32", t1, TM[0], TM[1])
                A("v_cmp_lt_f32", VCC, sT, t1)
                Lr, Lb = A.newlabel("att_resc"), A.newlabel("att_back")
                A("s_cbranch_vccnz", Lr)
                A.label(Lb)
                resc.append((Lr, Lb, cur, False))
            A("s_waitcnt", "lgkmcnt(0)")
            ex = lambda ct, r: A("v_exp_f32", Sc[ct][r], Sc[ct][r])
            cv = lambda ct, q: A("v_cvt_pk_bf16_f32", PK[ct][q], Sc[ct][2 * q], Sc[ct][2 * q + 1])
            pv = lambda ct, j: A("v_mfma_f32_32x32x16_bf16", O[ct], VF[cur][j], PK[ct][4 * j:4 * j + 4], O[ct])
            qk(nx, nx, 0, 0)
            for r in range(0, 4):
                ex(0, r)
            qk(nx, nx, 0, 1)
            for r in range(4, 8):
                ex(0, r)
            qk(nx, nx, 1, 0)
            for r in range(8, 12):
                ex(0, r)
            qk(nx, nx, 1, 1)
            if i < 2:
                rd_k(cur, vCur, i + 2)
            else:
                rd_k(cur, vNxt, i - 2)
            for r in range(12, 16):
                ex(0, r)
            for q in range(8):
                cv(0, q)
            pv(0, 0)
            for r in range(0, 4):
                ex(1, r)
            pv(0, 1)
            for r in range(4, 12):
                ex(1, r)
            for q in range(4):
                cv(1, q)
            pv(1, 0)
            for r in range(12, 16):
                ex(1, r)
            for q in range(4, 8):
                cv(1, q)
            if i < 3:
                rd_v(nx, vCur, i + 1)
            else:
                rd_v(nx, vNxt, 0)
            pv(1, 1)
        A("s_mov_b32", s(46), sB0)
        A("s_mov_b32", sB0, sB1)
        A("s_mov_b32", sB1, sB2)
        A("s_mov_b32", sB2, s(46))
        A("v_add_u32", vCur, sB0, vl16)
        A("v_add_u32", vNxt, sB1, vl16)
        A("s_add_u32", sC, sC, 1)
        A("s_cmp_lt_u32", sC, 16)
        A("s_cbranch_scc1", Lloop)

    Lsafe, Lepi = A.newlabel("att_safe"), A.newlabel("att_epi")
    if "safeonly" in EXP:
        attn_pass(True)
    else:
        attn_pass(False)
        A("s_mov_b32", s(54), f32bits(2.0 ** 100))
        A("v_cmp_nlt_f32", VCC, O[0][10], s(54))
        A("v_cmp_nlt_f32", s(58, 2), O[1][10], s(54))
        A("s_or_b64", VCC, VCC, s(58, 2))
        A("s_cmp_lg_u64", VCC, 0)
        A("s_cselect_b32", s(55), 1, 0)
        A("v_mov_b32", t1, s(55))
        A("s_lshl_b32", s(56), s(28), 2)
        A("s_add_u32", s(56), s(56), 3 * CH)
        A("v_mov_b32", t2, s(56))
        A("ds_write_b32", t2, t1)
        A("s_waitcnt", "lgkmcnt(0)")
        A("s_barrier")
        A("v_mov_b32", t2, 3 * CH)
        A("ds_read_b128", v(176, 4), t2)
        A("s_waitcnt", "lgkmcnt(0)")
        A("v_or_b32", t1, v(176), v(177))
        A("v_or3_b32", t1, t1, v(178), v(179))
        A("v_readfirstlane_b32", s(55), t1)
        A("s_cmp_lg_u32", s(55), 0)
        A("s_cbranch_scc1", Lsafe)
    A.label(Lepi)
    stamp(A, 3)
    A("s_waitcnt", "lgkmcnt(0)")
    VA = [v(174 + i) for i in range(5)]
    A("v_and_b32", t1, 15, v(1))
    A("v_lshlrev_b32", t1, 4, t1)
    A("v_bfe_u32", t2, v(1), 4, 1)
    A("s_mov_b32", s(47), 162 * 1024)
    A("v_mul_lo_u32", t2, t2, s(47))
    A("v_add_u32", t1, t1, t2)
    A("v_lshrrev_b32", t2, 5, v(1))
    A("v_lshlrev_b32", t2, 2, t2)
    A("s_mul_i32", s(48), s(30), 18)
    A("s_add_u32", s(48), s(48), 4608)
    A("v_add_u32", t2, s(48), t2)
    for i, dc in enumerate((0, 2, 8, 10, 16)):
        A("v_add_u32", t3, dc, t2)
        A("v_lshrrev_b32", t4, 3, t3)
        A("v_lshl_add_u32", VA[i], t4, 8, t1)
        A("v_and_b32", t3, 7, t3)
        A("v_lshl_add_u32", VA[i], t3, 1, VA[i])
    A("s_mul_i32", s(48), s(29), 4 * 162 * 1024)
    A("s_add_u32", s(48), s(48), WS_HO)
    A("s_add_u32", s(49), s(48), 2 * 162 * 1024)
    for ct in range(2):
        A("v_mov_b32", t1, O[ct][10])
        A("v_mov_b32", t2, O[ct][10])
        A("v_permlane32_swap_b32", t1, t2)
        A("v_rcp_f32", t1, t1)
        for r in range(10):
            A("v_mul_f32", O[ct][r], O[ct][r], t1)
        for q in range(5):
            A("v_cvt_pk_bf16_f32", PK[ct][q], O[ct][2 * q], O[ct][2 * q + 1])
        for q in range(4):
            A("buffer_store_dword", PK[ct][q], VA[q], sWS, s(48 + ct), mods="offen")
    A("s_mov_b32", "exec_hi", 0)
    for ct in range(2):
        A("buffer_store_dword", PK[ct][4], VA[4], sWS, s(48 + ct), mods="offen")
    A("s_mov_b64", EXEC, -1)
    stamp(A, 4)
    A("s_waitcnt", "vmcnt(0) lgkmcnt(0)")
    stamp_flush(A, 5, 37, s(28), 0)
    A("s_endpgm")
    if "safeonly" not in EXP:
        A.label(Lsafe)
        A("s_add_u32", sKV, sPw, WS_KV)
        A("s_mov_b32", s(35), 0)
        dma_chunk(s(35))
        A("s_mov_b32", s(35), CH)
        dma_chunk(s(35))
        attn_pass(True)
        A("s_branch", Lepi)
    for (Lr, Lb, cur, from_l) in resc:
        A.label(Lr)
        rescale(cur, from_l)
        if not from_l:
            A("s_mov_b32", sT, f32bits(8.0))
            A("s_mov_b32", sLow, 0)
        A("s_branch", Lb)


def gen_k2(A):
    name = "k2_kernel"
    kernel_header(A, name)
    Lg, Lend = A.newlabel("k2_gemm"), A.newlabel("k2_end")
    A("s_cmp_ge_u32", s(2), 512)
    A("s_cbranch_scc1", Lend)
    A("s_cmp_ge_u32", s(2), 256)
    A("s_cbranch_scc1", Lend if "attonly" in EXP else Lg)
    if "gemmonly" in EXP:
        A("s_branch", Lend)
    gen_attn(A)
    A.label(Lg)
    gen_gemm1(A)
    A.label(Lend)
    A("s_endpgm")
    return name


K3_STAGE = 9600
K3_LDS = 4 * 4 * K3_STAGE


def gen_k3(A):
    name = "k3_kernel"
    kernel_header(A, name)
    Lend = A.newlabel("k3_end")
    A("s_cmp_ge_u32", s(2), 256)
    A("s_cbranch_scc1", Lend)
    A("s_load_dwordx2", s(4, 2), s(0, 2), KA_W2)
    A("s_load_dwordx2", s(6, 2), s(0, 2), KA_WO)
    A("s_load_dwordx2", s(12, 2), s(0, 2), KA_WS)
    stamp(A, 0)
    A("v_lshrrev_b32", v(1), 6, v(0))
    A("v_readfirstlane_b32", s(28), v(1))
    A("s_and_b32", s(31), s(2), 3)
    A("s_lshr_b32", s(30), s(2), 6)
    A("s_bfe_u32", s(29), s(2), (4 << 16) | 2)
    A("s_lshr_b32", s(26), s(28), 1)
    A("s_and_b32", s(27), s(28), 1)
    A("s_lshl_b32", s(25), s(31), 2)
    A("s_add_u32", s(25), s(25), s(26))
    A("s_waitcnt", "lgkmcnt(0)")
    sWS, sW = s(16, 4), s(20, 4)
    srd(A, sWS, s(12, 2), WS_SIZE)
    sCnt, sWoff = s(34), s(33)
    sX = [s(36 + i) for i in range(4)]
    sW2, sWoff2 = s(64, 4), s(68)
    sX2 = [s(69 + i) for i in range(4)]
    srd(A, sW, s(4, 2), 4608 * 1152)
    srd(A, sW2, s(6, 2), 576 * 1152)
    A("s_mul_i32", s(41), s(25), 9)
    A("s_cmp_gt_u32", s(25), 0)
    A("s_addc_u32", s(42), s(25), 0)
    A("s_cmp_gt_u32", s(25), 8)
    A("s_addc_u32", s(42), s(42), 0)
    A("s_and_b32", s(40), s(25), 7)
    A("s_cmp_eq_u32", s(40), 0)
    A("s_cselect_b32", sCnt, 11, 10)
    A("s_mul_i32", sWoff, s(41), 32 * 1152)
    A("s_mul_i32", s(46), s(30), 288)
    A("s_add_u32", sWoff, sWoff, s(46))
    A("s_mul_i32", sWoff2, s(42), 32 * 1152)
    A("s_add_u32", sWoff2, sWoff2, s(46))
    A("s_lshl_b32", s(46), s(29), 7)
    A("s_lshl_b32", s(47), s(27), 6)
    A("s_add_u32", s(46), s(46), s(47))
    A("s_lshr_b32", s(47), s(46), 4)
    A("s_mul_i32", s(47), s(47), 162)
    A("s_add_u32", s(48), s(47), s(42))
    A("s_add_u32", s(48), s(48), 144)
    A("s_add_u32", s(47), s(47), s(41))
    A("s_lshl_b32", s(47), s(47), 10)
    A("s_add_u32", s(47), s(47), WS_HO)
    A("s_lshl_b32", s(48), s(48), 10)
    A("s_add_u32", s(48), s(48), WS_HO)
    for mt in range(4):
        A("s_add_u32", sX[mt], s(47), mt * 162 * 1024)
        A("s_add_u32", sX2[mt], s(48), mt * 162 * 1024)
    ACC = v(0, 144)
    WF = v(144, 36)
    WX = v(180, 8)
    XF = [v(188, 16), v(204, 16), v(220, 16)]
    vDW = v(236, 5)
    vDX, vAW, vtid = v(241), v(242), v(246)
    vt = [v(247 + i) for i in range(7)]
    A("v_mov_b32", vtid, v(0))
    lane = vt[0]
    A("v_and_b32", lane, 63, vtid)
    sGB = s(49)
    A("s_mul_i32", sGB, s(26), 4 * K3_STAGE)
    sP = [s(50 + q) for q in range(5)]
    A("s_mul_i32", s(55), s(27), 300)
    for q in range(5):
        A("s_add_u32", s(56), s(55), 64 * q)
        A("v_add_u32", vt[1], s(56), lane)
        A("v_mul_u32_u24", vt[2], 432, vt[1])
        A("v_lshrrev_b32", vt[2], 16, vt[2])
        A("v_mul_u32_u24", vt[3], 152, vt[2])
        A("v_sub_u32", vt[3], vt[1], vt[3])
        A("v_mul_u32_u24", vt[4], 3641, vt[3])
        A("v_lshrrev_b32", vt[4], 16, vt[4])
        A("v_mul_u32_u24", vt[5], 18, vt[4])
        A("v_sub_u32", vt[5], vt[3], vt[5])
        A("v_lshl_add_u32", vt[4], vt[2], 3, vt[4])
        A("v_mul_u32_u24", vt[4], 1152, vt[4])
        A("v_lshl_add_u32", vt[4], vt[5], 4, vt[4])
        A("v_mov_b32", vt[5], 0x7FF00000)
        A("v_cmp_gt_u32", VCC, 144, vt[3])
        A("v_cndmask_b32", vDW[q], vt[5], vt[4], VCC)
        A("s_lshl_b32", sP[q], s(56), 4)
        A("s_add_u32", sP[q], sP[q], sGB)
    m_, g_ = vt[1], vt[2]
    A("v_and_b32", m_, 15, lane)
    A("v_lshrrev_b32", g_, 4, lane)
    A("v_lshlrev_b32", vDX, 4, lane)
    A("v_lshrrev_b32", vt[3], 2, m_)
    A("v_mul_u32_u24", vt[3], 18 * 16, vt[3])
    A("v_mul_u32_u24", vt[4], 152 * 16, g_)
    A("v_add_u32", vt[3], vt[3], vt[4])
    A("v_and_b32", vt[4], 3, lane)
    A("v_lshl_add_u32", vt[3], vt[4], 3, vt[3])
    A("v_add_u32", vAW, sGB, vt[3])

    def dma_w(st):
        if "k3now" in EXP:
            return
        for q in range(5):
            A("s_add_u32", M0, sP[q], (st % 4) * K3_STAGE)
            if q == 4:
                A("s_mov_b32", "exec_hi", 0xFFF)
            A("buffer_load_dwordx4", vDW[q], sW if st < 9 else sW2, sWoff if st < 9 else sWoff2, mods="offen lds")
            if q == 4:
                A("s_mov_b64", EXEC, -1)
        so = sWoff if st < 9 else sWoff2
        A("s_add_u32", so, so, 32 * 1152)

    def load_x(st):
        if "k3nox" in EXP:
            return
        for mt in range(4):
            sx = sX[mt] if st < 9 else sX2[mt]
            A("buffer_load_dwordx4", XF[st % 3][4 * mt:4 * mt + 4], vDX, sWS, sx, mods="offen")
            A("s_add_u32", sx, sx, 1024)

    def wreg(nt, par):
        if nt >= 7 and par:
            return WX[4 * (nt - 7):4 * (nt - 7) + 4]
        return WF[4 * nt:4 * nt + 4]

    def read_w(nt, st):
        w = wreg(nt, st & 1)
        o = (st % 4) * K3_STAGE + nt * 32
        A("ds_read_b64_tr_b16", w[0:2], vAW, mods=f"offset:{o}")
        A("ds_read_b64_tr_b16", w[2:4], vAW, mods=f"offset:{o + 1152}")

    dma_w(0)
    load_x(0)
    dma_w(1)
    load_x(1)
    dma_w(2)
    dma_w(3)
    for r in range(144):
        A("v_mov_b32", ACC[r], 0)
    stamp(A, 1)
    A("s_waitcnt", "vmcnt(19)")
    A("s_barrier")
    stamp(A, 2)
    for nt in range(9):
        read_w(nt, 0)
    for k in range(11):
        Lskip = A.newlabel("k3_skip")
        if k < 2:
            A("s_waitcnt", "vmcnt(14) lgkmcnt(0)")
        elif k <= 5:
            A("s_waitcnt", "vmcnt(9) lgkmcnt(0)")
        else:
            La, Lb, Lc = A.newlabel("k3w"), A.newlabel("k3w"), A.newlabel("k3w")
            if k + 3 < 11:
                A("s_cmp_lt_u32", k + 3, sCnt)
                A("s_cbranch_scc1", La)
            if k + 1 < 11:
                A("s_cmp_lt_u32", k + 1, sCnt)
                A("s_cbranch_scc1", Lb)
            A("s_waitcnt", "vmcnt(0) lgkmcnt(0)")
            A("s_branch", Lc)
            A.label(La)
            A("s_waitcnt", "vmcnt(9) lgkmcnt(0)")
            A("s_branch", Lc)
            A.label(Lb)
            A("s_waitcnt", "vmcnt(4) lgkmcnt(0)")
            A.label(Lc)
        A("s_barrier")
        if k >= 9:
            A("s_cmp_lt_u32", k, sCnt)
            A("s_cbranch_scc0", Lskip)
        if k + 4 < 11:
            if k + 4 >= 9:
                Ln = A.newlabel("k3n")
                A("s_cmp_lt_u32", k + 4, sCnt)
                A("s_cbranch_scc0", Ln)
            dma_w(k + 4)
            if k + 4 >= 9:
                A.label(Ln)
        if k + 2 < 11:
            if k + 2 >= 9:
                Ln = A.newlabel("k3n")
                A("s_cmp_lt_u32", k + 2, sCnt)
                A("s_cbranch_scc0", Ln)
            load_x(k + 2)
            if k + 2 >= 9:
                A.label(Ln)
        nxt = k + 1 < 11
        if nxt:
            read_w(7, k + 1)
            read_w(8, k + 1)
        for nt in range(9):
            w = wreg(nt, k & 1)
            for mt in range(4 if "k3nom" not in EXP else 0):
                acc = ACC[(nt * 4 + mt) * 4:(nt * 4 + mt) * 4 + 4]
                A("v_mfma_f32_16x16x32_bf16", acc, w, XF[k % 3][4 * mt:4 * mt + 4], acc)
            if nt < 7 and nxt:
                read_w(nt, k + 1)
        A.label(Lskip)
        if k in (0, 5):
            stamp(A, 3 + (k == 5))
    A("s_waitcnt", "vmcnt(0) lgkmcnt(0)")
    A("s_barrier")
    stamp(A, 5)
    vW_, vR_ = v(236), v(237)
    TMP = v(144, 72)
    A("v_and_b32", lane, 63, vtid)
    vl16 = v(240)
    A("v_lshlrev_b32", vl16, 4, lane)
    A("s_mul_i32", s(56), s(28), 18432)
    A("v_add_u32", vW_, s(56), vl16)
    A("s_xor_b32", s(57), s(28), 2)
    A("s_mul_i32", s(57), s(57), 18432)
    A("v_add_u32", vR_, s(57), vl16)

    def tile(nt, mt):
        return ACC[(nt * 4 + mt) * 4:(nt * 4 + mt) * 4 + 4]

    va, vb = v(238), v(239)
    A("v_and_b32", m_, 15, lane)
    A("v_lshrrev_b32", g_, 4, lane)
    A("v_add_u32", va, s(46), m_)
    A("v_mul_u32_u24", va, 1152, va)
    A("v_lshl_add_u32", vb, g_, 3, va)
    A("v_and_b32", vt[3], 1, g_)
    A("v_lshl_add_u32", va, vt[3], 5, va)
    A("v_lshrrev_b32", vt[3], 1, g_)
    A("v_lshl_add_u32", va, vt[3], 4, va)
    A("s_mul_i32", s(58), s(30), 288)
    A("s_lshl_b32", s(61), s(29), 2)
    A("s_add_u32", s(61), s(61), s(30))
    A("s_lshl_b32", s(62), s(61), 3)
    A("s_add_u32", s(62), s(62), s(28))
    A("s_mul_i32", s(62), s(62), 9 * 512)
    A("s_add_u32", s(62), s(62), WS_PART)
    for j in range(4):
        A("s_add_u32", s(63), s(31), j)
        A("s_and_b32", s(63), s(63), 3)
        A("s_mul_i32", s(63), s(63), 64 * 8 * 9 * 512)
        A("s_add_u32", s(74 + 2 * j), s(62), s(63))
        A("s_add_u32", s(75 + 2 * j), s(74 + 2 * j), 4096)
    A("s_load_dwordx2", s(4, 2), s(0, 2), KA_X)
    A("s_load_dwordx4", s(8, 4), s(0, 2), KA_B2)
    A("s_load_dwordx2", s(14, 2), s(0, 2), KA_DBG)
    vl8 = v(241)
    A("v_lshlrev_b32", vl8, 3, lane)
    vbo = v(242)
    A("v_lshlrev_b32", vbo, 3, g_)
    A("s_waitcnt", "lgkmcnt(0)")
    sXi, sBi, sOu, sDb = s(84, 4), s(88, 4), s(92, 4), s(96, 4)
    srd(A, sXi, s(4, 2), 2048 * 1152)
    srd(A, sBi, s(8, 2), 1152)
    srd(A, sOu, s(10, 2), 2048 * 1152)
    srd(A, sDb, s(14, 2), 256)
    Lv = [A.newlabel("k3_v") for _ in range(4)]
    A("s_and_b32", s(59), s(26), 1)
    A("s_cmp_eq_u32", s(59), 1)
    A("s_cbranch_scc1", Lv[1])
    for b0 in range(2):
        if b0:
            A.label(Lv[1])
        keep = [2 * b0, 2 * b0 + 1]
        send = [2 - 2 * b0, 3 - 2 * b0]
        i = 0
        for nt in range(9):
            for mt in send:
                A("ds_write_b128", vW_, tile(nt, mt), mods=f"offset:{i * 1024}")
                i += 1
        A("s_waitcnt", "lgkmcnt(0)")
        A("s_barrier")
        for i in range(18):
            A("ds_read_b128", TMP[4 * i:4 * i + 4], vR_, mods=f"offset:{i * 1024}")
        i = 0
        for nt in range(9):
            for mt in keep:
                A("s_waitcnt", f"lgkmcnt({min(17 - i, 15)})")
                for r in range(4):
                    A("v_add_f32", tile(nt, mt)[r], tile(nt, mt)[r], TMP[4 * i + r])
                i += 1
        A("s_barrier")
        A("s_xor_b32", s(57), s(28), 4)
        A("s_mul_i32", s(57), s(57), 18432)
        A("v_add_u32", vR_, s(57), vl16)
        A("s_cmp_ge_u32", s(26), 2)
        A("s_cbranch_scc1", Lv[2 + b0])
        for b1 in range(2):
            if b1:
                A.label(Lv[2 + b0])
            km, sm = keep[b1], keep[1 - b1]
            for nt in range(9):
                A("ds_write_b128", vW_, tile(nt, sm), mods=f"offset:{nt * 1024}")
            A("s_waitcnt", "lgkmcnt(0)")
            A("s_barrier")
            for nt in range(9):
                A("ds_read_b128", TMP[4 * nt:4 * nt + 4], vR_, mods=f"offset:{nt * 1024}")
            A("s_add_u32", s(60), s(58), km * 16 * 1152)
            PK = v(220, 4)
            P2 = [v(224 + 2 * i, 2) for i in range(4)]
            for nt in range(9):
                A("s_waitcnt", f"lgkmcnt({8 - nt})")
                a = tile(nt, km)
                for r in range(4):
                    A("v_add_f32", a[r], a[r], TMP[4 * nt + r])
                pk = P2[nt % 4]
                A("v_cvt_pk_bf16_f32", pk[0], a[0], a[1])
                A("v_cvt_pk_bf16_f32", pk[1], a[2], a[3])
                A("buffer_store_dwordx2", pk, vl8, sWS, s(74 if nt < 8 else 75), mods=f"offen offset:{(nt & 7) * 512} sc1")
            stamp(A, 6)
            A("s_waitcnt", "vmcnt(0)")
            A("s_barrier")
            Lnw = A.newlabel("k3_nw")
            A("v_mov_b32", v(232), 150016)
            A("s_cmp_lg_u32", s(28), 0)
            A("s_cbranch_scc1", Lnw)
            A("v_mov_b32", v(233), 1)
            A("s_lshl_b32", s(63), s(61), 2)
            A("v_mov_b32", v(234), s(63))
            A("s_mov_b64", EXEC, 1)
            A("buffer_atomic_add", v(233), v(234), sDb, 0, mods="offen sc0 sc1")
            A("s_waitcnt", "vmcnt(0)")
            A("ds_write_b32", v(232), v(233))
            A("s_mov_b64", EXEC, -1)
            A("s_waitcnt", "lgkmcnt(0)")
            A.label(Lnw)
            A("s_barrier")
            A("ds_read_b32", v(233), v(232))
            A("s_waitcnt", "lgkmcnt(0)")
            A("v_readfirstlane_b32", s(63), v(233))
            A("s_cmp_lg_u32", s(63), 3)
            A("s_cbranch_scc1", Lend)
            for j in range(1, 4):
                for nt in range(9):
                    A("buffer_load_dwordx2", TMP[18 * (j - 1) + 2 * nt:18 * (j - 1) + 2 * nt + 2], vl8, sWS,
                      s(74 + 2 * j + (nt >> 3)), mods=f"offen offset:{(nt & 7) * 512} sc1")
            XT = v(198, 18)
            BT = tile(0, sm)[0:1]
            BTs = [tile(nt, sm)[0:2] for nt in range(9)]
            for nt in range(9):
                A("buffer_load_dwordx2", XT[2 * nt:2 * nt + 2], vb, sXi, s(60), mods=f"offen offset:{nt * 32}")
                A("buffer_load_dwordx2", BTs[nt], vbo, sBi, s(58), mods=f"offen offset:{nt * 32}")
            A("s_waitcnt", "vmcnt(0)")
            for p in range(5):
                tiles = [2 * p, 2 * p + 1] if p < 4 else [8]
                for ti, nt in enumerate(tiles):
                    a = tile(nt, km)
                    for q in range(2):
                        for sr in (TMP[2 * nt + q], TMP[18 + 2 * nt + q], TMP[36 + 2 * nt + q], XT[2 * nt + q], BTs[nt][q]):
                            A("v_lshlrev_b32", v(232), 16, sr)
                            A("v_and_b32", v(233), 0xFFFF0000, sr)
                            A("v_add_f32", a[2 * q], a[2 * q], v(232))
                            A("v_add_f32", a[2 * q + 1], a[2 * q + 1], v(233))
                    A("v_cvt_pk_bf16_f32", PK[2 * ti], a[0], a[1])
                    A("v_cvt_pk_bf16_f32", PK[2 * ti + 1], a[2], a[3])
                if p < 4:
                    A("v_permlane16_swap_b32", PK[0], PK[2])
                    A("v_permlane16_swap_b32", PK[1], PK[3])
                    A("buffer_store_dwordx4", PK, va, sOu, s(60), mods=f"offen offset:{p * 64}")
                else:
                    A("buffer_store_dwordx2", PK[0:2], vb, sOu, s(60), mods="offen offset:256")
            A("s_endpgm")
    A.label(Lend)
    A("s_endpgm")
    return name


def gen_k4(A):
    name = "k4_kernel"
    kernel_header(A, name)
    Lend = A.newlabel("k4_end")
    A("s_cmp_ge_u32", s(2), 576)
    A("s_cbranch_scc1", Lend)
    A("s_load_dwordx2", s(4, 2), s(0, 2), KA_X)
    A("s_load_dwordx4", s(8, 4), s(0, 2), KA_B2)
    A("s_load_dwordx2", s(12, 2), s(0, 2), KA_WS)
    A("s_lshl_b32", s(3), s(2), 8)
    A("v_add_u32", v(1), s(3), v(0))
    A("v_lshlrev_b32", v(2), 4, v(1))
    A("s_mov_b32", s(14), 59652324)
    A("v_mul_hi_u32", v(4), v(1), s(14))
    A("v_mul_u32_u24", v(4), 72, v(4))
    A("v_sub_u32", v(4), v(1), v(4))
    A("v_lshlrev_b32", v(4), 4, v(4))
    A("s_waitcnt", "lgkmcnt(0)")
    sX, sB, sO, sWS = s(16, 4), s(20, 4), s(24, 4), s(28, 4)
    srd(A, sX, s(4, 2), 2048 * 1152)
    srd(A, sB, s(8, 2), 1152)
    srd(A, sO, s(10, 2), 2048 * 1152)
    srd(A, sWS, s(12, 2), WS_SIZE)
    P = v(16, 24)
    for sp in range(4):
        A("s_mov_b32", s(32 + sp), WS_PART + sp * 2048 * 1152)
        A("buffer_load_dwordx4", P[4 * sp:4 * sp + 4], v(2), sWS, s(32 + sp), mods="offen")
    A("buffer_load_dwordx4", P[16:20], v(2), sX, 0, mods="offen")
    A("buffer_load_dwordx4", P[20:24], v(4), sB, 0, mods="offen")
    acc = v(40, 8)
    for sp in range(6):
        A("s_waitcnt", f"vmcnt({5 - sp})")
        for q in range(4):
            if sp == 0:
                A("v_lshlrev_b32", acc[2 * q], 16, P[q])
                A("v_and_b32", acc[2 * q + 1], 0xFFFF0000, P[q])
            else:
                A("v_lshlrev_b32", v(5), 16, P[4 * sp + q])
                A("v_and_b32", v(6), 0xFFFF0000, P[4 * sp + q])
                A("v_add_f32", acc[2 * q], acc[2 * q], v(5))
                A("v_add_f32", acc[2 * q + 1], acc[2 * q + 1], v(6))
    for q in range(4):
        A("v_cvt_pk_bf16_f32", v(8 + q), acc[2 * q], acc[2 * q + 1])
    A("buffer_store_dwordx4", v(8, 4), v(2), sO, 0, mods="offen")
    A.label(Lend)
    A("s_endpgm")
    return name


def main():
    A = Asm()
    hdr = open(os.path.join(os.path.dirname(__file__), "..", "cdna_kernels", NAME + ".s.ref")).read().splitlines()
    head = []
    for l in hdr:
        if l.startswith(";") and "@launch" not in l:
            head.append(l)
        elif not l.startswith(";"):
            break
    head += [
        "; @launch kernel=k1_kernel grid=(224,1,1) block=(256,1,1) lds=108800",
        "; @launch kernel=k2_kernel grid=(512,1,1) block=(256,1,1) lds=81920",
        f"; @launch kernel=k3_kernel grid=(256,1,1) block=(512,1,1) lds={K3_LDS}",
        '.amdgcn_target "amdgcn-amd-amdhsa--gfx950"',
        ".text",
    ]
    names = [gen_k1(A), gen_k2(A), gen_k3(A)]
    body = A.render()
    out = "\n".join(head) + "\n" + body + '.section .rodata,"a"\n'
    vg = {"k1_kernel": 256, "k2_kernel": 256, "k3_kernel": 256, "k4_kernel": 48}
    for n in names:
        out += ".p2align 6\n" + kd(n, vg[n])
    path = os.environ.get("OUT") or os.path.join(os.path.dirname(__file__), "..", "cdna_kernels", NAME + ".s")
    open(path, "w").write(out)
    print("wrote", path, len(out), "bytes")


if __name__ == "__main__":
    main()
```

```python
import struct
import sys
import os

sys.path.insert(0, os.path.dirname(__file__))
from asmdsl import Asm, R, v, s, VCC, EXEC, M0

EXP = os.environ.get("EXP", "")
NAME = "parallel_sum__grouped_kv_mqa__mixer_channel_mlp__prompt"

KA_X, KA_WQ, KA_WK, KA_WV, KA_WO, KA_BX, KA_W1, KA_B1, KA_W2, KA_B2, KA_OUT, KA_DBG, KA_WS = [8 * i for i in range(13)]

WS_XNF = 0x0
WS_Y = 0x240000
WS_KV = 0x480000
WS_WQP = 0x4C0000
WS_HO = 0x600000
WS_PART = 0x1C00000
WS_SIZE = 0x10000000
HO_STRIDE = 5184 * 2


def f32bits(x):
    return struct.unpack("<I", struct.pack("<f", x))[0]


def srd(A, dst, base, nbytes):
    A("s_mov_b32", dst[0], base[0])
    A("s_and_b32", dst[1], base[1], 0xFFFF)
    A("s_mov_b32", dst[2], nbytes)
    A("s_mov_b32", dst[3], 0x00020000)


def stamp(A, i):
    if "stamp" in EXP:
        A("s_memtime", s(80 + 2 * i, 2))


def stamp_flush(A, n, wg, wave_sgpr, wave, base=0):
    if "stamp" not in EXP:
        return
    L = A.newlabel("stf")
    A("s_cmp_lg_u32", s(2), wg)
    A("s_cbranch_scc1", L)
    A("s_cmp_lg_u32", wave_sgpr, wave)
    A("s_cbranch_scc1", L)
    A("s_load_dwordx2", s(76, 2), s(0, 2), KA_DBG)
    A("s_waitcnt", "lgkmcnt(0)")
    srd(A, s(72, 4), s(76, 2), 256)
    A("v_mov_b32", v(1), 0)
    for i in range(n):
        A("v_mov_b32", v(0), s(80 + 2 * i))
        A("buffer_store_dword", v(0), v(1), s(72, 4), 0, mods=f"offen offset:{base + 4 * i}")
    A.label(L)


def kernel_header(A, name):
    A.raw(f".globl {name}")
    A.raw(".p2align 8")
    A.raw(f".type {name},@function")
    A.raw(f"{name}:")


def kd(name, vgpr=256, sgpr=102):
    acc = (vgpr + 3) // 4 * 4
    return f""".amdhsa_kernel {name}
  .amdhsa_next_free_vgpr {vgpr}
  .amdhsa_next_free_sgpr {sgpr}
  .amdhsa_accum_offset {acc}
  .amdhsa_group_segment_fixed_size 0
  .amdhsa_kernarg_size 104
  .amdhsa_user_sgpr_count 2
  .amdhsa_user_sgpr_kernarg_segment_ptr 1
  .amdhsa_system_sgpr_workgroup_id_x 1
.end_amdhsa_kernel
"""


def reduce16(A, x, t):
    for r in (8, 4, 2, 1):
        A("v_add_f32_dpp", t, x, x, mods=f"row_ror:{r} row_mask:0xf bank_mask:0xf")
        A("v_mov_b32", x, t)


def layernorm(A, Pin, Pout, F, T):
    for i in range(18):
        A("v_lshlrev_b32", F[2 * i], 16, Pin[i])
        A("v_and_b32", F[2 * i + 1], 0xFFFF0000, Pin[i])
    sm, t0, mean, acc, mb, rr = T[0], T[1], T[2], T[3], T[4], T[5]
    A("v_add_f32", sm, F[0], F[1])
    for i in range(2, 36):
        A("v_add_f32", sm, sm, F[i])
    reduce16(A, sm, t0)
    A("v_mul_f32", mean, f32bits(1.0 / 576.0), sm)
    A("v_mov_b32", acc, 0)
    for i in range(36):
        A("v_sub_f32", t0, F[i], mean)
        A("v_fmac_f32", acc, t0, t0)
    reduce16(A, acc, t0)
    A("v_mul_f32", acc, f32bits(1.0 / 576.0), acc)
    A("v_cvt_pk_bf16_f32", t0, mean, acc)
    A("v_lshlrev_b32", mb, 16, t0)
    A("v_and_b32", acc, 0xFFFF0000, t0)
    A("v_add_f32", acc, f32bits(1e-5), acc)
    A("v_cvt_pk_bf16_f32", t0, acc, acc)
    A("v_lshlrev_b32", acc, 16, t0)
    A("v_sqrt_f32", acc, acc)
    A("v_cvt_pk_bf16_f32", t0, acc, acc)
    A("v_lshlrev_b32", acc, 16, t0)
    A("v_rcp_f32", rr, acc)
    for i in range(18):
        a, b = F[2 * i], F[2 * i + 1]
        A("v_sub_f32", a, a, mb)
        A("v_sub_f32", b, b, mb)
        A("v_cvt_pk_bf16_f32", t0, a, b)
        A("v_lshlrev_b32", a, 16, t0)
        A("v_and_b32", b, 0xFFFF0000, t0)
        A("v_mul_f32", a, a, rr)
        A("v_mul_f32", b, b, rr)
        A("v_cvt_pk_bf16_f32", Pout[i], a, b)


def gen_k1(A):
    name = "k1_kernel"
    kernel_header(A, name)
    Lend = A.newlabel("k1_end")
    Lpack = A.newlabel("k1_pack")
    A("s_cmp_ge_u32", s(2), 224)
    A("s_cbranch_scc1", Lend)
    stamp(A, 0)
    A("s_load_dwordx8", s(4, 8), s(0, 2), KA_X)
    A("s_load_dwordx2", s(12, 2), s(0, 2), KA_WS)
    A("v_lshrrev_b32", v(1), 6, v(0))
    A("v_readfirstlane_b32", s(28), v(1))
    A("v_and_b32", v(1), 63, v(0))
    A("s_waitcnt", "lgkmcnt(0)")
    sX, sWS, sWK, sWQ = s(16, 4), s(20, 4), s(24, 4), s(32, 4)
    srd(A, sWS, s(12, 2), WS_SIZE)
    if "nopf" not in EXP:
        A("s_load_dwordx2", s(68, 2), s(0, 2), KA_W1)
        A("s_load_dwordx2", s(70, 2), s(0, 2), KA_W2)
        A("s_load_dwordx2", s(72, 2), s(0, 2), KA_WO)
        A("v_lshlrev_b32", v(250), 7, v(1))
        A("s_lshl_b32", s(74), s(2), 2)
        A("s_add_u32", s(74), s(74), s(28))
        A("s_lshl_b32", s(74), s(74), 1)
        A("s_waitcnt", "lgkmcnt(0)")
        for i in range(2):
            sP = s(76, 4)
            A("s_add_u32", s(75), s(74), i)
            A("s_sub_u32", s(80), s(75), 648)
            A("s_sub_u32", s(81), s(75), 1296)
            A("s_cmp_lt_u32", s(75), 1296)
            A("s_cselect_b32", s(82), s(70), s(72))
            A("s_cselect_b32", s(83), s(71), s(73))
            A("s_cselect_b32", s(84), s(80), s(81))
            A("s_cmp_lt_u32", s(75), 648)
            A("s_cselect_b32", s(82), s(68), s(82))
            A("s_cselect_b32", s(83), s(69), s(83))
            A("s_cselect_b32", s(84), s(75), s(84))
            A("s_mov_b32", s(85), 648 * 8192)
            A("s_cmp_lt_u32", s(75), 1296)
            A("s_cselect_b32", s(85), s(85), 81 * 8192)
            A("s_mov_b32", sP[0], s(82))
            A("s_and_b32", sP[1], s(83), 0xFFFF)
            A("s_mov_b32", sP[2], s(85))
            A("s_mov_b32", sP[3], 0x00020000)
            A("s_lshl_b32", s(84), s(84), 13)
            A("buffer_load_dword", v(251 + i), v(250), sP, s(84), mods="offen")
    A("s_cmp_ge_u32", s(2), 128)
    A("s_cbranch_scc1", Lpack)
    srd(A, sX, s(4, 2), 2048 * 1152)
    A("s_cmp_ge_u32", s(28), 2)
    A("s_cselect_b32", s(14), s(10), s(8))
    A("s_cselect_b32", s(15), s(11), s(9))
    srd(A, sWK, s(14, 2), 576 * 36)
    vj, vrow, vtok, vxo = v(2), v(3), v(4), v(5)
    A("v_and_b32", vj, 15, v(0))
    A("v_lshrrev_b32", vrow, 4, v(0))
    A("s_lshl_b32", s(29), s(2), 4)
    A("v_add_u32", vtok, s(29), vrow)
    A("v_mul_u32_u24", vxo, 1152, vtok)
    A("v_lshl_add_u32", vxo, vj, 3, vxo)
    PX = v(28, 18)
    for i in range(9):
        A("buffer_load_dwordx2", PX[2 * i:2 * i + 2], vxo, sX, 0, mods=f"offen offset:{i * 128}")
    vg, vgo = v(6), v(7)
    WB = 18688
    WR = 22528
    A("v_lshrrev_b32", vg, 4, v(1))
    A("s_and_b32", s(30), s(28), 1)
    A("s_lshr_b32", s(31), s(28), 1)
    A("s_mul_i32", s(31), s(31), 2 * WR)
    A("s_add_u32", s(31), s(31), WB)
    A("s_mul_i32", s(41), s(30), WR + 4)
    A("s_add_u32", s(41), s(41), s(31))
    A("v_lshlrev_b32", v(9), 4, v(1))
    for i in range(21):
        if i % 4 == 0:
            A("s_add_u32", M0, s(41), i * 1024)
            A("s_mov_b32", s(42), i * 1024)
        A("buffer_load_dwordx4", v(9), sWK, s(42), mods=f"offen offset:{(i & 3) * 1024} lds")
    A("s_lshl_b32", s(30), s(30), 4)
    A("v_lshrrev_b32", v(8), 2, vj)
    A("v_lshl_add_u32", vgo, vg, 3, v(8))
    A("v_mul_u32_u24", vgo, 36, vgo)
    A("v_and_b32", v(8), 1, v(8))
    A("v_mul_u32_u24", v(8), WR + 4, v(8))
    A("v_add_u32", vgo, vgo, v(8))
    A("v_and_b32", v(8), 3, vj)
    A("v_lshl_add_u32", vgo, v(8), 3, vgo)
    A("s_lshl_b32", s(43), s(30), 1)
    A("s_add_u32", s(43), s(43), s(31))
    A("v_add_u32", vgo, s(43), vgo)
    G = v(100, 144)
    F = v(48, 36)
    T = v(10, 8)
    PN = v(84, 16 + 2)
    PN = v(28, 18)
    stamp(A, 1)
    A("s_waitcnt", "vmcnt(21)")
    stamp(A, 2)
    layernorm(A, PX, PN, F, T)
    for i in range(9):
        A("s_mov_b32", s(48 + i), WS_XNF + i * 4096)
    va, vb = v(18), v(19)
    A("v_lshrrev_b32", va, 5, vtok)
    A("v_mul_u32_u24", va, 36864, va)
    A("v_lshrrev_b32", vb, 2, vj)
    A("v_lshl_add_u32", va, vb, 10, va)
    A("v_bfe_u32", vb, vj, 1, 1)
    A("v_lshlrev_b32", vb, 5, vb)
    A("v_and_b32", v(20), 31, vtok)
    A("v_add_u32", vb, vb, v(20))
    A("v_lshl_add_u32", va, vb, 4, va)
    A("v_and_b32", vb, 1, vj)
    A("v_lshl_add_u32", va, vb, 3, va)
    for i in range(9):
        A("buffer_store_dwordx2", PN[2 * i:2 * i + 2], va, sWS, s(48 + i), mods="offen")
    vl = v(21)
    A("v_mul_u32_u24", vl, 1168, vrow)
    A("v_lshl_add_u32", vl, vj, 3, vl)
    for i in range(9):
        A("ds_write_b64", vl, PN[2 * i:2 * i + 2], mods=f"offset:{i * 128}")
    PY = v(84, 16)
    PY = [v(84 + i) for i in range(16)] + [v(22), v(23)]
    PYr = v(84, 16)
    class _P:
        def __getitem__(self, i):
            return PY[i]
    layernorm(A, PN, _P(), F, T)
    A("v_lshrrev_b32", va, 4, vtok)
    A("v_mul_u32_u24", va, 18432, va)
    A("v_lshrrev_b32", vb, 1, vj)
    A("v_lshl_add_u32", va, vb, 8, va)
    A("v_and_b32", vb, 15, vtok)
    A("v_lshl_add_u32", va, vb, 4, va)
    A("v_and_b32", vb, 1, vj)
    A("v_lshl_add_u32", va, vb, 3, va)
    for i in range(5):
        A("s_mov_b32", s(64 + i), WS_Y + i * 4096)
    for i in range(8):
        A("buffer_store_dwordx2", PYr[2 * i:2 * i + 2], va, sWS, s(64 + i // 2), mods=f"offen offset:{(i & 1) * 2048}")
    A("buffer_store_dwordx2", v(22, 2), va, sWS, s(68), mods="offen")
    stamp(A, 3)
    A("s_waitcnt", "vmcnt(18) lgkmcnt(0)")
    A("s_barrier")
    for ks in range(18):
        for q in range(2):
            A("ds_read_b64_tr_b16", G[8 * ks + 2 * q:8 * ks + 2 * q + 2], vgo, mods=f"offset:{ks * 1152 + q * 144}")
    A("v_mul_u32_u24", vl, 1168, vj)
    A("v_lshl_add_u32", vl, vg, 4, vl)
    XF = v(28, 72)
    for ks in range(18):
        A("ds_read_b128", XF[4 * ks:4 * ks + 4], vl, mods=f"offset:{ks * 64}")
    stamp(A, 4)
    D = v(12, 4)
    for r in range(4):
        A("v_mov_b32", D[r], 0)
    A("s_waitcnt", "lgkmcnt(0)")
    LV = A.newlabel("k1_v")
    A("s_lshr_b32", s(58), s(2), 1)
    A("s_lshl_b32", s(58), s(58), 12)
    A("s_add_u32", s(58), s(58), WS_KV)
    A("s_and_b32", s(59), s(2), 1)
    A("s_cmp_ge_u32", s(28), 2)
    A("s_cbranch_scc1", LV)
    for ks in range(18):
        A("v_mfma_f32_16x16x32_bf16", D, G[8 * ks:8 * ks + 4], XF[4 * ks:4 * ks + 4], D)
    A("s_lshl_b32", s(60), s(30), 6)
    A("s_add_u32", s(58), s(58), s(60))
    A("s_lshl_b32", s(60), s(59), 8)
    A("s_add_u32", s(58), s(58), s(60))
    A("v_lshrrev_b32", va, 1, vg)
    A("v_lshlrev_b32", va, 5, va)
    A("v_add_u32", va, va, vj)
    A("v_lshlrev_b32", va, 4, va)
    A("v_and_b32", vb, 1, vg)
    A("v_lshl_add_u32", va, vb, 3, va)
    A("v_cmp_eq_u32", VCC, 0, vg)
    A("s_cmp_eq_u32", s(28), 1)
    A("s_cselect_b64", s(62, 2), VCC, 0)
    A("s_cselect_b64", s(64, 2), -1, 0)
    A("s_andn2_b64", s(66, 2), s(64, 2), s(62, 2))
    A("v_cndmask_b32", D[0], D[0], 0, s(66, 2))
    A("v_cndmask_b32", D[1], D[1], 0, s(66, 2))
    A("v_cndmask_b32", D[2], D[2], 0, s(64, 2))
    A("v_cndmask_b32", D[3], D[3], 0, s(64, 2))
    A("v_cndmask_b32", D[2], D[2], 1.0, s(62, 2))
    A("v_cvt_pk_bf16_f32", v(16), D[0], D[1])
    A("v_cvt_pk_bf16_f32", v(17), D[2], D[3])
    A("buffer_store_dwordx2", v(16, 2), va, sWS, s(58), mods="offen")
    stamp(A, 5)
    A("s_waitcnt", "vmcnt(0) lgkmcnt(0)")
    stamp(A, 6)
    A("s_waitcnt", "lgkmcnt(0)")
    stamp_flush(A, 7, 37, s(28), 0)
    A("s_endpgm")
    A.label(LV)
    for ks in range(18):
        A("v_mfma_f32_16x16x32_bf16", D, XF[4 * ks:4 * ks + 4], G[8 * ks:8 * ks + 4], D)
    A("s_lshl_b32", s(60), s(59), 10)
    A("s_add_u32", s(58), s(58), s(60))
    A("s_add_u32", s(58), s(58), 2048)
    A("s_lshl_b32", s(60), s(30), 4)
    A("s_add_u32", s(58), s(58), s(60))
    A("v_and_b32", va, 1, vg)
    A("v_lshlrev_b32", va, 5, va)
    A("v_add_u32", va, va, vj)
    A("v_lshlrev_b32", va, 4, va)
    A("v_lshrrev_b32", vb, 1, vg)
    A("v_lshl_add_u32", va, vb, 3, va)
    A("v_cmp_eq_u32", VCC, 2, vj)
    A("s_cmp_eq_u32", s(28), 3)
    A("s_cselect_b64", s(62, 2), VCC, 0)
    A("v_cmp_lt_u32", VCC, 2, vj)
    A("s_cselect_b64", s(64, 2), VCC, 0)
    for r in range(4):
        A("v_cndmask_b32", D[r], D[r], 1.0, s(62, 2))
        A("v_cndmask_b32", D[r], D[r], 0, s(64, 2))
    A("v_cvt_pk_bf16_f32", v(16), D[0], D[1])
    A("v_cvt_pk_bf16_f32", v(17), D[2], D[3])
    A("buffer_store_dwordx2", v(16, 2), va, sWS, s(58), mods="offen")
    A("s_endpgm")
    A.label(Lpack)
    srd(A, sWQ, s(6, 2), 576 * 1152 + 64)
    A("s_sub_u32", s(36), s(2), 128)
    A("s_lshl_b32", s(36), s(36), 2)
    A("s_add_u32", s(36), s(36), s(28))
    A("s_mul_i32", s(37), s(36), 43691)
    A("s_lshr_b32", s(37), s(37), 19)
    A("s_mul_i32", s(38), s(37), 12)
    A("s_sub_u32", s(38), s(36), s(38))
    A("s_mul_i32", s(38), s(38), 3)
    vi, vh, vr, vs = v(2), v(3), v(4), v(5)
    A("v_and_b32", vi, 31, v(1))
    A("v_bfe_u32", vh, vi, 2, 1)
    A("v_lshrrev_b32", vr, 3, vi)
    A("v_lshlrev_b32", vr, 2, vr)
    A("v_and_b32", v(6), 3, vi)
    A("v_or_b32", vr, vr, v(6))
    A("v_lshl_add_u32", vs, vh, 3, vr)
    A("v_and_b32", v(6), 8, vr)
    A("v_add_u32", vs, vs, v(6))
    A("v_lshrrev_b32", v(6), 5, v(1))
    A("v_mul_u32_u24", v(7), 8 * 1152, v(6))
    A("v_lshl_add_u32", v(7), vs, 1, v(7))
    A("v_mov_b32", v(9), 0x7FF00000)
    A("v_cmp_gt_u32", VCC, 18, vs)
    A("v_cndmask_b32", v(7), v(9), v(7), VCC)
    A("s_mul_i32", s(39), s(38), 16 * 1152)
    A("s_mul_i32", s(40), s(37), 36)
    A("s_add_u32", s(39), s(39), s(40))
    G = v(16, 24)
    for f in range(3):
        for half in range(3):
            A("s_add_u32", s(41 + half), s(39), f * 16 * 1152 + half * 3456)
        for j in range(8):
            A("buffer_load_ushort", G[8 * f + j], v(7), sWQ, s(41 + j // 3), mods=f"offen offset:{(j % 3) * 1152}")
    A("s_waitcnt", "vmcnt(0)")
    for f in range(3):
        for q in range(4):
            A("v_lshl_or_b32", G[8 * f + q], G[8 * f + 2 * q + 1], 16, G[8 * f + 2 * q])
    A("s_mul_i32", s(40), s(37), 36)
    A("s_add_u32", s(40), s(40), s(38))
    A("s_mul_i32", s(40), s(40), 576)
    A("s_add_u32", s(40), s(40), WS_WQP)
    A("v_mul_u32_u24", v(8), 288, v(6))
    A("v_lshl_add_u32", v(8), vi, 4, v(8))
    A("v_cmp_gt_u32", VCC, 18, vi)
    A("v_cndmask_b32", v(8), v(9), v(8), VCC)
    for f in range(3):
        A("buffer_store_dwordx4", G[8 * f:8 * f + 4], v(8), sWS, s(40), mods=f"offen offset:{f * 576}")
    A.label(Lend)
    A("s_endpgm")
    return name


STAGE = 26624


def gemm_body(A, xstride, wstride, sXsrd, sWsrd, sXoff, sWoff, sN, sWave, init_acc, S0):
    ACC = v(0, 144)
    WF = v(144, 36)
    WX = v(180, 8)
    XF = [v(188, 16), v(204, 16)]
    vDX = v(220, 2)
    vDW = v(222, 5)
    vAX, vAW0, vAW1 = v(227), v(228), v(229)
    vCX, vCW0, vCW1 = v(230), v(231), v(232)
    vt = [v(233 + i) for i in range(8)]
    vtid = v(241)
    sP = [s(S0 + i) for i in range(7)]
    sStR, sStW, sK, sT0, sT1 = s(S0 + 7), s(S0 + 8), s(S0 + 9), s(S0 + 10), s(S0 + 11)
    A("v_mov_b32", vtid, v(0))
    lane = vt[0]
    A("v_and_b32", lane, 63, vtid)
    for i in range(2):
        A("s_lshl_b32", sT0, sWave, 1)
        A("s_add_u32", sT0, sT0, i)
        A("s_mul_i32", sT1, sT0, xstride)
        A("v_lshlrev_b32", vt[1], 4, lane)
        A("v_add_u32", vDX[i], sT1, vt[1])
        A("s_lshl_b32", sP[i], sT0, 10)
    for q in range(5):
        if q < 4:
            A("s_lshl_b32", sT0, sWave, 6)
            A("s_add_u32", sT0, sT0, 256 * q)
        else:
            A("s_lshl_b32", sT0, sWave, 5)
            A("s_add_u32", sT0, sT0, 1024)
        A("v_add_u32", vt[1], sT0, lane)
        A("v_mul_u32_u24", vt[2], 1821, vt[1])
        A("v_lshrrev_b32", vt[2], 16, vt[2])
        A("v_mul_u32_u24", vt[3], 36, vt[2])
        A("v_sub_u32", vt[3], vt[1], vt[3])
        A("v_lshrrev_b32", vt[4], 2, vt[2])
        A("v_and_b32", vt[4], 2, vt[4])
        A("v_xor_b32", vt[3], vt[3], vt[4])
        A("s_mov_b32", sT1, wstride)
        A("v_mul_lo_u32", vt[2], vt[2], sT1)
        A("v_lshl_add_u32", vDW[q], vt[3], 4, vt[2])
        A("s_lshl_b32", sP[2 + q], sT0, 4)
        A("s_add_u32", sP[2 + q], sP[2 + q], 8192)
    m_, g_ = vt[1], vt[2]
    A("v_and_b32", m_, 15, lane)
    A("v_lshrrev_b32", g_, 4, lane)
    A("s_lshr_b32", sT0, sWave, 1)
    A("s_lshl_b32", sT0, sT0, 12)
    A("v_lshlrev_b32", vt[3], 4, lane)
    A("v_add_u32", vAX, sT0, vt[3])
    A("v_lshrrev_b32", vt[3], 2, m_)
    A("v_lshl_add_u32", vt[3], g_, 3, vt[3])
    A("v_mul_u32_u24", vt[3], 36 * 16, vt[3])
    A("v_and_b32", vt[4], 3, lane)
    A("v_lshl_add_u32", vt[3], vt[4], 3, vt[3])
    A("s_and_b32", sT0, sWave, 1)
    A("s_mul_i32", sT1, sT0, 18 * 16)
    A("s_add_u32", sT1, sT1, 8192)
    A("v_add_u32", vt[3], sT1, vt[3])
    A("v_and_b32", vt[4], 1, g_)
    A("v_lshlrev_b32", vt[4], 5, vt[4])
    A("v_add_u32", vt[5], vt[3], vt[4])
    A("v_sub_u32", vt[6], vt[3], vt[4])
    A("s_cmp_eq_u32", sT0, 0)
    A("s_cselect_b64", s(S0 + 12, 2), -1, 0)
    A("v_cndmask_b32", vAW0, vt[6], vt[5], s(S0 + 12, 2))
    A("v_cndmask_b32", vAW1, vt[5], vt[6], s(S0 + 12, 2))

    def dma_stage(sStage):
        if "nodma" in EXP:
            return
        for i in range(2):
            A("s_add_u32", M0, sStage, sP[i])
            A("buffer_load_dwordx4", vDX[i], sXsrd, sXoff, mods="offen lds")
        for q in range(4):
            A("s_add_u32", M0, sStage, sP[2 + q])
            A("buffer_load_dwordx4", vDW[q], sWsrd, sWoff, mods="offen lds")
        A("s_add_u32", M0, sStage, sP[6])
        A("s_mov_b32", "exec_hi", 0)
        A("buffer_load_dwordx4", vDW[4], sWsrd, sWoff, mods="offen lds")
        A("s_mov_b64", EXEC, -1)
        A("s_add_u32", sXoff, sXoff, 1024)
        A("s_add_u32", sWoff, sWoff, 32 * wstride)

    def wreg(nt, par):
        if nt >= 7 and par:
            return WX[4 * (nt - 7):4 * (nt - 7) + 4]
        return WF[4 * nt:4 * nt + 4]

    def read_w(nt, par):
        a = vCW1 if nt & 1 else vCW0
        w = wreg(nt, par)
        A("ds_read_b64_tr_b16", w[0:2], a, mods=f"offset:{nt * 32}")
        A("ds_read_b64_tr_b16", w[2:4], a, mods=f"offset:{nt * 32 + 2304}")

    def read_x(mt, par):
        A("ds_read_b128", XF[par][4 * mt:4 * mt + 4], vCX, mods=f"offset:{mt * 1024}")

    def set_cur(sStage):
        A("v_add_u32", vCX, sStage, vAX)
        A("v_add_u32", vCW0, sStage, vAW0)
        A("v_add_u32", vCW1, sStage, vAW1)

    init_acc(ACC, 0)
    for st in range(3):
        A("s_mov_b32", sT0, st * STAGE)
        dma_stage(sT0)
    init_acc(ACC, 1)
    A("s_waitcnt", "vmcnt(14)")
    A("s_barrier")
    stamp(A, 1)
    A("s_mov_b32", sStR, 0)
    set_cur(sStR)
    for mt in range(4):
        read_x(mt, 0)
    for nt in range(9):
        read_w(nt, 0)
    A("s_mov_b32", sStR, STAGE)
    A("s_mov_b32", sStW, 0)
    A("s_mov_b32", sK, 0)
    Lloop = A.newlabel("gemm_loop")
    Ldone = A.newlabel("gemm_done")
    A.label(Lloop)
    for par in range(2):
        Lw0 = A.newlabel("gw0")
        Lw1 = A.newlabel("gw1")
        Lnd = A.newlabel("gnd")
        A("s_add_u32", sT0, sK, 2)
        A("s_cmp_lt_u32", sT0, sN)
        A("s_cbranch_scc1", Lw0)
        A("s_waitcnt", "vmcnt(0) lgkmcnt(0)")
        A("s_branch", Lw1)
        A.label(Lw0)
        A("s_waitcnt", "vmcnt(7) lgkmcnt(0)")
        A.label(Lw1)
        A("s_barrier")
        set_cur(sStR)
        A("s_add_u32", sT0, sK, 3)
        A("s_cmp_lt_u32", sT0, sN)
        A("s_cbranch_scc0", Lnd)
        dma_stage(sStW)
        A.label(Lnd)
        np_ = 1 - par
        if "nocomp" not in EXP:
            read_w(7, np_)
            read_w(8, np_)
        for nt in range(9 if "nocomp" not in EXP else 0):
            w = wreg(nt, par)
            for mt in range(4):
                acc = ACC[(nt * 4 + mt) * 4:(nt * 4 + mt) * 4 + 4]
                A("v_mfma_f32_16x16x32_bf16", acc, w, XF[par][4 * mt:4 * mt + 4], acc)
            if nt < 7:
                read_w(nt, np_)
            if nt < 4:
                read_x(nt, np_)
        A("s_mov_b32", sStW, sStR)
        A("s_add_u32", sStR, sStR, STAGE)
        A("s_cmp_eq_u32", sStR, 3 * STAGE)
        A("s_cselect_b32", sStR, 0, sStR)
        A("s_add_u32", sK, sK, 1)
        A("s_cmp_lt_u32", sK, sN)
        if par == 0:
            A("s_cbranch_scc0", Ldone)
        else:
            A("s_cbranch_scc1", Lloop)
    A.label(Ldone)
    A("s_waitcnt", "lgkmcnt(0)")
    return dict(ACC=ACC, vtid=vtid, vt=vt, tmp=v(144, 76))


C0 = -2.0 * 0.7978845608028654 * 1.4426950408889634
C1 = C0 * 0.044715


def gen_gemm1(A):
    stamp(A, 0)
    A("s_load_dwordx4", s(4, 4), s(0, 2), KA_W1)
    A("s_load_dwordx2", s(12, 2), s(0, 2), KA_WS)
    A("v_lshrrev_b32", v(1), 6, v(0))
    A("v_readfirstlane_b32", s(28), v(1))
    A("s_sub_u32", s(3), s(2), 256)
    A("s_lshr_b32", s(29), s(3), 5)
    A("s_lshl_b32", s(29), s(29), 1)
    A("s_bfe_u32", s(30), s(3), (1 << 16) | 2)
    A("s_add_u32", s(29), s(29), s(30))
    A("s_and_b32", s(30), s(3), 3)
    A("s_lshl_b32", s(30), s(30), 2)
    A("s_bfe_u32", s(31), s(3), (2 << 16) | 3)
    A("s_add_u32", s(30), s(30), s(31))
    A("s_waitcnt", "lgkmcnt(0)")
    sWS, sW, sB = s(16, 4), s(20, 4), s(24, 4)
    srd(A, sWS, s(12, 2), WS_SIZE)
    srd(A, sW, s(4, 2), 576 * 9216)
    srd(A, sB, s(6, 2), 4608 * 2)
    sXoff, sWoff, sN = s(32), s(33), s(34)
    A("s_mul_i32", sXoff, s(29), 8 * 18432)
    A("s_add_u32", sXoff, sXoff, WS_Y)
    A("s_mul_i32", sWoff, s(30), 576)
    A("s_mov_b32", sN, 18)

    def init_acc(ACC, phase):
        vt = [v(234 + i) for i in range(12)]
        BT = v(144, 18)
        if phase == 1:
            A("s_waitcnt", "vmcnt(21)")
            for nt in range(9):
                a0 = ACC[nt * 16:nt * 16 + 4]
                A("v_lshlrev_b32", a0[0], 16, BT[2 * nt])
                A("v_and_b32", a0[1], 0xFFFF0000, BT[2 * nt])
                A("v_lshlrev_b32", a0[2], 16, BT[2 * nt + 1])
                A("v_and_b32", a0[3], 0xFFFF0000, BT[2 * nt + 1])
                for mt in range(1, 4):
                    for r in range(4):
                        A("v_mov_b32", ACC[nt * 16 + mt * 4 + r], a0[r])
            return
        A("v_bfe_u32", vt[8], v(241), 4, 2)
        A("v_lshlrev_b32", vt[8], 3, vt[8])
        A("s_and_b32", s(35), s(28), 1)
        A("s_mul_i32", s(35), s(35), 288)
        A("s_add_u32", s(35), s(35), sWoff_save)
        for nt in range(9):
            A("buffer_load_dwordx2", BT[2 * nt:2 * nt + 2], vt[8], sB, s(35), mods=f"offen offset:{nt * 32}")

    sWoff_save = s(36)
    A("s_mov_b32", sWoff_save, sWoff)
    g = gemm_body(A, 18432, 9216, sWS, sW, sXoff, sWoff, sN, s(28), init_acc, 40)
    ACC, vtid = g["ACC"], g["vtid"]
    stamp(A, 2)
    A("s_mov_b32", s(60), f32bits(C1))
    A("s_mov_b32", s(61), f32bits(C0))
    t0, t1 = v(144), v(145)
    va, vb, vm, vg = v(146), v(147), v(148), v(149)
    PK = v(152, 4)
    A("v_and_b32", vm, 15, vtid)
    A("v_bfe_u32", vg, vtid, 4, 2)
    A("s_and_b32", s(62), s(28), 1)
    A("s_lshl_b32", s(63), s(62), 1)
    A("v_and_b32", t0, 1, vg)
    A("v_lshrrev_b32", t1, 1, vg)
    A("v_lshl_add_u32", t0, t0, 1, t1)
    A("v_add_u32", t0, s(63), t0)
    A("v_lshlrev_b32", t0, 8, t0)
    A("v_lshl_add_u32", va, vm, 4, t0)
    A("v_add_u32", t1, s(63), t1)
    A("v_lshlrev_b32", t1, 8, t1)
    A("v_lshl_add_u32", vb, vm, 4, t1)
    A("v_and_b32", t0, 1, vg)
    A("v_lshl_add_u32", vb, t0, 3, vb)
    A("s_lshr_b32", s(63), s(28), 1)
    A("s_lshl_b32", s(63), s(63), 2)
    A("s_lshl_b32", s(35), s(29), 3)
    A("s_add_u32", s(35), s(35), s(63))
    A("s_mul_i32", s(35), s(35), 162)
    A("s_mul_i32", s(63), s(30), 9)
    A("s_add_u32", s(35), s(35), s(63))
    A("s_lshl_b32", s(62), s(62), 2)
    A("s_add_u32", s(35), s(35), s(62))
    A("s_lshl_b32", s(35), s(35), 10)
    A("s_add_u32", s(35), s(35), WS_HO)
    for mt in range(4):
        A("s_add_u32", s(64 + mt), s(35), mt * 162 * 1024)
        A("s_add_u32", s(68 + mt), s(35), mt * 162 * 1024 + 4096)

    cC1, cC0, cONE = v(156, 2), v(158, 2), v(160, 2)
    TT = [v(162, 2), v(164, 2)]

    def gelu4(a):
        for h in range(2):
            x2, T2 = a[2 * h:2 * h + 2], TT[h]
            A("v_pk_mul_f32", T2, x2, x2)
            A("v_pk_fma_f32", T2, T2, cC1, cC0)
            A("v_pk_mul_f32", T2, T2, x2)
        for h in range(2):
            for e in range(2):
                A("v_exp_f32", TT[h][e], TT[h][e])
        for h in range(2):
            A("v_pk_add_f32", TT[h], TT[h], cONE)
        for h in range(2):
            for e in range(2):
                A("v_rcp_f32", TT[h][e], TT[h][e])
        for h in range(2):
            A("v_pk_mul_f32", a[2 * h:2 * h + 2], a[2 * h:2 * h + 2], TT[h])

    for e in range(2):
        A("v_mov_b32", cC1[e], s(60))
        A("v_mov_b32", cC0[e], s(61))
        A("v_mov_b32", cONE[e], 1.0)
    for mt in range(4):
        for p in range(5):
            tiles = [2 * p, 2 * p + 1] if p < 4 else [8]
            for ti, nt in enumerate(tiles):
                a = ACC[(nt * 4 + mt) * 4:(nt * 4 + mt) * 4 + 4]
                gelu4(a)
                A("v_cvt_pk_bf16_f32", PK[2 * ti], a[0], a[1])
                A("v_cvt_pk_bf16_f32", PK[2 * ti + 1], a[2], a[3])
            if p < 4:
                A("v_permlane16_swap_b32", PK[0], PK[2])
                A("v_permlane16_swap_b32", PK[1], PK[3])
                A("buffer_store_dwordx4", PK, va, sWS, s(64 + mt), mods=f"offen offset:{p * 1024}")
            else:
                A("buffer_store_dwordx2", PK[0:2], vb, sWS, s(68 + mt), mods="offen")
    stamp(A, 3)
    A("s_waitcnt", "vmcnt(0) lgkmcnt(0)")
    stamp(A, 4)
    A("s_waitcnt", "lgkmcnt(0)")
    stamp_flush(A, 5, 256 + 37, s(28), 0, base=32)
    A("s_endpgm")


QSCALE = (18 ** -0.5) * 1.4426950408889634


def gen_attn(A):
    stamp(A, 0)
    A("s_load_dwordx2", s(12, 2), s(0, 2), KA_WS)
    A("v_lshrrev_b32", v(1), 6, v(0))
    A("v_readfirstlane_b32", s(28), v(1))
    A("s_and_b32", s(29), s(2), 7)
    A("s_lshl_b32", s(29), s(29), 2)
    A("s_bfe_u32", s(30), s(2), (2 << 16) | 3)
    A("s_add_u32", s(29), s(29), s(30))
    A("s_lshr_b32", s(30), s(2), 5)
    A("s_lshl_b32", s(30), s(30), 2)
    A("s_add_u32", s(30), s(30), s(28))
    A("s_waitcnt", "lgkmcnt(0)")
    sWS = s(16, 4)
    srd(A, sWS, s(12, 2), WS_SIZE)
    if "noprio" not in EXP:
        A("s_setprio", 3)
    vl16 = v(2)
    A("v_and_b32", v(1), 63, v(0))
    A("v_lshlrev_b32", vl16, 4, v(1))
    CH = 16384
    sKV = s(32)
    sPw = s(33)
    A("s_lshl_b32", sPw, s(28), 12)
    A("s_add_u32", sKV, sPw, WS_KV)

    def dma_chunk(sBuf):
        for i in range(4):
            A("s_add_u32", M0, sBuf, sPw)
            A("buffer_load_dwordx4", vl16, sWS, sKV, mods=f"offen offset:{i * 1024} lds")
        A("s_add_u32", sKV, sKV, CH)

    QA = [v(20, 16), v(36, 16)]
    BF = v(52, 48)
    AF = v(100, 144)
    XB = 32768
    vAo = v(244)
    A("s_mul_i32", s(36), s(30), 36 * 576)
    A("s_add_u32", s(36), s(36), WS_WQP)
    A("v_and_b32", v(245), 31, v(1))
    A("v_lshrrev_b32", v(246), 5, v(1))
    A("v_mul_u32_u24", v(246), 288, v(246))
    A("v_lshl_add_u32", vAo, v(245), 4, v(246))
    A("v_mov_b32", v(246), 0x7FF00000)
    A("v_cmp_gt_u32", VCC, 18, v(245))
    A("v_cndmask_b32", vAo, v(246), vAo, VCC)
    A("s_lshr_b32", s(50), s(28), 1)
    A("s_lshl_b32", s(37), s(29), 1)
    A("s_add_u32", s(37), s(37), s(50))
    A("s_mul_i32", s(37), s(37), 36864)
    A("s_and_b32", s(50), s(28), 1)
    A("s_mul_i32", s(50), s(50), 6 * 1024)
    A("s_add_u32", s(37), s(37), s(50))
    A("s_add_u32", s(37), s(37), WS_XNF)
    A("s_add_u32", s(38), s(37), 4096)
    A("s_mul_i32", s(51), s(28), 6 * 1024)
    A("s_add_u32", s(51), s(51), XB)

    def dma_x(ph):
        for i in range(6):
            if i in (0, 4):
                A("s_add_u32", M0, s(51), (ph & 1) * 24576 + (4096 if i else 0))
            A("buffer_load_dwordx4", vl16, sWS, s(38 if i >= 4 else 37), mods=f"offen offset:{(i & 3) * 1024} lds")
        A("s_add_u32", s(37), s(37), 12 * 1024)
        A("s_add_u32", s(38), s(38), 12 * 1024)

    def load_a(ph):
        for i in range(12):
            if i % 6 == 0 and (ph or i):
                A("s_add_u32", s(36), s(36), 6 * 576)
            A("buffer_load_dwordx4", AF[48 * ph + 4 * i:48 * ph + 4 * i + 4], vAo, sWS, s(36),
              mods=f"offen offset:{(i % 6) * 576}")

    A("v_add_u32", v(3), XB, vl16)
    dma_x(0)
    load_a(0)
    dma_x(1)
    load_a(1)
    A("s_mov_b32", s(35), 0)
    dma_chunk(s(35))
    A("s_mov_b32", s(35), CH)
    dma_chunk(s(35))
    load_a(2)
    for ct in range(2):
        for r in range(16):
            A("v_mov_b32", QA[ct][r], 0)
    for ph in range(3):
        A("s_waitcnt", f"vmcnt({(38, 26, 0)[ph]})")
        A("s_barrier")
        for half in range(2):
            for i in range(6):
                for ct in range(2):
                    o = (ph & 1) * 24576 + (ct * 12 + half * 6 + i) * 1024
                    A("ds_read_b128", BF[8 * i + 4 * ct:8 * i + 4 * ct + 4], v(3), mods=f"offset:{o}")
            for i in range(6):
                A("s_waitcnt", f"lgkmcnt({10 - 2 * i})")
                ks = half * 6 + i
                for ct in range(2):
                    A("v_mfma_f32_32x32x16_bf16", QA[ct], AF[48 * ph + 4 * ks:48 * ph + 4 * ks + 4],
                      BF[8 * i + 4 * ct:8 * i + 4 * ct + 4], QA[ct])
        if ph == 0:
            A("s_barrier")
            dma_x(2)
    stamp(A, 1)
    QF = [[v(4, 4), v(8, 4)], [v(12, 4), v(16, 4)]]
    A("s_mov_b32", s(39), f32bits(QSCALE))
    for ct in range(2):
        for r in range(16):
            A("v_mul_f32", QA[ct][r], s(39), QA[ct][r])
        for f in range(2):
            for q in range(4):
                A("v_cvt_pk_bf16_f32", QF[ct][f][q], QA[ct][8 * f + 2 * q], QA[ct][8 * f + 2 * q + 1])
    KF = [[v(20, 4), v(24, 4)], [v(28, 4), v(32, 4)]]
    VF = [[v(36, 4), v(40, 4)], [v(44, 4), v(48, 4)]]
    PK = [v(52, 8), v(60, 8)]
    O = [v(68, 16), v(84, 16)]
    S = [[v(100, 16), v(116, 16)], [v(132, 16), v(148, 16)]]
    Mx = [v(164), v(165)]
    TM = [v(166), v(167)]
    t1, t2, t3, t4 = v(168), v(169), v(170), v(171)
    vCur, vNxt = v(172), v(173)
    sT, sLow, sC, sB0, sB1, sB2, sBig = s(40), s(41), s(42), s(43), s(44), s(45), s(53)
    resc = []

    def rd_k(buf, addr, tile):
        A("ds_read_b128", KF[buf][0], addr, mods=f"offset:{tile * 4096}")
        A("ds_read_b128", KF[buf][1], addr, mods=f"offset:{tile * 4096 + 1024}")

    def rd_v(buf, addr, tile):
        A("ds_read_b128", VF[buf][0], addr, mods=f"offset:{tile * 4096 + 2048}")
        A("ds_read_b128", VF[buf][1], addr, mods=f"offset:{tile * 4096 + 3072}")

    def qk(sb, kb, ct, f):
        A("v_mfma_f32_32x32x16_bf16", S[sb][ct], KF[kb][f], QF[ct][f], 0 if f == 0 else S[sb][ct])

    def tile_max(Sc):
        for ct in range(2):
            A("v_max3_f32", TM[ct], Sc[ct][0], Sc[ct][1], Sc[ct][2])
            for r in range(3, 15, 2):
                A("v_max3_f32", TM[ct], TM[ct], Sc[ct][r], Sc[ct][r + 1])
            A("v_max_f32", TM[ct], TM[ct], Sc[ct][15])

    def rescale(cur, from_l):
        for ct in range(2):
            src = O[ct][10] if from_l else TM[ct]
            A("v_mov_b32", t1, src)
            A("v_mov_b32", t2, src)
            A("v_permlane32_swap_b32", t1, t2)
            if from_l:
                A("v_log_f32", t1, t1)
                A("v_max_f32", t1, 0, t1)
            else:
                A("v_max_f32", t1, t1, t2)
                A("v_max_f32", t1, sLow, t1)
            A("v_add_f32", t1, Mx[ct], t1)
            A("v_and_b32", t1, 0xFFFF0000, t1)
            A("v_sub_f32", t2, t1, Mx[ct])
            A("v_mov_b32", Mx[ct], t1)
            A("v_xor_b32", t3, 0x80000000, t1)
            A("v_lshrrev_b32", QF[ct][1][1], 16, t3)
            for r in range(16):
                A("v_sub_f32", S[cur][ct][r], S[cur][ct][r], t2)
            A("v_sub_f32", t3, 0, t2)
            A("v_min_f32", t3, 0, t3)
            A("v_exp_f32", t3, t3)
            for r in range(16):
                A("v_mul_f32", O[ct][r], O[ct][r], t3)

    def attn_pass(safe):
        for ct in range(2):
            for r in range(16):
                A("v_mov_b32", O[ct][r], 0)
            A("v_mov_b32", Mx[ct], 0)
            A("v_mov_b32", QF[ct][1][1], 0)
        A("s_mov_b32", sT, 0xFF800000)
        A("s_mov_b32", sLow, 0xFF800000)
        A("s_mov_b32", sBig, f32bits(2.0 ** 24))
        A("s_waitcnt", "vmcnt(0)")
        A("s_barrier")
        A("v_mov_b32", vCur, vl16)
        A("v_add_u32", vNxt, CH, vl16)
        A("s_mov_b32", sB0, 0)
        A("s_mov_b32", sB1, CH)
        A("s_mov_b32", sB2, 2 * CH)
        rd_k(0, vCur, 0)
        rd_k(1, vCur, 1)
        rd_v(0, vCur, 0)
        A("s_waitcnt", "lgkmcnt(0)")
        for ct in range(2):
            qk(0, 0, ct, 0)
            qk(0, 0, ct, 1)
        if not safe:
            tile_max(S[0])
            rescale(0, False)
        A("s_mov_b32", sC, 0)
        stamp(A, 2)
        Lloop = A.newlabel("att_loop")
        A.label(Lloop)
        Lnd = A.newlabel("att_nd")
        A("s_waitcnt", "vmcnt(0) lgkmcnt(0)")
        A("s_barrier")
        A("s_cmp_lt_u32", sC, 14)
        A("s_cbranch_scc0", Lnd)
        dma_chunk(sB2)
        A.label(Lnd)
        if not safe:
            A("v_max_f32", t1, O[0][10], O[1][10])
            A("v_cmp_lt_f32", VCC, sBig, t1)
            Lr, Lb = A.newlabel("att_resc"), A.newlabel("att_back")
            A("s_cbranch_vccnz", Lr)
            A.label(Lb)
            resc.append((Lr, Lb, 0, True))
        for i in range(4):
            cur, nx = i & 1, 1 - (i & 1)
            Sc = S[cur]
            if safe:
                tile_max(Sc)
                A("v_max_f32", t1, TM[0], TM[1])
                A("v_cmp_lt_f32", VCC, sT, t1)
                Lr, Lb = A.newlabel("att_resc"), A.newlabel("att_back")
                A("s_cbranch_vccnz", Lr)
                A.label(Lb)
                resc.append((Lr, Lb, cur, False))
            A("s_waitcnt", "lgkmcnt(0)")
            ex = lambda ct, r: A("v_exp_f32", Sc[ct][r], Sc[ct][r])
            cv = lambda ct, q: A("v_cvt_pk_bf16_f32", PK[ct][q], Sc[ct][2 * q], Sc[ct][2 * q + 1])
            pv = lambda ct, j: A("v_mfma_f32_32x32x16_bf16", O[ct], VF[cur][j], PK[ct][4 * j:4 * j + 4], O[ct])
            qk(nx, nx, 0, 0)
            for r in range(0, 4):
                ex(0, r)
            qk(nx, nx, 0, 1)
            for r in range(4, 8):
                ex(0, r)
            qk(nx, nx, 1, 0)
            for r in range(8, 12):
                ex(0, r)
            qk(nx, nx, 1, 1)
            if i < 2:
                rd_k(cur, vCur, i + 2)
            else:
                rd_k(cur, vNxt, i - 2)
            for r in range(12, 16):
                ex(0, r)
            for q in range(8):
                cv(0, q)
            pv(0, 0)
            for r in range(0, 4):
                ex(1, r)
            pv(0, 1)
            for r in range(4, 12):
                ex(1, r)
            for q in range(4):
                cv(1, q)
            pv(1, 0)
            for r in range(12, 16):
                ex(1, r)
            for q in range(4, 8):
                cv(1, q)
            if i < 3:
                rd_v(nx, vCur, i + 1)
            else:
                rd_v(nx, vNxt, 0)
            pv(1, 1)
        A("s_mov_b32", s(46), sB0)
        A("s_mov_b32", sB0, sB1)
        A("s_mov_b32", sB1, sB2)
        A("s_mov_b32", sB2, s(46))
        A("v_add_u32", vCur, sB0, vl16)
        A("v_add_u32", vNxt, sB1, vl16)
        A("s_add_u32", sC, sC, 1)
        A("s_cmp_lt_u32", sC, 16)
        A("s_cbranch_scc1", Lloop)

    Lsafe, Lepi = A.newlabel("att_safe"), A.newlabel("att_epi")
    if "safeonly" in EXP:
        attn_pass(True)
    else:
        attn_pass(False)
        A("s_mov_b32", s(54), f32bits(2.0 ** 100))
        A("v_cmp_nlt_f32", VCC, O[0][10], s(54))
        A("v_cmp_nlt_f32", s(58, 2), O[1][10], s(54))
        A("s_or_b64", VCC, VCC, s(58, 2))
        A("s_cmp_lg_u64", VCC, 0)
        A("s_cselect_b32", s(55), 1, 0)
        A("v_mov_b32", t1, s(55))
        A("s_lshl_b32", s(56), s(28), 2)
        A("s_add_u32", s(56), s(56), 3 * CH)
        A("v_mov_b32", t2, s(56))
        A("ds_write_b32", t2, t1)
        A("s_waitcnt", "lgkmcnt(0)")
        A("s_barrier")
        A("v_mov_b32", t2, 3 * CH)
        A("ds_read_b128", v(176, 4), t2)
        A("s_waitcnt", "lgkmcnt(0)")
        A("v_or_b32", t1, v(176), v(177))
        A("v_or3_b32", t1, t1, v(178), v(179))
        A("v_readfirstlane_b32", s(55), t1)
        A("s_cmp_lg_u32", s(55), 0)
        A("s_cbranch_scc1", Lsafe)
    A.label(Lepi)
    stamp(A, 3)
    A("s_waitcnt", "lgkmcnt(0)")
    VA = [v(174 + i) for i in range(5)]
    A("v_and_b32", t1, 15, v(1))
    A("v_lshlrev_b32", t1, 4, t1)
    A("v_bfe_u32", t2, v(1), 4, 1)
    A("s_mov_b32", s(47), 162 * 1024)
    A("v_mul_lo_u32", t2, t2, s(47))
    A("v_add_u32", t1, t1, t2)
    A("v_lshrrev_b32", t2, 5, v(1))
    A("v_lshlrev_b32", t2, 2, t2)
    A("s_mul_i32", s(48), s(30), 18)
    A("s_add_u32", s(48), s(48), 4608)
    A("v_add_u32", t2, s(48), t2)
    for i, dc in enumerate((0, 2, 8, 10, 16)):
        A("v_add_u32", t3, dc, t2)
        A("v_lshrrev_b32", t4, 3, t3)
        A("v_lshl_add_u32", VA[i], t4, 8, t1)
        A("v_and_b32", t3, 7, t3)
        A("v_lshl_add_u32", VA[i], t3, 1, VA[i])
    A("s_mul_i32", s(48), s(29), 4 * 162 * 1024)
    A("s_add_u32", s(48), s(48), WS_HO)
    A("s_add_u32", s(49), s(48), 2 * 162 * 1024)
    for ct in range(2):
        A("v_mov_b32", t1, O[ct][10])
        A("v_mov_b32", t2, O[ct][10])
        A("v_permlane32_swap_b32", t1, t2)
        A("v_rcp_f32", t1, t1)
        for r in range(10):
            A("v_mul_f32", O[ct][r], O[ct][r], t1)
        for q in range(5):
            A("v_cvt_pk_bf16_f32", PK[ct][q], O[ct][2 * q], O[ct][2 * q + 1])
        for q in range(4):
            A("buffer_store_dword", PK[ct][q], VA[q], sWS, s(48 + ct), mods="offen")
    A("s_mov_b32", "exec_hi", 0)
    for ct in range(2):
        A("buffer_store_dword", PK[ct][4], VA[4], sWS, s(48 + ct), mods="offen")
    A("s_mov_b64", EXEC, -1)
    stamp(A, 4)
    A("s_waitcnt", "vmcnt(0) lgkmcnt(0)")
    stamp_flush(A, 5, 37, s(28), 0)
    A("s_endpgm")
    if "safeonly" not in EXP:
        A.label(Lsafe)
        A("s_add_u32", sKV, sPw, WS_KV)
        A("s_mov_b32", s(35), 0)
        dma_chunk(s(35))
        A("s_mov_b32", s(35), CH)
        dma_chunk(s(35))
        attn_pass(True)
        A("s_branch", Lepi)
    for (Lr, Lb, cur, from_l) in resc:
        A.label(Lr)
        rescale(cur, from_l)
        if not from_l:
            A("s_mov_b32", sT, f32bits(8.0))
            A("s_mov_b32", sLow, 0)
        A("s_branch", Lb)


def gen_k2(A):
    name = "k2_kernel"
    kernel_header(A, name)
    Lg, Lend = A.newlabel("k2_gemm"), A.newlabel("k2_end")
    A("s_cmp_ge_u32", s(2), 512)
    A("s_cbranch_scc1", Lend)
    A("s_cmp_ge_u32", s(2), 256)
    A("s_cbranch_scc1", Lend if "attonly" in EXP else Lg)
    if "gemmonly" in EXP:
        A("s_branch", Lend)
    gen_attn(A)
    A.label(Lg)
    gen_gemm1(A)
    A.label(Lend)
    A("s_endpgm")
    return name


K3_STAGE = 9600
K3_LDS = 4 * 4 * K3_STAGE


def gen_k3(A):
    name = "k3_kernel"
    kernel_header(A, name)
    Lend = A.newlabel("k3_end")
    A("s_cmp_ge_u32", s(2), 256)
    A("s_cbranch_scc1", Lend)
    A("s_load_dwordx2", s(4, 2), s(0, 2), KA_W2)
    A("s_load_dwordx2", s(6, 2), s(0, 2), KA_WO)
    A("s_load_dwordx2", s(12, 2), s(0, 2), KA_WS)
    stamp(A, 0)
    A("v_lshrrev_b32", v(1), 6, v(0))
    A("v_readfirstlane_b32", s(28), v(1))
    A("s_and_b32", s(31), s(2), 3)
    A("s_lshr_b32", s(30), s(2), 6)
    A("s_bfe_u32", s(29), s(2), (4 << 16) | 2)
    A("s_lshr_b32", s(26), s(28), 1)
    A("s_and_b32", s(27), s(28), 1)
    A("s_lshl_b32", s(25), s(31), 2)
    A("s_add_u32", s(25), s(25), s(26))
    A("s_waitcnt", "lgkmcnt(0)")
    sWS, sW = s(16, 4), s(20, 4)
    srd(A, sWS, s(12, 2), WS_SIZE)
    sCnt, sWoff = s(34), s(33)
    sX = [s(36 + i) for i in range(4)]
    sW2, sWoff2 = s(64, 4), s(68)
    sX2 = [s(69 + i) for i in range(4)]
    srd(A, sW, s(4, 2), 4608 * 1152)
    srd(A, sW2, s(6, 2), 576 * 1152)
    A("s_mul_i32", s(41), s(25), 9)
    A("s_cmp_gt_u32", s(25), 0)
    A("s_addc_u32", s(42), s(25), 0)
    A("s_cmp_gt_u32", s(25), 8)
    A("s_addc_u32", s(42), s(42), 0)
    A("s_and_b32", s(40), s(25), 7)
    A("s_cmp_eq_u32", s(40), 0)
    A("s_cselect_b32", sCnt, 11, 10)
    A("s_mul_i32", sWoff, s(41), 32 * 1152)
    A("s_mul_i32", s(46), s(30), 288)
    A("s_add_u32", sWoff, sWoff, s(46))
    A("s_mul_i32", sWoff2, s(42), 32 * 1152)
    A("s_add_u32", sWoff2, sWoff2, s(46))
    A("s_lshl_b32", s(46), s(29), 7)
    A("s_lshl_b32", s(47), s(27), 6)
    A("s_add_u32", s(46), s(46), s(47))
    A("s_lshr_b32", s(47), s(46), 4)
    A("s_mul_i32", s(47), s(47), 162)
    A("s_add_u32", s(48), s(47), s(42))
    A("s_add_u32", s(48), s(48), 144)
    A("s_add_u32", s(47), s(47), s(41))
    A("s_lshl_b32", s(47), s(47), 10)
    A("s_add_u32", s(47), s(47), WS_HO)
    A("s_lshl_b32", s(48), s(48), 10)
    A("s_add_u32", s(48), s(48), WS_HO)
    for mt in range(4):
        A("s_add_u32", sX[mt], s(47), mt * 162 * 1024)
        A("s_add_u32", sX2[mt], s(48), mt * 162 * 1024)
    ACC = v(0, 144)
    WF = v(144, 36)
    WX = v(180, 8)
    XF = [v(188, 16), v(204, 16), v(220, 16)]
    vDW = v(236, 5)
    vDX, vAW, vtid = v(241), v(242), v(246)
    vt = [v(247 + i) for i in range(7)]
    A("v_mov_b32", vtid, v(0))
    lane = vt[0]
    A("v_and_b32", lane, 63, vtid)
    A("v_lshlrev_b32", vDX, 4, lane)
    for st in range(2):
        for mt in range(4):
            A("buffer_load_dwordx4", XF[st][4 * mt:4 * mt + 4], vDX, sWS, sX[mt], mods="offen")
            A("s_add_u32", sX[mt], sX[mt], 1024)
    sGB = s(49)
    A("s_mul_i32", sGB, s(26), 4 * K3_STAGE)
    sP = [s(50 + q) for q in range(5)]
    A("s_mul_i32", s(55), s(27), 300)
    for q in range(5):
        A("s_add_u32", s(56), s(55), 64 * q)
        A("v_add_u32", vt[1], s(56), lane)
        A("v_mul_u32_u24", vt[2], 432, vt[1])
        A("v_lshrrev_b32", vt[2], 16, vt[2])
        A("v_mul_u32_u24", vt[3], 152, vt[2])
        A("v_sub_u32", vt[3], vt[1], vt[3])
        A("v_mul_u32_u24", vt[4], 3641, vt[3])
        A("v_lshrrev_b32", vt[4], 16, vt[4])
        A("v_mul_u32_u24", vt[5], 18, vt[4])
        A("v_sub_u32", vt[5], vt[3], vt[5])
        A("v_lshl_add_u32", vt[4], vt[2], 3, vt[4])
        A("v_mul_u32_u24", vt[4], 1152, vt[4])
        A("v_lshl_add_u32", vt[4], vt[5], 4, vt[4])
        A("v_mov_b32", vt[5], 0x7FF00000)
        A("v_cmp_gt_u32", VCC, 144, vt[3])
        A("v_cndmask_b32", vDW[q], vt[5], vt[4], VCC)
        A("s_lshl_b32", sP[q], s(56), 4)
        A("s_add_u32", sP[q], sP[q], sGB)
    m_, g_ = vt[1], vt[2]
    A("v_and_b32", m_, 15, lane)
    A("v_lshrrev_b32", g_, 4, lane)
    A("v_lshrrev_b32", vt[3], 2, m_)
    A("v_mul_u32_u24", vt[3], 18 * 16, vt[3])
    A("v_mul_u32_u24", vt[4], 152 * 16, g_)
    A("v_add_u32", vt[3], vt[3], vt[4])
    A("v_and_b32", vt[4], 3, lane)
    A("v_lshl_add_u32", vt[3], vt[4], 3, vt[3])
    A("v_add_u32", vAW, sGB, vt[3])

    def dma_w(st):
        if "k3now" in EXP:
            return
        for q in range(5):
            A("s_add_u32", M0, sP[q], (st % 4) * K3_STAGE)
            if q == 4:
                A("s_mov_b32", "exec_hi", 0xFFF)
            A("buffer_load_dwordx4", vDW[q], sW if st < 9 else sW2, sWoff if st < 9 else sWoff2, mods="offen lds")
            if q == 4:
                A("s_mov_b64", EXEC, -1)
        so = sWoff if st < 9 else sWoff2
        A("s_add_u32", so, so, 32 * 1152)

    def load_x(st):
        if "k3nox" in EXP:
            return
        for mt in range(4):
            sx = sX[mt] if st < 9 else sX2[mt]
            A("buffer_load_dwordx4", XF[st % 3][4 * mt:4 * mt + 4], vDX, sWS, sx, mods="offen")
            A("s_add_u32", sx, sx, 1024)

    def wreg(nt, par):
        if nt >= 7 and par:
            return WX[4 * (nt - 7):4 * (nt - 7) + 4]
        return WF[4 * nt:4 * nt + 4]

    def read_w(nt, st):
        w = wreg(nt, st & 1)
        o = (st % 4) * K3_STAGE + nt * 32
        A("ds_read_b64_tr_b16", w[0:2], vAW, mods=f"offset:{o}")
        A("ds_read_b64_tr_b16", w[2:4], vAW, mods=f"offset:{o + 1152}")

    dma_w(0)
    dma_w(1)
    dma_w(2)
    dma_w(3)
    for r in range(144):
        A("v_mov_b32", ACC[r], 0)
    stamp(A, 1)
    A("s_waitcnt", "vmcnt(15)")
    A("s_barrier")
    stamp(A, 2)
    for nt in range(9):
        read_w(nt, 0)
    for k in range(11):
        Lskip = A.newlabel("k3_skip")
        if k < 2:
            A("s_waitcnt", f"vmcnt({(10, 14)[k]}) lgkmcnt(0)")
        elif k <= 5:
            A("s_waitcnt", "vmcnt(9) lgkmcnt(0)")
        else:
            La, Lb, Lc = A.newlabel("k3w"), A.newlabel("k3w"), A.newlabel("k3w")
            if k + 3 < 11:
                A("s_cmp_lt_u32", k + 3, sCnt)
                A("s_cbranch_scc1", La)
            if k + 1 < 11:
                A("s_cmp_lt_u32", k + 1, sCnt)
                A("s_cbranch_scc1", Lb)
            A("s_waitcnt", "vmcnt(0) lgkmcnt(0)")
            A("s_branch", Lc)
            A.label(La)
            A("s_waitcnt", "vmcnt(9) lgkmcnt(0)")
            A("s_branch", Lc)
            A.label(Lb)
            A("s_waitcnt", "vmcnt(4) lgkmcnt(0)")
            A.label(Lc)
        A("s_barrier")
        if k >= 9:
            A("s_cmp_lt_u32", k, sCnt)
            A("s_cbranch_scc0", Lskip)
        if k + 4 < 11:
            if k + 4 >= 9:
                Ln = A.newlabel("k3n")
                A("s_cmp_lt_u32", k + 4, sCnt)
                A("s_cbranch_scc0", Ln)
            dma_w(k + 4)
            if k + 4 >= 9:
                A.label(Ln)
        if k + 2 < 11:
            if k + 2 >= 9:
                Ln = A.newlabel("k3n")
                A("s_cmp_lt_u32", k + 2, sCnt)
                A("s_cbranch_scc0", Ln)
            load_x(k + 2)
            if k + 2 >= 9:
                A.label(Ln)
        nxt = k + 1 < 11
        if nxt:
            read_w(7, k + 1)
            read_w(8, k + 1)
        for nt in range(9):
            w = wreg(nt, k & 1)
            for mt in range(4 if "k3nom" not in EXP else 0):
                acc = ACC[(nt * 4 + mt) * 4:(nt * 4 + mt) * 4 + 4]
                A("v_mfma_f32_16x16x32_bf16", acc, w, XF[k % 3][4 * mt:4 * mt + 4], acc)
            if nt < 7 and nxt:
                read_w(nt, k + 1)
        A.label(Lskip)
        if k in (0, 5):
            stamp(A, 3 + (k == 5))
    A("s_waitcnt", "vmcnt(0) lgkmcnt(0)")
    A("s_barrier")
    stamp(A, 5)
    vW_, vR_ = v(236), v(237)
    TMP = v(144, 72)
    A("v_and_b32", lane, 63, vtid)
    vl16 = v(240)
    A("v_lshlrev_b32", vl16, 4, lane)
    A("s_mul_i32", s(56), s(28), 18432)
    A("v_add_u32", vW_, s(56), vl16)
    A("s_xor_b32", s(57), s(28), 2)
    A("s_mul_i32", s(57), s(57), 18432)
    A("v_add_u32", vR_, s(57), vl16)

    def tile(nt, mt):
        return ACC[(nt * 4 + mt) * 4:(nt * 4 + mt) * 4 + 4]

    va, vb = v(238), v(239)
    A("v_and_b32", m_, 15, lane)
    A("v_lshrrev_b32", g_, 4, lane)
    A("v_add_u32", va, s(46), m_)
    A("v_mul_u32_u24", va, 1152, va)
    A("v_lshl_add_u32", vb, g_, 3, va)
    A("v_and_b32", vt[3], 1, g_)
    A("v_lshl_add_u32", va, vt[3], 5, va)
    A("v_lshrrev_b32", vt[3], 1, g_)
    A("v_lshl_add_u32", va, vt[3], 4, va)
    A("s_mul_i32", s(58), s(31), 2048 * 1152)
    A("s_mul_i32", s(59), s(30), 288)
    A("s_add_u32", s(58), s(58), s(59))
    A("s_add_u32", s(58), s(58), WS_PART)
    Lv = [A.newlabel("k3_v") for _ in range(4)]
    A("s_and_b32", s(59), s(26), 1)
    A("s_cmp_eq_u32", s(59), 1)
    A("s_cbranch_scc1", Lv[1])
    for b0 in range(2):
        if b0:
            A.label(Lv[1])
        keep = [2 * b0, 2 * b0 + 1]
        send = [2 - 2 * b0, 3 - 2 * b0]
        i = 0
        for nt in range(9):
            for mt in send:
                A("ds_write_b128", vW_, tile(nt, mt), mods=f"offset:{i * 1024}")
                i += 1
        A("s_waitcnt", "lgkmcnt(0)")
        A("s_barrier")
        for i in range(18):
            A("ds_read_b128", TMP[4 * i:4 * i + 4], vR_, mods=f"offset:{i * 1024}")
        i = 0
        for nt in range(9):
            for mt in keep:
                A("s_waitcnt", f"lgkmcnt({min(17 - i, 15)})")
                for r in (0, 2):
                    A("v_pk_add_f32", tile(nt, mt)[r:r + 2], tile(nt, mt)[r:r + 2], TMP[4 * i + r:4 * i + r + 2])
                i += 1
        A("s_barrier")
        A("s_xor_b32", s(57), s(28), 4)
        A("s_mul_i32", s(57), s(57), 18432)
        A("v_add_u32", vR_, s(57), vl16)
        A("s_cmp_ge_u32", s(26), 2)
        A("s_cbranch_scc1", Lv[2 + b0])
        for b1 in range(2):
            if b1:
                A.label(Lv[2 + b0])
            km, sm = keep[b1], keep[1 - b1]
            for nt in range(9):
                A("ds_write_b128", vW_, tile(nt, sm), mods=f"offset:{nt * 1024}")
            A("s_waitcnt", "lgkmcnt(0)")
            A("s_barrier")
            for nt in range(9):
                A("ds_read_b128", TMP[4 * nt:4 * nt + 4], vR_, mods=f"offset:{nt * 1024}")
            A("s_add_u32", s(60), s(58), km * 16 * 1152)
            PK = v(220, 4)
            for p in range(5):
                tiles = [2 * p, 2 * p + 1] if p < 4 else [8]
                A("s_waitcnt", f"lgkmcnt({8 - tiles[-1]})")
                for ti, nt in enumerate(tiles):
                    a = tile(nt, km)
                    for r in (0, 2):
                        A("v_pk_add_f32", a[r:r + 2], a[r:r + 2], TMP[4 * nt + r:4 * nt + r + 2])
                    A("v_cvt_pk_bf16_f32", PK[2 * ti], a[0], a[1])
                    A("v_cvt_pk_bf16_f32", PK[2 * ti + 1], a[2], a[3])
                if p < 4:
                    A("v_permlane16_swap_b32", PK[0], PK[2])
                    A("v_permlane16_swap_b32", PK[1], PK[3])
                    A("buffer_store_dwordx4", PK, va, sWS, s(60), mods=f"offen offset:{p * 64}")
                else:
                    A("buffer_store_dwordx2", PK[0:2], vb, sWS, s(60), mods="offen offset:256")
            stamp(A, 6)
            A("s_waitcnt", "vmcnt(0)")
            stamp(A, 7)
            A("s_waitcnt", "lgkmcnt(0)")
            stamp_flush(A, 8, 37, s(28), 0)
            A("s_endpgm")
    A.label(Lend)
    A("s_endpgm")
    return name


def gen_k4(A):
    name = "k4_kernel"
    kernel_header(A, name)
    Lend = A.newlabel("k4_end")
    A("s_cmp_ge_u32", s(2), 576)
    A("s_cbranch_scc1", Lend)
    A("s_load_dwordx2", s(4, 2), s(0, 2), KA_X)
    A("s_load_dwordx4", s(8, 4), s(0, 2), KA_B2)
    A("s_load_dwordx2", s(12, 2), s(0, 2), KA_WS)
    A("s_lshl_b32", s(3), s(2), 8)
    A("v_add_u32", v(1), s(3), v(0))
    A("v_lshlrev_b32", v(2), 4, v(1))
    A("s_mov_b32", s(14), 59652324)
    A("v_mul_hi_u32", v(4), v(1), s(14))
    A("v_mul_u32_u24", v(4), 72, v(4))
    A("v_sub_u32", v(4), v(1), v(4))
    A("v_lshlrev_b32", v(4), 4, v(4))
    A("s_waitcnt", "lgkmcnt(0)")
    sX, sB, sO, sWS = s(16, 4), s(20, 4), s(24, 4), s(28, 4)
    srd(A, sX, s(4, 2), 2048 * 1152)
    srd(A, sB, s(8, 2), 1152)
    srd(A, sO, s(10, 2), 2048 * 1152)
    srd(A, sWS, s(12, 2), WS_SIZE)
    P = v(16, 24)
    for sp in range(4):
        A("s_mov_b32", s(32 + sp), WS_PART + sp * 2048 * 1152)
        A("buffer_load_dwordx4", P[4 * sp:4 * sp + 4], v(2), sWS, s(32 + sp), mods="offen")
    A("buffer_load_dwordx4", P[16:20], v(2), sX, 0, mods="offen")
    A("buffer_load_dwordx4", P[20:24], v(4), sB, 0, mods="offen")
    acc = v(40, 8)
    for sp in range(6):
        A("s_waitcnt", f"vmcnt({5 - sp})")
        for q in range(4):
            if sp == 0:
                A("v_lshlrev_b32", acc[2 * q], 16, P[q])
                A("v_and_b32", acc[2 * q + 1], 0xFFFF0000, P[q])
            else:
                A("v_lshlrev_b32", v(5), 16, P[4 * sp + q])
                A("v_and_b32", v(6), 0xFFFF0000, P[4 * sp + q])
                A("v_add_f32", acc[2 * q], acc[2 * q], v(5))
                A("v_add_f32", acc[2 * q + 1], acc[2 * q + 1], v(6))
    for q in range(4):
        A("v_cvt_pk_bf16_f32", v(8 + q), acc[2 * q], acc[2 * q + 1])
    A("buffer_store_dwordx4", v(8, 4), v(2), sO, 0, mods="offen")
    A.label(Lend)
    A("s_endpgm")
    return name


def main():
    A = Asm()
    hdr = open(os.path.join(os.path.dirname(__file__), "..", "cdna_kernels", NAME + ".s.ref")).read().splitlines()
    head = []
    for l in hdr:
        if l.startswith(";") and "@launch" not in l:
            head.append(l)
        elif not l.startswith(";"):
            break
    head += [
        "; @launch kernel=k1_kernel grid=(224,1,1) block=(256,1,1) lds=108800",
        "; @launch kernel=k2_kernel grid=(512,1,1) block=(256,1,1) lds=81920",
        f"; @launch kernel=k3_kernel grid=(256,1,1) block=(512,1,1) lds={K3_LDS}",
        "; @launch kernel=k4_kernel grid=(576,1,1) block=(256,1,1) lds=0",
        '.amdgcn_target "amdgcn-amd-amdhsa--gfx950"',
        ".text",
    ]
    names = [gen_k1(A), gen_k2(A), gen_k3(A), gen_k4(A)]
    body = A.render()
    out = "\n".join(head) + "\n" + body + '.section .rodata,"a"\n'
    vg = {"k1_kernel": 256, "k2_kernel": 256, "k3_kernel": 256, "k4_kernel": 48}
    for n in names:
        out += ".p2align 6\n" + kd(n, vg[n])
    path = os.environ.get("OUT") or os.path.join(os.path.dirname(__file__), "..", "cdna_kernels", NAME + ".s")
    open(path, "w").write(out)
    print("wrote", path, len(out), "bytes")


if __name__ == "__main__":
    main()
```

```python
import struct
import sys
import os

sys.path.insert(0, os.path.dirname(__file__))
from asmdsl import Asm, R, v, s, VCC, EXEC, M0

EXP = os.environ.get("EXP", "")
NAME = "parallel_sum__grouped_kv_mqa__mixer_channel_mlp__prompt"

KA_X, KA_WQ, KA_WK, KA_WV, KA_WO, KA_BX, KA_W1, KA_B1, KA_W2, KA_B2, KA_OUT, KA_DBG, KA_WS = [8 * i for i in range(13)]

WS_XNF = 0x0
WS_Y = 0x240000
WS_KV = 0x480000
WS_WQP = 0x4C0000
WS_HO = 0x600000
WS_PART = 0x1C00000
WS_SIZE = 0x10000000
HO_STRIDE = 5184 * 2


def f32bits(x):
    return struct.unpack("<I", struct.pack("<f", x))[0]


def srd(A, dst, base, nbytes):
    A("s_mov_b32", dst[0], base[0])
    A("s_and_b32", dst[1], base[1], 0xFFFF)
    A("s_mov_b32", dst[2], nbytes)
    A("s_mov_b32", dst[3], 0x00020000)


def stamp(A, i):
    if "stamp" in EXP:
        A("s_memtime", s(80 + 2 * i, 2))


def stamp_flush(A, n, wg, wave_sgpr, wave, base=0):
    if "stamp" not in EXP:
        return
    L = A.newlabel("stf")
    A("s_cmp_lg_u32", s(2), wg)
    A("s_cbranch_scc1", L)
    A("s_cmp_lg_u32", wave_sgpr, wave)
    A("s_cbranch_scc1", L)
    A("s_load_dwordx2", s(76, 2), s(0, 2), KA_DBG)
    A("s_waitcnt", "lgkmcnt(0)")
    srd(A, s(72, 4), s(76, 2), 256)
    A("v_mov_b32", v(1), 0)
    for i in range(n):
        A("v_mov_b32", v(0), s(80 + 2 * i))
        A("buffer_store_dword", v(0), v(1), s(72, 4), 0, mods=f"offen offset:{base + 4 * i}")
    A.label(L)


def kernel_header(A, name):
    A.raw(f".globl {name}")
    A.raw(".p2align 8")
    A.raw(f".type {name},@function")
    A.raw(f"{name}:")


def kd(name, vgpr=256, sgpr=102):
    acc = (vgpr + 3) // 4 * 4
    return f""".amdhsa_kernel {name}
  .amdhsa_next_free_vgpr {vgpr}
  .amdhsa_next_free_sgpr {sgpr}
  .amdhsa_accum_offset {acc}
  .amdhsa_group_segment_fixed_size 0
  .amdhsa_kernarg_size 104
  .amdhsa_user_sgpr_count 2
  .amdhsa_user_sgpr_kernarg_segment_ptr 1
  .amdhsa_system_sgpr_workgroup_id_x 1
.end_amdhsa_kernel
"""


def reduce16(A, x, t):
    for r in (8, 4, 2, 1):
        A("v_add_f32_dpp", t, x, x, mods=f"row_ror:{r} row_mask:0xf bank_mask:0xf")
        A("v_mov_b32", x, t)


def layernorm(A, Pin, Pout, F, T):
    for i in range(18):
        A("v_lshlrev_b32", F[2 * i], 16, Pin[i])
        A("v_and_b32", F[2 * i + 1], 0xFFFF0000, Pin[i])
    sm, t0, mean, acc, mb, rr = T[0], T[1], T[2], T[3], T[4], T[5]
    A("v_add_f32", sm, F[0], F[1])
    for i in range(2, 36):
        A("v_add_f32", sm, sm, F[i])
    reduce16(A, sm, t0)
    A("v_mul_f32", mean, f32bits(1.0 / 576.0), sm)
    A("v_mov_b32", acc, 0)
    for i in range(36):
        A("v_sub_f32", t0, F[i], mean)
        A("v_fmac_f32", acc, t0, t0)
    reduce16(A, acc, t0)
    A("v_mul_f32", acc, f32bits(1.0 / 576.0), acc)
    A("v_cvt_pk_bf16_f32", t0, mean, acc)
    A("v_lshlrev_b32", mb, 16, t0)
    A("v_and_b32", acc, 0xFFFF0000, t0)
    A("v_add_f32", acc, f32bits(1e-5), acc)
    A("v_cvt_pk_bf16_f32", t0, acc, acc)
    A("v_lshlrev_b32", acc, 16, t0)
    A("v_sqrt_f32", acc, acc)
    A("v_cvt_pk_bf16_f32", t0, acc, acc)
    A("v_lshlrev_b32", acc, 16, t0)
    A("v_rcp_f32", rr, acc)
    for i in range(18):
        a, b = F[2 * i], F[2 * i + 1]
        A("v_sub_f32", a, a, mb)
        A("v_sub_f32", b, b, mb)
        A("v_cvt_pk_bf16_f32", t0, a, b)
        A("v_lshlrev_b32", a, 16, t0)
        A("v_and_b32", b, 0xFFFF0000, t0)
        A("v_mul_f32", a, a, rr)
        A("v_mul_f32", b, b, rr)
        A("v_cvt_pk_bf16_f32", Pout[i], a, b)


def gen_k1(A):
    name = "k1_kernel"
    kernel_header(A, name)
    Lend = A.newlabel("k1_end")
    Lpack = A.newlabel("k1_pack")
    A("s_cmp_ge_u32", s(2), 224)
    A("s_cbranch_scc1", Lend)
    stamp(A, 0)
    A("s_load_dwordx8", s(4, 8), s(0, 2), KA_X)
    A("s_load_dwordx2", s(12, 2), s(0, 2), KA_WS)
    A("v_lshrrev_b32", v(1), 6, v(0))
    A("v_readfirstlane_b32", s(28), v(1))
    A("v_and_b32", v(1), 63, v(0))
    A("s_waitcnt", "lgkmcnt(0)")
    sX, sWS, sWK, sWQ = s(16, 4), s(20, 4), s(24, 4), s(32, 4)
    srd(A, sWS, s(12, 2), WS_SIZE)
    if "nopf" not in EXP:
        A("s_load_dwordx2", s(68, 2), s(0, 2), KA_W1)
        A("s_load_dwordx2", s(70, 2), s(0, 2), KA_W2)
        A("s_load_dwordx2", s(72, 2), s(0, 2), KA_WO)
        A("v_lshlrev_b32", v(250), 7, v(1))
        A("s_lshl_b32", s(74), s(2), 2)
        A("s_add_u32", s(74), s(74), s(28))
        A("s_lshl_b32", s(74), s(74), 1)
        A("s_waitcnt", "lgkmcnt(0)")
        for i in range(2):
            sP = s(76, 4)
            A("s_add_u32", s(75), s(74), i)
            A("s_sub_u32", s(80), s(75), 648)
            A("s_sub_u32", s(81), s(75), 1296)
            A("s_cmp_lt_u32", s(75), 1296)
            A("s_cselect_b32", s(82), s(70), s(72))
            A("s_cselect_b32", s(83), s(71), s(73))
            A("s_cselect_b32", s(84), s(80), s(81))
            A("s_cmp_lt_u32", s(75), 648)
            A("s_cselect_b32", s(82), s(68), s(82))
            A("s_cselect_b32", s(83), s(69), s(83))
            A("s_cselect_b32", s(84), s(75), s(84))
            A("s_mov_b32", s(85), 648 * 8192)
            A("s_cmp_lt_u32", s(75), 1296)
            A("s_cselect_b32", s(85), s(85), 81 * 8192)
            A("s_mov_b32", sP[0], s(82))
            A("s_and_b32", sP[1], s(83), 0xFFFF)
            A("s_mov_b32", sP[2], s(85))
            A("s_mov_b32", sP[3], 0x00020000)
            A("s_lshl_b32", s(84), s(84), 13)
            A("buffer_load_dword", v(251 + i), v(250), sP, s(84), mods="offen")
    A("s_cmp_ge_u32", s(2), 128)
    A("s_cbranch_scc1", Lpack)
    srd(A, sX, s(4, 2), 2048 * 1152)
    A("s_cmp_ge_u32", s(28), 2)
    A("s_cselect_b32", s(14), s(10), s(8))
    A("s_cselect_b32", s(15), s(11), s(9))
    srd(A, sWK, s(14, 2), 576 * 36)
    vj, vrow, vtok, vxo = v(2), v(3), v(4), v(5)
    A("v_and_b32", vj, 15, v(0))
    A("v_lshrrev_b32", vrow, 4, v(0))
    A("s_lshl_b32", s(29), s(2), 4)
    A("v_add_u32", vtok, s(29), vrow)
    A("v_mul_u32_u24", vxo, 1152, vtok)
    A("v_lshl_add_u32", vxo, vj, 3, vxo)
    PX = v(28, 18)
    for i in range(9):
        A("buffer_load_dwordx2", PX[2 * i:2 * i + 2], vxo, sX, 0, mods=f"offen offset:{i * 128}")
    vg, vgo = v(6), v(7)
    WB = 18688
    WR = 22528
    A("v_lshrrev_b32", vg, 4, v(1))
    A("s_and_b32", s(30), s(28), 1)
    A("s_lshr_b32", s(31), s(28), 1)
    A("s_mul_i32", s(31), s(31), 2 * WR)
    A("s_add_u32", s(31), s(31), WB)
    A("s_mul_i32", s(41), s(30), WR + 4)
    A("s_add_u32", s(41), s(41), s(31))
    A("v_lshlrev_b32", v(9), 4, v(1))
    for i in range(21):
        if i % 4 == 0:
            A("s_add_u32", M0, s(41), i * 1024)
            A("s_mov_b32", s(42), i * 1024)
        A("buffer_load_dwordx4", v(9), sWK, s(42), mods=f"offen offset:{(i & 3) * 1024} lds")
    A("s_lshl_b32", s(30), s(30), 4)
    A("v_lshrrev_b32", v(8), 2, vj)
    A("v_lshl_add_u32", vgo, vg, 3, v(8))
    A("v_mul_u32_u24", vgo, 36, vgo)
    A("v_and_b32", v(8), 1, v(8))
    A("v_mul_u32_u24", v(8), WR + 4, v(8))
    A("v_add_u32", vgo, vgo, v(8))
    A("v_and_b32", v(8), 3, vj)
    A("v_lshl_add_u32", vgo, v(8), 3, vgo)
    A("s_lshl_b32", s(43), s(30), 1)
    A("s_add_u32", s(43), s(43), s(31))
    A("v_add_u32", vgo, s(43), vgo)
    G = v(100, 144)
    F = v(48, 36)
    T = v(10, 8)
    PN = v(84, 16 + 2)
    PN = v(28, 18)
    stamp(A, 1)
    A("s_waitcnt", "vmcnt(21)")
    stamp(A, 2)
    layernorm(A, PX, PN, F, T)
    for i in range(9):
        A("s_mov_b32", s(48 + i), WS_XNF + i * 4096)
    va, vb = v(18), v(19)
    A("v_lshrrev_b32", va, 5, vtok)
    A("v_mul_u32_u24", va, 36864, va)
    A("v_lshrrev_b32", vb, 2, vj)
    A("v_lshl_add_u32", va, vb, 10, va)
    A("v_bfe_u32", vb, vj, 1, 1)
    A("v_lshlrev_b32", vb, 5, vb)
    A("v_and_b32", v(20), 31, vtok)
    A("v_add_u32", vb, vb, v(20))
    A("v_lshl_add_u32", va, vb, 4, va)
    A("v_and_b32", vb, 1, vj)
    A("v_lshl_add_u32", va, vb, 3, va)
    for i in range(9):
        A("buffer_store_dwordx2", PN[2 * i:2 * i + 2], va, sWS, s(48 + i), mods="offen")
    vl = v(21)
    A("v_mul_u32_u24", vl, 1168, vrow)
    A("v_lshl_add_u32", vl, vj, 3, vl)
    for i in range(9):
        A("ds_write_b64", vl, PN[2 * i:2 * i + 2], mods=f"offset:{i * 128}")
    PY = v(84, 16)
    PY = [v(84 + i) for i in range(16)] + [v(22), v(23)]
    PYr = v(84, 16)
    class _P:
        def __getitem__(self, i):
            return PY[i]
    layernorm(A, PN, _P(), F, T)
    A("v_lshrrev_b32", va, 4, vtok)
    A("v_mul_u32_u24", va, 18432, va)
    A("v_lshrrev_b32", vb, 1, vj)
    A("v_lshl_add_u32", va, vb, 8, va)
    A("v_and_b32", vb, 15, vtok)
    A("v_lshl_add_u32", va, vb, 4, va)
    A("v_and_b32", vb, 1, vj)
    A("v_lshl_add_u32", va, vb, 3, va)
    for i in range(5):
        A("s_mov_b32", s(64 + i), WS_Y + i * 4096)
    for i in range(8):
        A("buffer_store_dwordx2", PYr[2 * i:2 * i + 2], va, sWS, s(64 + i // 2), mods=f"offen offset:{(i & 1) * 2048}")
    A("buffer_store_dwordx2", v(22, 2), va, sWS, s(68), mods="offen")
    stamp(A, 3)
    A("s_waitcnt", "vmcnt(18) lgkmcnt(0)")
    A("s_barrier")
    for ks in range(18):
        for q in range(2):
            A("ds_read_b64_tr_b16", G[8 * ks + 2 * q:8 * ks + 2 * q + 2], vgo, mods=f"offset:{ks * 1152 + q * 144}")
    A("v_mul_u32_u24", vl, 1168, vj)
    A("v_lshl_add_u32", vl, vg, 4, vl)
    XF = v(28, 72)
    for ks in range(18):
        A("ds_read_b128", XF[4 * ks:4 * ks + 4], vl, mods=f"offset:{ks * 64}")
    stamp(A, 4)
    D = v(12, 4)
    for r in range(4):
        A("v_mov_b32", D[r], 0)
    A("s_waitcnt", "lgkmcnt(0)")
    LV = A.newlabel("k1_v")
    A("s_lshr_b32", s(58), s(2), 1)
    A("s_lshl_b32", s(58), s(58), 12)
    A("s_add_u32", s(58), s(58), WS_KV)
    A("s_and_b32", s(59), s(2), 1)
    A("s_cmp_ge_u32", s(28), 2)
    A("s_cbranch_scc1", LV)
    for ks in range(18):
        A("v_mfma_f32_16x16x32_bf16", D, G[8 * ks:8 * ks + 4], XF[4 * ks:4 * ks + 4], D)
    A("s_lshl_b32", s(60), s(30), 6)
    A("s_add_u32", s(58), s(58), s(60))
    A("s_lshl_b32", s(60), s(59), 8)
    A("s_add_u32", s(58), s(58), s(60))
    A("v_lshrrev_b32", va, 1, vg)
    A("v_lshlrev_b32", va, 5, va)
    A("v_add_u32", va, va, vj)
    A("v_lshlrev_b32", va, 4, va)
    A("v_and_b32", vb, 1, vg)
    A("v_lshl_add_u32", va, vb, 3, va)
    A("v_cmp_eq_u32", VCC, 0, vg)
    A("s_cmp_eq_u32", s(28), 1)
    A("s_cselect_b64", s(62, 2), VCC, 0)
    A("s_cselect_b64", s(64, 2), -1, 0)
    A("s_andn2_b64", s(66, 2), s(64, 2), s(62, 2))
    A("v_cndmask_b32", D[0], D[0], 0, s(66, 2))
    A("v_cndmask_b32", D[1], D[1], 0, s(66, 2))
    A("v_cndmask_b32", D[2], D[2], 0, s(64, 2))
    A("v_cndmask_b32", D[3], D[3], 0, s(64, 2))
    A("v_cndmask_b32", D[2], D[2], 1.0, s(62, 2))
    A("v_cvt_pk_bf16_f32", v(16), D[0], D[1])
    A("v_cvt_pk_bf16_f32", v(17), D[2], D[3])
    A("buffer_store_dwordx2", v(16, 2), va, sWS, s(58), mods="offen")
    stamp(A, 5)
    A("s_waitcnt", "vmcnt(0) lgkmcnt(0)")
    stamp(A, 6)
    A("s_waitcnt", "lgkmcnt(0)")
    stamp_flush(A, 7, 37, s(28), 0)
    A("s_endpgm")
    A.label(LV)
    for ks in range(18):
        A("v_mfma_f32_16x16x32_bf16", D, XF[4 * ks:4 * ks + 4], G[8 * ks:8 * ks + 4], D)
    A("s_lshl_b32", s(60), s(59), 10)
    A("s_add_u32", s(58), s(58), s(60))
    A("s_add_u32", s(58), s(58), 2048)
    A("s_lshl_b32", s(60), s(30), 4)
    A("s_add_u32", s(58), s(58), s(60))
    A("v_and_b32", va, 1, vg)
    A("v_lshlrev_b32", va, 5, va)
    A("v_add_u32", va, va, vj)
    A("v_lshlrev_b32", va, 4, va)
    A("v_lshrrev_b32", vb, 1, vg)
    A("v_lshl_add_u32", va, vb, 3, va)
    A("v_cmp_eq_u32", VCC, 2, vj)
    A("s_cmp_eq_u32", s(28), 3)
    A("s_cselect_b64", s(62, 2), VCC, 0)
    A("v_cmp_lt_u32", VCC, 2, vj)
    A("s_cselect_b64", s(64, 2), VCC, 0)
    for r in range(4):
        A("v_cndmask_b32", D[r], D[r], 1.0, s(62, 2))
        A("v_cndmask_b32", D[r], D[r], 0, s(64, 2))
    A("v_cvt_pk_bf16_f32", v(16), D[0], D[1])
    A("v_cvt_pk_bf16_f32", v(17), D[2], D[3])
    A("buffer_store_dwordx2", v(16, 2), va, sWS, s(58), mods="offen")
    A("s_endpgm")
    A.label(Lpack)
    srd(A, sWQ, s(6, 2), 576 * 1152 + 64)
    A("s_sub_u32", s(36), s(2), 128)
    A("s_lshl_b32", s(36), s(36), 2)
    A("s_add_u32", s(36), s(36), s(28))
    A("s_mul_i32", s(37), s(36), 43691)
    A("s_lshr_b32", s(37), s(37), 19)
    A("s_mul_i32", s(38), s(37), 12)
    A("s_sub_u32", s(38), s(36), s(38))
    A("s_mul_i32", s(38), s(38), 3)
    vi, vh, vr, vs = v(2), v(3), v(4), v(5)
    A("v_and_b32", vi, 31, v(1))
    A("v_bfe_u32", vh, vi, 2, 1)
    A("v_lshrrev_b32", vr, 3, vi)
    A("v_lshlrev_b32", vr, 2, vr)
    A("v_and_b32", v(6), 3, vi)
    A("v_or_b32", vr, vr, v(6))
    A("v_lshl_add_u32", vs, vh, 3, vr)
    A("v_and_b32", v(6), 8, vr)
    A("v_add_u32", vs, vs, v(6))
    A("v_lshrrev_b32", v(6), 5, v(1))
    A("v_mul_u32_u24", v(7), 8 * 1152, v(6))
    A("v_lshl_add_u32", v(7), vs, 1, v(7))
    A("v_mov_b32", v(9), 0x7FF00000)
    A("v_cmp_gt_u32", VCC, 18, vs)
    A("v_cndmask_b32", v(7), v(9), v(7), VCC)
    A("s_mul_i32", s(39), s(38), 16 * 1152)
    A("s_mul_i32", s(40), s(37), 36)
    A("s_add_u32", s(39), s(39), s(40))
    G = v(16, 24)
    for f in range(3):
        for half in range(3):
            A("s_add_u32", s(41 + half), s(39), f * 16 * 1152 + half * 3456)
        for j in range(8):
            A("buffer_load_ushort", G[8 * f + j], v(7), sWQ, s(41 + j // 3), mods=f"offen offset:{(j % 3) * 1152}")
    A("s_waitcnt", "vmcnt(0)")
    for f in range(3):
        for q in range(4):
            A("v_lshl_or_b32", G[8 * f + q], G[8 * f + 2 * q + 1], 16, G[8 * f + 2 * q])
    A("s_mul_i32", s(40), s(37), 36)
    A("s_add_u32", s(40), s(40), s(38))
    A("s_mul_i32", s(40), s(40), 576)
    A("s_add_u32", s(40), s(40), WS_WQP)
    A("v_mul_u32_u24", v(8), 288, v(6))
    A("v_lshl_add_u32", v(8), vi, 4, v(8))
    A("v_cmp_gt_u32", VCC, 18, vi)
    A("v_cndmask_b32", v(8), v(9), v(8), VCC)
    for f in range(3):
        A("buffer_store_dwordx4", G[8 * f:8 * f + 4], v(8), sWS, s(40), mods=f"offen offset:{f * 576}")
    A.label(Lend)
    A("s_endpgm")
    return name


STAGE = 26624


def gemm_body(A, xstride, wstride, sXsrd, sWsrd, sXoff, sWoff, sN, sWave, init_acc, S0):
    ACC = v(0, 144)
    WF = v(144, 36)
    WX = v(180, 8)
    XF = [v(188, 16), v(204, 16)]
    vDX = v(220, 2)
    vDW = v(222, 5)
    vAX, vAW0, vAW1 = v(227), v(228), v(229)
    vCX, vCW0, vCW1 = v(230), v(231), v(232)
    vt = [v(233 + i) for i in range(8)]
    vtid = v(241)
    sP = [s(S0 + i) for i in range(7)]
    sStR, sStW, sK, sT0, sT1 = s(S0 + 7), s(S0 + 8), s(S0 + 9), s(S0 + 10), s(S0 + 11)
    A("v_mov_b32", vtid, v(0))
    lane = vt[0]
    A("v_and_b32", lane, 63, vtid)
    for i in range(2):
        A("s_lshl_b32", sT0, sWave, 1)
        A("s_add_u32", sT0, sT0, i)
        A("s_mul_i32", sT1, sT0, xstride)
        A("v_lshlrev_b32", vt[1], 4, lane)
        A("v_add_u32", vDX[i], sT1, vt[1])
        A("s_lshl_b32", sP[i], sT0, 10)
    for q in range(5):
        if q < 4:
            A("s_lshl_b32", sT0, sWave, 6)
            A("s_add_u32", sT0, sT0, 256 * q)
        else:
            A("s_lshl_b32", sT0, sWave, 5)
            A("s_add_u32", sT0, sT0, 1024)
        A("v_add_u32", vt[1], sT0, lane)
        A("v_mul_u32_u24", vt[2], 1821, vt[1])
        A("v_lshrrev_b32", vt[2], 16, vt[2])
        A("v_mul_u32_u24", vt[3], 36, vt[2])
        A("v_sub_u32", vt[3], vt[1], vt[3])
        A("v_lshrrev_b32", vt[4], 2, vt[2])
        A("v_and_b32", vt[4], 2, vt[4])
        A("v_xor_b32", vt[3], vt[3], vt[4])
        A("s_mov_b32", sT1, wstride)
        A("v_mul_lo_u32", vt[2], vt[2], sT1)
        A("v_lshl_add_u32", vDW[q], vt[3], 4, vt[2])
        A("s_lshl_b32", sP[2 + q], sT0, 4)
        A("s_add_u32", sP[2 + q], sP[2 + q], 8192)
    m_, g_ = vt[1], vt[2]
    A("v_and_b32", m_, 15, lane)
    A("v_lshrrev_b32", g_, 4, lane)
    A("s_lshr_b32", sT0, sWave, 1)
    A("s_lshl_b32", sT0, sT0, 12)
    A("v_lshlrev_b32", vt[3], 4, lane)
    A("v_add_u32", vAX, sT0, vt[3])
    A("v_lshrrev_b32", vt[3], 2, m_)
    A("v_lshl_add_u32", vt[3], g_, 3, vt[3])
    A("v_mul_u32_u24", vt[3], 36 * 16, vt[3])
    A("v_and_b32", vt[4], 3, lane)
    A("v_lshl_add_u32", vt[3], vt[4], 3, vt[3])
    A("s_and_b32", sT0, sWave, 1)
    A("s_mul_i32", sT1, sT0, 18 * 16)
    A("s_add_u32", sT1, sT1, 8192)
    A("v_add_u32", vt[3], sT1, vt[3])
    A("v_and_b32", vt[4], 1, g_)
    A("v_lshlrev_b32", vt[4], 5, vt[4])
    A("v_add_u32", vt[5], vt[3], vt[4])
    A("v_sub_u32", vt[6], vt[3], vt[4])
    A("s_cmp_eq_u32", sT0, 0)
    A("s_cselect_b64", s(S0 + 12, 2), -1, 0)
    A("v_cndmask_b32", vAW0, vt[6], vt[5], s(S0 + 12, 2))
    A("v_cndmask_b32", vAW1, vt[5], vt[6], s(S0 + 12, 2))

    def dma_stage(sStage):
        if "nodma" in EXP:
            return
        for i in range(2):
            A("s_add_u32", M0, sStage, sP[i])
            A("buffer_load_dwordx4", vDX[i], sXsrd, sXoff, mods="offen lds")
        for q in range(4):
            A("s_add_u32", M0, sStage, sP[2 + q])
            A("buffer_load_dwordx4", vDW[q], sWsrd, sWoff, mods="offen lds")
        A("s_add_u32", M0, sStage, sP[6])
        A("s_mov_b32", "exec_hi", 0)
        A("buffer_load_dwordx4", vDW[4], sWsrd, sWoff, mods="offen lds")
        A("s_mov_b64", EXEC, -1)
        A("s_add_u32", sXoff, sXoff, 1024)
        A("s_add_u32", sWoff, sWoff, 32 * wstride)

    def wreg(nt, par):
        if nt >= 7 and par:
            return WX[4 * (nt - 7):4 * (nt - 7) + 4]
        return WF[4 * nt:4 * nt + 4]

    def read_w(nt, par):
        a = vCW1 if nt & 1 else vCW0
        w = wreg(nt, par)
        A("ds_read_b64_tr_b16", w[0:2], a, mods=f"offset:{nt * 32}")
        A("ds_read_b64_tr_b16", w[2:4], a, mods=f"offset:{nt * 32 + 2304}")

    def read_x(mt, par):
        A("ds_read_b128", XF[par][4 * mt:4 * mt + 4], vCX, mods=f"offset:{mt * 1024}")

    def set_cur(sStage):
        A("v_add_u32", vCX, sStage, vAX)
        A("v_add_u32", vCW0, sStage, vAW0)
        A("v_add_u32", vCW1, sStage, vAW1)

    init_acc(ACC, 0)
    for st in range(3):
        A("s_mov_b32", sT0, st * STAGE)
        dma_stage(sT0)
    init_acc(ACC, 1)
    A("s_waitcnt", "vmcnt(14)")
    A("s_barrier")
    stamp(A, 1)
    A("s_mov_b32", sStR, 0)
    set_cur(sStR)
    for mt in range(4):
        read_x(mt, 0)
    for nt in range(9):
        read_w(nt, 0)
    A("s_mov_b32", sStR, STAGE)
    A("s_mov_b32", sStW, 0)
    A("s_mov_b32", sK, 0)
    Lloop = A.newlabel("gemm_loop")
    Ldone = A.newlabel("gemm_done")
    A.label(Lloop)
    for par in range(2):
        Lw0 = A.newlabel("gw0")
        Lw1 = A.newlabel("gw1")
        Lnd = A.newlabel("gnd")
        A("s_add_u32", sT0, sK, 2)
        A("s_cmp_lt_u32", sT0, sN)
        A("s_cbranch_scc1", Lw0)
        A("s_waitcnt", "vmcnt(0) lgkmcnt(0)")
        A("s_branch", Lw1)
        A.label(Lw0)
        A("s_waitcnt", "vmcnt(7) lgkmcnt(0)")
        A.label(Lw1)
        A("s_barrier")
        set_cur(sStR)
        A("s_add_u32", sT0, sK, 3)
        A("s_cmp_lt_u32", sT0, sN)
        A("s_cbranch_scc0", Lnd)
        dma_stage(sStW)
        A.label(Lnd)
        np_ = 1 - par
        if "nocomp" not in EXP:
            read_w(7, np_)
            read_w(8, np_)
        for nt in range(9 if "nocomp" not in EXP else 0):
            w = wreg(nt, par)
            for mt in range(4):
                acc = ACC[(nt * 4 + mt) * 4:(nt * 4 + mt) * 4 + 4]
                A("v_mfma_f32_16x16x32_bf16", acc, w, XF[par][4 * mt:4 * mt + 4], acc)
            if nt < 7:
                read_w(nt, np_)
            if nt < 4:
                read_x(nt, np_)
        A("s_mov_b32", sStW, sStR)
        A("s_add_u32", sStR, sStR, STAGE)
        A("s_cmp_eq_u32", sStR, 3 * STAGE)
        A("s_cselect_b32", sStR, 0, sStR)
        A("s_add_u32", sK, sK, 1)
        A("s_cmp_lt_u32", sK, sN)
        if par == 0:
            A("s_cbranch_scc0", Ldone)
        else:
            A("s_cbranch_scc1", Lloop)
    A.label(Ldone)
    A("s_waitcnt", "lgkmcnt(0)")
    return dict(ACC=ACC, vtid=vtid, vt=vt, tmp=v(144, 76))


C0 = -2.0 * 0.7978845608028654 * 1.4426950408889634
C1 = C0 * 0.044715


def gen_gemm1(A):
    stamp(A, 0)
    A("s_load_dwordx4", s(4, 4), s(0, 2), KA_W1)
    A("s_load_dwordx2", s(12, 2), s(0, 2), KA_WS)
    A("v_lshrrev_b32", v(1), 6, v(0))
    A("v_readfirstlane_b32", s(28), v(1))
    A("s_sub_u32", s(3), s(2), 256)
    A("s_lshr_b32", s(29), s(3), 5)
    A("s_lshl_b32", s(29), s(29), 1)
    A("s_bfe_u32", s(30), s(3), (1 << 16) | 2)
    A("s_add_u32", s(29), s(29), s(30))
    A("s_and_b32", s(30), s(3), 3)
    A("s_lshl_b32", s(30), s(30), 2)
    A("s_bfe_u32", s(31), s(3), (2 << 16) | 3)
    A("s_add_u32", s(30), s(30), s(31))
    A("s_waitcnt", "lgkmcnt(0)")
    sWS, sW, sB = s(16, 4), s(20, 4), s(24, 4)
    srd(A, sWS, s(12, 2), WS_SIZE)
    srd(A, sW, s(4, 2), 576 * 9216)
    srd(A, sB, s(6, 2), 4608 * 2)
    sXoff, sWoff, sN = s(32), s(33), s(34)
    A("s_mul_i32", sXoff, s(29), 8 * 18432)
    A("s_add_u32", sXoff, sXoff, WS_Y)
    A("s_mul_i32", sWoff, s(30), 576)
    A("s_mov_b32", sN, 18)

    def init_acc(ACC, phase):
        vt = [v(234 + i) for i in range(12)]
        BT = v(144, 18)
        if phase == 1:
            A("s_waitcnt", "vmcnt(21)")
            for nt in range(9):
                a0 = ACC[nt * 16:nt * 16 + 4]
                A("v_lshlrev_b32", a0[0], 16, BT[2 * nt])
                A("v_and_b32", a0[1], 0xFFFF0000, BT[2 * nt])
                A("v_lshlrev_b32", a0[2], 16, BT[2 * nt + 1])
                A("v_and_b32", a0[3], 0xFFFF0000, BT[2 * nt + 1])
                for mt in range(1, 4):
                    for r in range(4):
                        A("v_mov_b32", ACC[nt * 16 + mt * 4 + r], a0[r])
            return
        A("v_bfe_u32", vt[8], v(241), 4, 2)
        A("v_lshlrev_b32", vt[8], 3, vt[8])
        A("s_and_b32", s(35), s(28), 1)
        A("s_mul_i32", s(35), s(35), 288)
        A("s_add_u32", s(35), s(35), sWoff_save)
        for nt in range(9):
            A("buffer_load_dwordx2", BT[2 * nt:2 * nt + 2], vt[8], sB, s(35), mods=f"offen offset:{nt * 32}")

    sWoff_save = s(36)
    A("s_mov_b32", sWoff_save, sWoff)
    g = gemm_body(A, 18432, 9216, sWS, sW, sXoff, sWoff, sN, s(28), init_acc, 40)
    ACC, vtid = g["ACC"], g["vtid"]
    stamp(A, 2)
    A("s_mov_b32", s(60), f32bits(C1))
    A("s_mov_b32", s(61), f32bits(C0))
    t0, t1 = v(144), v(145)
    va, vb, vm, vg = v(146), v(147), v(148), v(149)
    PK = v(152, 4)
    A("v_and_b32", vm, 15, vtid)
    A("v_bfe_u32", vg, vtid, 4, 2)
    A("s_and_b32", s(62), s(28), 1)
    A("s_lshl_b32", s(63), s(62), 1)
    A("v_and_b32", t0, 1, vg)
    A("v_lshrrev_b32", t1, 1, vg)
    A("v_lshl_add_u32", t0, t0, 1, t1)
    A("v_add_u32", t0, s(63), t0)
    A("v_lshlrev_b32", t0, 8, t0)
    A("v_lshl_add_u32", va, vm, 4, t0)
    A("v_add_u32", t1, s(63), t1)
    A("v_lshlrev_b32", t1, 8, t1)
    A("v_lshl_add_u32", vb, vm, 4, t1)
    A("v_and_b32", t0, 1, vg)
    A("v_lshl_add_u32", vb, t0, 3, vb)
    A("s_lshr_b32", s(63), s(28), 1)
    A("s_lshl_b32", s(63), s(63), 2)
    A("s_lshl_b32", s(35), s(29), 3)
    A("s_add_u32", s(35), s(35), s(63))
    A("s_mul_i32", s(35), s(35), 162)
    A("s_mul_i32", s(63), s(30), 9)
    A("s_add_u32", s(35), s(35), s(63))
    A("s_lshl_b32", s(62), s(62), 2)
    A("s_add_u32", s(35), s(35), s(62))
    A("s_lshl_b32", s(35), s(35), 10)
    A("s_add_u32", s(35), s(35), WS_HO)
    for mt in range(4):
        A("s_add_u32", s(64 + mt), s(35), mt * 162 * 1024)
        A("s_add_u32", s(68 + mt), s(35), mt * 162 * 1024 + 4096)

    cC1, cC0, cONE = v(156, 2), v(158, 2), v(160, 2)
    TT = [v(162, 2), v(164, 2)]

    def gelu4(a):
        if "nogelu" in EXP:
            return
        for h in range(2):
            x2, T2 = a[2 * h:2 * h + 2], TT[h]
            A("v_pk_mul_f32", T2, x2, x2)
            A("v_pk_fma_f32", T2, T2, cC1, cC0)
            A("v_pk_mul_f32", T2, T2, x2)
        for h in range(2):
            for e in range(2):
                A("v_exp_f32", TT[h][e], TT[h][e])
        for h in range(2):
            A("v_pk_add_f32", TT[h], TT[h], cONE)
        for h in range(2):
            for e in range(2):
                A("v_rcp_f32", TT[h][e], TT[h][e])
        for h in range(2):
            A("v_pk_mul_f32", a[2 * h:2 * h + 2], a[2 * h:2 * h + 2], TT[h])

    for e in range(2):
        A("v_mov_b32", cC1[e], s(60))
        A("v_mov_b32", cC0[e], s(61))
        A("v_mov_b32", cONE[e], 1.0)
    for mt in range(4):
        for p in range(5):
            tiles = [2 * p, 2 * p + 1] if p < 4 else [8]
            for ti, nt in enumerate(tiles):
                a = ACC[(nt * 4 + mt) * 4:(nt * 4 + mt) * 4 + 4]
                gelu4(a)
                A("v_cvt_pk_bf16_f32", PK[2 * ti], a[0], a[1])
                A("v_cvt_pk_bf16_f32", PK[2 * ti + 1], a[2], a[3])
            if p < 4:
                A("v_permlane16_swap_b32", PK[0], PK[2])
                A("v_permlane16_swap_b32", PK[1], PK[3])
                A("buffer_store_dwordx4", PK, va, sWS, s(64 + mt), mods=f"offen offset:{p * 1024}")
            else:
                A("buffer_store_dwordx2", PK[0:2], vb, sWS, s(68 + mt), mods="offen")
    stamp(A, 3)
    A("s_waitcnt", "vmcnt(0) lgkmcnt(0)")
    stamp(A, 4)
    A("s_waitcnt", "lgkmcnt(0)")
    stamp_flush(A, 5, 256 + 37, s(28), 0, base=32)
    A("s_endpgm")


QSCALE = (18 ** -0.5) * 1.4426950408889634


def gen_attn(A):
    stamp(A, 0)
    A("s_load_dwordx2", s(12, 2), s(0, 2), KA_WS)
    A("v_lshrrev_b32", v(1), 6, v(0))
    A("v_readfirstlane_b32", s(28), v(1))
    A("s_and_b32", s(29), s(2), 7)
    A("s_lshl_b32", s(29), s(29), 2)
    A("s_bfe_u32", s(30), s(2), (2 << 16) | 3)
    A("s_add_u32", s(29), s(29), s(30))
    A("s_lshr_b32", s(30), s(2), 5)
    A("s_lshl_b32", s(30), s(30), 2)
    A("s_add_u32", s(30), s(30), s(28))
    A("s_waitcnt", "lgkmcnt(0)")
    sWS = s(16, 4)
    srd(A, sWS, s(12, 2), WS_SIZE)
    if "noprio" not in EXP:
        A("s_setprio", 3)
    vl16 = v(2)
    A("v_and_b32", v(1), 63, v(0))
    A("v_lshlrev_b32", vl16, 4, v(1))
    CH = 16384
    sKV = s(32)
    sPw = s(33)
    A("s_lshl_b32", sPw, s(28), 12)
    A("s_add_u32", sKV, sPw, WS_KV)

    def dma_chunk(sBuf):
        for i in range(4):
            A("s_add_u32", M0, sBuf, sPw)
            A("buffer_load_dwordx4", vl16, sWS, sKV, mods=f"offen offset:{i * 1024} lds")
        A("s_add_u32", sKV, sKV, CH)

    QA = [v(20, 16), v(36, 16)]
    BF = v(52, 48)
    AF = v(100, 144)
    XB = 32768
    vAo = v(244)
    A("s_mul_i32", s(36), s(30), 36 * 576)
    A("s_add_u32", s(36), s(36), WS_WQP)
    A("v_and_b32", v(245), 31, v(1))
    A("v_lshrrev_b32", v(246), 5, v(1))
    A("v_mul_u32_u24", v(246), 288, v(246))
    A("v_lshl_add_u32", vAo, v(245), 4, v(246))
    A("v_mov_b32", v(246), 0x7FF00000)
    A("v_cmp_gt_u32", VCC, 18, v(245))
    A("v_cndmask_b32", vAo, v(246), vAo, VCC)
    A("s_lshr_b32", s(50), s(28), 1)
    A("s_lshl_b32", s(37), s(29), 1)
    A("s_add_u32", s(37), s(37), s(50))
    A("s_mul_i32", s(37), s(37), 36864)
    A("s_and_b32", s(50), s(28), 1)
    A("s_mul_i32", s(50), s(50), 6 * 1024)
    A("s_add_u32", s(37), s(37), s(50))
    A("s_add_u32", s(37), s(37), WS_XNF)
    A("s_add_u32", s(38), s(37), 4096)
    A("s_mul_i32", s(51), s(28), 6 * 1024)
    A("s_add_u32", s(51), s(51), XB)

    def dma_x(ph):
        for i in range(6):
            if i in (0, 4):
                A("s_add_u32", M0, s(51), (ph & 1) * 24576 + (4096 if i else 0))
            A("buffer_load_dwordx4", vl16, sWS, s(38 if i >= 4 else 37), mods=f"offen offset:{(i & 3) * 1024} lds")
        A("s_add_u32", s(37), s(37), 12 * 1024)
        A("s_add_u32", s(38), s(38), 12 * 1024)

    def load_a(ph):
        for i in range(12):
            if i % 6 == 0 and (ph or i):
                A("s_add_u32", s(36), s(36), 6 * 576)
            A("buffer_load_dwordx4", AF[48 * ph + 4 * i:48 * ph + 4 * i + 4], vAo, sWS, s(36),
              mods=f"offen offset:{(i % 6) * 576}")

    A("v_add_u32", v(3), XB, vl16)
    dma_x(0)
    load_a(0)
    dma_x(1)
    load_a(1)
    A("s_mov_b32", s(35), 0)
    dma_chunk(s(35))
    A("s_mov_b32", s(35), CH)
    dma_chunk(s(35))
    load_a(2)
    for ct in range(2):
        for r in range(16):
            A("v_mov_b32", QA[ct][r], 0)
    for ph in range(3):
        A("s_waitcnt", f"vmcnt({(38, 26, 0)[ph]})")
        A("s_barrier")
        for half in range(2):
            for i in range(6):
                for ct in range(2):
                    o = (ph & 1) * 24576 + (ct * 12 + half * 6 + i) * 1024
                    A("ds_read_b128", BF[8 * i + 4 * ct:8 * i + 4 * ct + 4], v(3), mods=f"offset:{o}")
            for i in range(6):
                A("s_waitcnt", f"lgkmcnt({10 - 2 * i})")
                ks = half * 6 + i
                for ct in range(2):
                    A("v_mfma_f32_32x32x16_bf16", QA[ct], AF[48 * ph + 4 * ks:48 * ph + 4 * ks + 4],
                      BF[8 * i + 4 * ct:8 * i + 4 * ct + 4], QA[ct])
        if ph == 0:
            A("s_barrier")
            dma_x(2)
    stamp(A, 1)
    QF = [[v(4, 4), v(8, 4)], [v(12, 4), v(16, 4)]]
    A("s_mov_b32", s(39), f32bits(QSCALE))
    for ct in range(2):
        for r in range(16):
            A("v_mul_f32", QA[ct][r], s(39), QA[ct][r])
        for f in range(2):
            for q in range(4):
                A("v_cvt_pk_bf16_f32", QF[ct][f][q], QA[ct][8 * f + 2 * q], QA[ct][8 * f + 2 * q + 1])
    KF = [[v(20, 4), v(24, 4)], [v(28, 4), v(32, 4)]]
    VF = [[v(36, 4), v(40, 4)], [v(44, 4), v(48, 4)]]
    PK = [v(52, 8), v(60, 8)]
    O = [v(68, 16), v(84, 16)]
    S = [[v(100, 16), v(116, 16)], [v(132, 16), v(148, 16)]]
    Mx = [v(164), v(165)]
    TM = [v(166), v(167)]
    t1, t2, t3, t4 = v(168), v(169), v(170), v(171)
    vCur, vNxt = v(172), v(173)
    sT, sLow, sC, sB0, sB1, sB2, sBig = s(40), s(41), s(42), s(43), s(44), s(45), s(53)
    resc = []

    def rd_k(buf, addr, tile):
        if "anord" in EXP:
            return
        A("ds_read_b128", KF[buf][0], addr, mods=f"offset:{tile * 4096}")
        A("ds_read_b128", KF[buf][1], addr, mods=f"offset:{tile * 4096 + 1024}")

    def rd_v(buf, addr, tile):
        if "anord" in EXP:
            return
        A("ds_read_b128", VF[buf][0], addr, mods=f"offset:{tile * 4096 + 2048}")
        A("ds_read_b128", VF[buf][1], addr, mods=f"offset:{tile * 4096 + 3072}")

    def qk(sb, kb, ct, f):
        if "anoqk" in EXP:
            return
        A("v_mfma_f32_32x32x16_bf16", S[sb][ct], KF[kb][f], QF[ct][f], 0 if f == 0 else S[sb][ct])

    def tile_max(Sc):
        for ct in range(2):
            A("v_max3_f32", TM[ct], Sc[ct][0], Sc[ct][1], Sc[ct][2])
            for r in range(3, 15, 2):
                A("v_max3_f32", TM[ct], TM[ct], Sc[ct][r], Sc[ct][r + 1])
            A("v_max_f32", TM[ct], TM[ct], Sc[ct][15])

    def rescale(cur, from_l):
        for ct in range(2):
            src = O[ct][10] if from_l else TM[ct]
            A("v_mov_b32", t1, src)
            A("v_mov_b32", t2, src)
            A("v_permlane32_swap_b32", t1, t2)
            if from_l:
                A("v_log_f32", t1, t1)
                A("v_max_f32", t1, 0, t1)
            else:
                A("v_max_f32", t1, t1, t2)
                A("v_max_f32", t1, sLow, t1)
            A("v_add_f32", t1, Mx[ct], t1)
            A("v_and_b32", t1, 0xFFFF0000, t1)
            A("v_sub_f32", t2, t1, Mx[ct])
            A("v_mov_b32", Mx[ct], t1)
            A("v_xor_b32", t3, 0x80000000, t1)
            A("v_lshrrev_b32", QF[ct][1][1], 16, t3)
            for r in range(16):
                A("v_sub_f32", S[cur][ct][r], S[cur][ct][r], t2)
            A("v_sub_f32", t3, 0, t2)
            A("v_min_f32", t3, 0, t3)
            A("v_exp_f32", t3, t3)
            for r in range(16):
                A("v_mul_f32", O[ct][r], O[ct][r], t3)

    def attn_pass(safe):
        for ct in range(2):
            for r in range(16):
                A("v_mov_b32", O[ct][r], 0)
            A("v_mov_b32", Mx[ct], 0)
            A("v_mov_b32", QF[ct][1][1], 0)
        A("s_mov_b32", sT, 0xFF800000)
        A("s_mov_b32", sLow, 0xFF800000)
        A("s_mov_b32", sBig, f32bits(2.0 ** 24))
        A("s_waitcnt", "vmcnt(0)")
        A("s_barrier")
        A("v_mov_b32", vCur, vl16)
        A("v_add_u32", vNxt, CH, vl16)
        A("s_mov_b32", sB0, 0)
        A("s_mov_b32", sB1, CH)
        A("s_mov_b32", sB2, 2 * CH)
        rd_k(0, vCur, 0)
        rd_k(1, vCur, 1)
        rd_v(0, vCur, 0)
        A("s_waitcnt", "lgkmcnt(0)")
        for ct in range(2):
            qk(0, 0, ct, 0)
            qk(0, 0, ct, 1)
        if not safe:
            tile_max(S[0])
            rescale(0, False)
        A("s_mov_b32", sC, 0)
        stamp(A, 2)
        Lloop = A.newlabel("att_loop")
        A.label(Lloop)
        Lnd = A.newlabel("att_nd")
        A("s_waitcnt", "vmcnt(0) lgkmcnt(0)")
        A("s_barrier")
        A("s_cmp_lt_u32", sC, 14)
        A("s_cbranch_scc0", Lnd)
        dma_chunk(sB2)
        A.label(Lnd)
        if not safe:
            A("v_max_f32", t1, O[0][10], O[1][10])
            A("v_cmp_lt_f32", VCC, sBig, t1)
            Lr, Lb = A.newlabel("att_resc"), A.newlabel("att_back")
            A("s_cbranch_vccnz", Lr)
            A.label(Lb)
            resc.append((Lr, Lb, 0, True))
        for i in range(4):
            cur, nx = i & 1, 1 - (i & 1)
            Sc = S[cur]
            if safe:
                tile_max(Sc)
                A("v_max_f32", t1, TM[0], TM[1])
                A("v_cmp_lt_f32", VCC, sT, t1)
                Lr, Lb = A.newlabel("att_resc"), A.newlabel("att_back")
                A("s_cbranch_vccnz", Lr)
                A.label(Lb)
                resc.append((Lr, Lb, cur, False))
            if i:
                A("s_waitcnt", "lgkmcnt(2)")
            ex = lambda ct, r: A("v_exp_f32", Sc[ct][r], Sc[ct][r])
            cv = lambda ct, q: A("v_cvt_pk_bf16_f32", PK[ct][q], Sc[ct][2 * q], Sc[ct][2 * q + 1])
            pv = lambda ct, j: A("v_mfma_f32_32x32x16_bf16", O[ct], VF[cur][j], PK[ct][4 * j:4 * j + 4], O[ct])
            if "anoexp" in EXP:
                ex = lambda ct, r: None
            if "anopv" in EXP:
                pv = lambda ct, j: None
            if "anocv" in EXP:
                cv = lambda ct, q: None
            for r in range(0, 4):
                ex(0, r)
            qk(nx, nx, 0, 0)
            for r in range(4, 8):
                ex(0, r)
            qk(nx, nx, 0, 1)
            for r in range(8, 12):
                ex(0, r)
            qk(nx, nx, 1, 0)
            for r in range(12, 16):
                ex(0, r)
            qk(nx, nx, 1, 1)
            if i < 2:
                rd_k(cur, vCur, i + 2)
            else:
                rd_k(cur, vNxt, i - 2)
            for q in range(8):
                cv(0, q)
            A("s_waitcnt", "lgkmcnt(2)")
            pv(0, 0)
            for r in range(0, 4):
                ex(1, r)
            pv(0, 1)
            for r in range(4, 12):
                ex(1, r)
            for q in range(4):
                cv(1, q)
            pv(1, 0)
            for r in range(12, 16):
                ex(1, r)
            for q in range(4, 8):
                cv(1, q)
            if i < 3:
                rd_v(nx, vCur, i + 1)
            else:
                rd_v(nx, vNxt, 0)
            pv(1, 1)
        A("s_mov_b32", s(46), sB0)
        A("s_mov_b32", sB0, sB1)
        A("s_mov_b32", sB1, sB2)
        A("s_mov_b32", sB2, s(46))
        A("v_add_u32", vCur, sB0, vl16)
        A("v_add_u32", vNxt, sB1, vl16)
        A("s_add_u32", sC, sC, 1)
        A("s_cmp_lt_u32", sC, 16)
        A("s_cbranch_scc1", Lloop)

    Lsafe, Lepi = A.newlabel("att_safe"), A.newlabel("att_epi")
    if "safeonly" in EXP:
        attn_pass(True)
    else:
        attn_pass(False)
        A("s_mov_b32", s(54), f32bits(2.0 ** 100))
        A("v_cmp_nlt_f32", VCC, O[0][10], s(54))
        A("v_cmp_nlt_f32", s(58, 2), O[1][10], s(54))
        A("s_or_b64", VCC, VCC, s(58, 2))
        A("s_cmp_lg_u64", VCC, 0)
        A("s_cselect_b32", s(55), 1, 0)
        A("v_mov_b32", t1, s(55))
        A("s_lshl_b32", s(56), s(28), 2)
        A("s_add_u32", s(56), s(56), 3 * CH)
        A("v_mov_b32", t2, s(56))
        A("ds_write_b32", t2, t1)
        A("s_waitcnt", "lgkmcnt(0)")
        A("s_barrier")
        A("v_mov_b32", t2, 3 * CH)
        A("ds_read_b128", v(176, 4), t2)
        A("s_waitcnt", "lgkmcnt(0)")
        A("v_or_b32", t1, v(176), v(177))
        A("v_or3_b32", t1, t1, v(178), v(179))
        A("v_readfirstlane_b32", s(55), t1)
        A("s_cmp_lg_u32", s(55), 0)
        A("s_cbranch_scc1", Lsafe)
    A.label(Lepi)
    stamp(A, 3)
    A("s_waitcnt", "lgkmcnt(0)")
    VA = [v(174 + i) for i in range(5)]
    A("v_and_b32", t1, 15, v(1))
    A("v_lshlrev_b32", t1, 4, t1)
    A("v_bfe_u32", t2, v(1), 4, 1)
    A("s_mov_b32", s(47), 162 * 1024)
    A("v_mul_lo_u32", t2, t2, s(47))
    A("v_add_u32", t1, t1, t2)
    A("v_lshrrev_b32", t2, 5, v(1))
    A("v_lshlrev_b32", t2, 2, t2)
    A("s_mul_i32", s(48), s(30), 18)
    A("s_add_u32", s(48), s(48), 4608)
    A("v_add_u32", t2, s(48), t2)
    for i, dc in enumerate((0, 2, 8, 10, 16)):
        A("v_add_u32", t3, dc, t2)
        A("v_lshrrev_b32", t4, 3, t3)
        A("v_lshl_add_u32", VA[i], t4, 8, t1)
        A("v_and_b32", t3, 7, t3)
        A("v_lshl_add_u32", VA[i], t3, 1, VA[i])
    A("s_mul_i32", s(48), s(29), 4 * 162 * 1024)
    A("s_add_u32", s(48), s(48), WS_HO)
    A("s_add_u32", s(49), s(48), 2 * 162 * 1024)
    for ct in range(2):
        A("v_mov_b32", t1, O[ct][10])
        A("v_mov_b32", t2, O[ct][10])
        A("v_permlane32_swap_b32", t1, t2)
        A("v_rcp_f32", t1, t1)
        for r in range(10):
            A("v_mul_f32", O[ct][r], O[ct][r], t1)
        for q in range(5):
            A("v_cvt_pk_bf16_f32", PK[ct][q], O[ct][2 * q], O[ct][2 * q + 1])
        for q in range(4):
            A("buffer_store_dword", PK[ct][q], VA[q], sWS, s(48 + ct), mods="offen")
    A("s_mov_b32", "exec_hi", 0)
    for ct in range(2):
        A("buffer_store_dword", PK[ct][4], VA[4], sWS, s(48 + ct), mods="offen")
    A("s_mov_b64", EXEC, -1)
    stamp(A, 4)
    A("s_waitcnt", "vmcnt(0) lgkmcnt(0)")
    stamp_flush(A, 5, 37, s(28), 0)
    A("s_endpgm")
    if "safeonly" not in EXP:
        A.label(Lsafe)
        A("s_add_u32", sKV, sPw, WS_KV)
        A("s_mov_b32", s(35), 0)
        dma_chunk(s(35))
        A("s_mov_b32", s(35), CH)
        dma_chunk(s(35))
        attn_pass(True)
        A("s_branch", Lepi)
    for (Lr, Lb, cur, from_l) in resc:
        A.label(Lr)
        rescale(cur, from_l)
        if not from_l:
            A("s_mov_b32", sT, f32bits(8.0))
            A("s_mov_b32", sLow, 0)
        A("s_branch", Lb)


def gen_k2(A):
    name = "k2_kernel"
    kernel_header(A, name)
    Lg, Lend = A.newlabel("k2_gemm"), A.newlabel("k2_end")
    A("s_cmp_ge_u32", s(2), 512)
    A("s_cbranch_scc1", Lend)
    A("s_cmp_ge_u32", s(2), 256)
    A("s_cbranch_scc1", Lend if "attonly" in EXP else Lg)
    if "gemmonly" in EXP:
        A("s_branch", Lend)
    gen_attn(A)
    A.label(Lg)
    gen_gemm1(A)
    A.label(Lend)
    A("s_endpgm")
    return name


K3_STAGE = 9600
K3_LDS = 4 * 4 * K3_STAGE


def gen_k3(A):
    name = "k3_kernel"
    kernel_header(A, name)
    Lend = A.newlabel("k3_end")
    A("s_cmp_ge_u32", s(2), 256)
    A("s_cbranch_scc1", Lend)
    A("s_load_dwordx2", s(4, 2), s(0, 2), KA_W2)
    A("s_load_dwordx2", s(6, 2), s(0, 2), KA_WO)
    A("s_load_dwordx2", s(12, 2), s(0, 2), KA_WS)
    stamp(A, 0)
    A("v_lshrrev_b32", v(1), 6, v(0))
    A("v_readfirstlane_b32", s(28), v(1))
    A("s_and_b32", s(31), s(2), 3)
    A("s_lshr_b32", s(30), s(2), 6)
    A("s_bfe_u32", s(29), s(2), (4 << 16) | 2)
    A("s_lshr_b32", s(26), s(28), 1)
    A("s_and_b32", s(27), s(28), 1)
    A("s_lshl_b32", s(25), s(31), 2)
    A("s_add_u32", s(25), s(25), s(26))
    A("s_waitcnt", "lgkmcnt(0)")
    sWS, sW = s(16, 4), s(20, 4)
    srd(A, sWS, s(12, 2), WS_SIZE)
    sCnt, sWoff = s(34), s(33)
    sX = [s(36 + i) for i in range(4)]
    sW2, sWoff2 = s(64, 4), s(68)
    sX2 = [s(69 + i) for i in range(4)]
    srd(A, sW, s(4, 2), 4608 * 1152)
    srd(A, sW2, s(6, 2), 576 * 1152)
    A("s_mul_i32", s(41), s(25), 9)
    A("s_cmp_gt_u32", s(25), 0)
    A("s_addc_u32", s(42), s(25), 0)
    A("s_cmp_gt_u32", s(25), 8)
    A("s_addc_u32", s(42), s(42), 0)
    A("s_and_b32", s(40), s(25), 7)
    A("s_cmp_eq_u32", s(40), 0)
    A("s_cselect_b32", sCnt, 11, 10)
    A("s_mul_i32", sWoff, s(41), 32 * 1152)
    A("s_mul_i32", s(46), s(30), 288)
    A("s_add_u32", sWoff, sWoff, s(46))
    A("s_mul_i32", sWoff2, s(42), 32 * 1152)
    A("s_add_u32", sWoff2, sWoff2, s(46))
    A("s_lshl_b32", s(46), s(29), 7)
    A("s_lshl_b32", s(47), s(27), 6)
    A("s_add_u32", s(46), s(46), s(47))
    A("s_lshr_b32", s(47), s(46), 4)
    A("s_mul_i32", s(47), s(47), 162)
    A("s_add_u32", s(48), s(47), s(42))
    A("s_add_u32", s(48), s(48), 144)
    A("s_add_u32", s(47), s(47), s(41))
    A("s_lshl_b32", s(47), s(47), 10)
    A("s_add_u32", s(47), s(47), WS_HO)
    A("s_lshl_b32", s(48), s(48), 10)
    A("s_add_u32", s(48), s(48), WS_HO)
    for mt in range(4):
        A("s_add_u32", sX[mt], s(47), mt * 162 * 1024)
        A("s_add_u32", sX2[mt], s(48), mt * 162 * 1024)
    ACC = v(0, 144)
    WF = v(144, 36)
    WX = v(180, 8)
    XF = [v(188, 16), v(204, 16), v(220, 16)]
    vDW = v(236, 5)
    vDX, vAW, vtid = v(241), v(242), v(246)
    vt = [v(247 + i) for i in range(7)]
    A("v_mov_b32", vtid, v(0))
    lane = vt[0]
    A("v_and_b32", lane, 63, vtid)
    A("v_lshlrev_b32", vDX, 4, lane)
    for st in range(2):
        for mt in range(4):
            A("buffer_load_dwordx4", XF[st][4 * mt:4 * mt + 4], vDX, sWS, sX[mt], mods="offen")
            A("s_add_u32", sX[mt], sX[mt], 1024)
    sGB = s(49)
    A("s_mul_i32", sGB, s(26), 4 * K3_STAGE)
    sP = [s(50 + q) for q in range(5)]
    A("s_mul_i32", s(55), s(27), 300)
    for q in range(5):
        A("s_add_u32", s(56), s(55), 64 * q)
        A("v_add_u32", vt[1], s(56), lane)
        A("v_mul_u32_u24", vt[2], 432, vt[1])
        A("v_lshrrev_b32", vt[2], 16, vt[2])
        A("v_mul_u32_u24", vt[3], 152, vt[2])
        A("v_sub_u32", vt[3], vt[1], vt[3])
        A("v_mul_u32_u24", vt[4], 3641, vt[3])
        A("v_lshrrev_b32", vt[4], 16, vt[4])
        A("v_mul_u32_u24", vt[5], 18, vt[4])
        A("v_sub_u32", vt[5], vt[3], vt[5])
        A("v_lshl_add_u32", vt[4], vt[2], 3, vt[4])
        A("v_mul_u32_u24", vt[4], 1152, vt[4])
        A("v_lshl_add_u32", vt[4], vt[5], 4, vt[4])
        A("v_mov_b32", vt[5], 0x7FF00000)
        A("v_cmp_gt_u32", VCC, 144, vt[3])
        A("v_cndmask_b32", vDW[q], vt[5], vt[4], VCC)
        A("s_lshl_b32", sP[q], s(56), 4)
        A("s_add_u32", sP[q], sP[q], sGB)
    m_, g_ = vt[1], vt[2]
    A("v_and_b32", m_, 15, lane)
    A("v_lshrrev_b32", g_, 4, lane)
    A("v_lshrrev_b32", vt[3], 2, m_)
    A("v_mul_u32_u24", vt[3], 18 * 16, vt[3])
    A("v_mul_u32_u24", vt[4], 152 * 16, g_)
    A("v_add_u32", vt[3], vt[3], vt[4])
    A("v_and_b32", vt[4], 3, lane)
    A("v_lshl_add_u32", vt[3], vt[4], 3, vt[3])
    A("v_add_u32", vAW, sGB, vt[3])

    def dma_w(st):
        if "k3now" in EXP:
            return
        for q in range(5):
            A("s_add_u32", M0, sP[q], (st % 4) * K3_STAGE)
            if q == 4:
                A("s_mov_b32", "exec_hi", 0xFFF)
            A("buffer_load_dwordx4", vDW[q], sW if st < 9 else sW2, sWoff if st < 9 else sWoff2, mods="offen lds")
            if q == 4:
                A("s_mov_b64", EXEC, -1)
        so = sWoff if st < 9 else sWoff2
        A("s_add_u32", so, so, 32 * 1152)

    def load_x(st):
        if "k3nox" in EXP:
            return
        for mt in range(4):
            sx = sX[mt] if st < 9 else sX2[mt]
            A("buffer_load_dwordx4", XF[st % 3][4 * mt:4 * mt + 4], vDX, sWS, sx, mods="offen")
            A("s_add_u32", sx, sx, 1024)

    def wreg(nt, par):
        if nt >= 7 and par:
            return WX[4 * (nt - 7):4 * (nt - 7) + 4]
        return WF[4 * nt:4 * nt + 4]

    def read_w(nt, st):
        w = wreg(nt, st & 1)
        o = (st % 4) * K3_STAGE + nt * 32
        A("ds_read_b64_tr_b16", w[0:2], vAW, mods=f"offset:{o}")
        A("ds_read_b64_tr_b16", w[2:4], vAW, mods=f"offset:{o + 1152}")

    dma_w(0)
    dma_w(1)
    dma_w(2)
    dma_w(3)
    for r in range(144):
        A("v_mov_b32", ACC[r], 0)
    stamp(A, 1)
    A("s_waitcnt", "vmcnt(15)")
    A("s_barrier")
    stamp(A, 2)
    for nt in range(9):
        read_w(nt, 0)
    for k in range(11):
        Lskip = A.newlabel("k3_skip")
        if k < 2:
            A("s_waitcnt", f"vmcnt({(10, 14)[k]}) lgkmcnt(0)")
        elif k <= 5:
            A("s_waitcnt", "vmcnt(9) lgkmcnt(0)")
        else:
            La, Lb, Lc = A.newlabel("k3w"), A.newlabel("k3w"), A.newlabel("k3w")
            if k + 3 < 11:
                A("s_cmp_lt_u32", k + 3, sCnt)
                A("s_cbranch_scc1", La)
            if k + 1 < 11:
                A("s_cmp_lt_u32", k + 1, sCnt)
                A("s_cbranch_scc1", Lb)
            A("s_waitcnt", "vmcnt(0) lgkmcnt(0)")
            A("s_branch", Lc)
            A.label(La)
            A("s_waitcnt", "vmcnt(9) lgkmcnt(0)")
            A("s_branch", Lc)
            A.label(Lb)
            A("s_waitcnt", "vmcnt(4) lgkmcnt(0)")
            A.label(Lc)
        A("s_barrier")
        if k >= 9:
            A("s_cmp_lt_u32", k, sCnt)
            A("s_cbranch_scc0", Lskip)
        if k + 4 < 11:
            if k + 4 >= 9:
                Ln = A.newlabel("k3n")
                A("s_cmp_lt_u32", k + 4, sCnt)
                A("s_cbranch_scc0", Ln)
            dma_w(k + 4)
            if k + 4 >= 9:
                A.label(Ln)
        if k + 2 < 11:
            if k + 2 >= 9:
                Ln = A.newlabel("k3n")
                A("s_cmp_lt_u32", k + 2, sCnt)
                A("s_cbranch_scc0", Ln)
            load_x(k + 2)
            if k + 2 >= 9:
                A.label(Ln)
        nxt = k + 1 < 11
        if nxt:
            read_w(7, k + 1)
            read_w(8, k + 1)
        for nt in range(9):
            w = wreg(nt, k & 1)
            for mt in range(4 if "k3nom" not in EXP else 0):
                acc = ACC[(nt * 4 + mt) * 4:(nt * 4 + mt) * 4 + 4]
                A("v_mfma_f32_16x16x32_bf16", acc, w, XF[k % 3][4 * mt:4 * mt + 4], acc)
            if nt < 7 and nxt:
                read_w(nt, k + 1)
        A.label(Lskip)
        if k in (0, 5):
            stamp(A, 3 + (k == 5))
    A("s_waitcnt", "vmcnt(0) lgkmcnt(0)")
    A("s_barrier")
    stamp(A, 5)
    vW_, vR_ = v(236), v(237)
    TMP = v(144, 72)
    A("v_and_b32", lane, 63, vtid)
    vl16 = v(240)
    A("v_lshlrev_b32", vl16, 4, lane)
    A("s_mul_i32", s(56), s(28), 18432)
    A("v_add_u32", vW_, s(56), vl16)
    A("s_xor_b32", s(57), s(28), 2)
    A("s_mul_i32", s(57), s(57), 18432)
    A("v_add_u32", vR_, s(57), vl16)

    def tile(nt, mt):
        return ACC[(nt * 4 + mt) * 4:(nt * 4 + mt) * 4 + 4]

    va, vb = v(238), v(239)
    A("v_and_b32", m_, 15, lane)
    A("v_lshrrev_b32", g_, 4, lane)
    A("v_add_u32", va, s(46), m_)
    A("v_mul_u32_u24", va, 1152, va)
    A("v_lshl_add_u32", vb, g_, 3, va)
    A("v_and_b32", vt[3], 1, g_)
    A("v_lshl_add_u32", va, vt[3], 5, va)
    A("v_lshrrev_b32", vt[3], 1, g_)
    A("v_lshl_add_u32", va, vt[3], 4, va)
    A("s_mul_i32", s(58), s(31), 2048 * 1152)
    A("s_mul_i32", s(59), s(30), 288)
    A("s_add_u32", s(58), s(58), s(59))
    A("s_add_u32", s(58), s(58), WS_PART)
    Lv = [A.newlabel("k3_v") for _ in range(4)]
    A("s_and_b32", s(59), s(26), 1)
    A("s_cmp_eq_u32", s(59), 1)
    A("s_cbranch_scc1", Lv[1])
    for b0 in range(2):
        if b0:
            A.label(Lv[1])
        keep = [2 * b0, 2 * b0 + 1]
        send = [2 - 2 * b0, 3 - 2 * b0]
        i = 0
        for nt in range(9):
            for mt in send:
                A("ds_write_b128", vW_, tile(nt, mt), mods=f"offset:{i * 1024}")
                i += 1
        A("s_waitcnt", "lgkmcnt(0)")
        A("s_barrier")
        for i in range(18):
            A("ds_read_b128", TMP[4 * i:4 * i + 4], vR_, mods=f"offset:{i * 1024}")
        i = 0
        for nt in range(9):
            for mt in keep:
                A("s_waitcnt", f"lgkmcnt({min(17 - i, 15)})")
                for r in (0, 2):
                    A("v_pk_add_f32", tile(nt, mt)[r:r + 2], tile(nt, mt)[r:r + 2], TMP[4 * i + r:4 * i + r + 2])
                i += 1
        A("s_barrier")
        A("s_xor_b32", s(57), s(28), 4)
        A("s_mul_i32", s(57), s(57), 18432)
        A("v_add_u32", vR_, s(57), vl16)
        A("s_cmp_ge_u32", s(26), 2)
        A("s_cbranch_scc1", Lv[2 + b0])
        for b1 in range(2):
            if b1:
                A.label(Lv[2 + b0])
            km, sm = keep[b1], keep[1 - b1]
            for nt in range(9):
                A("ds_write_b128", vW_, tile(nt, sm), mods=f"offset:{nt * 1024}")
            A("s_waitcnt", "lgkmcnt(0)")
            A("s_barrier")
            for nt in range(9):
                A("ds_read_b128", TMP[4 * nt:4 * nt + 4], vR_, mods=f"offset:{nt * 1024}")
            A("s_add_u32", s(60), s(58), km * 16 * 1152)
            PK = v(220, 4)
            for p in range(5):
                tiles = [2 * p, 2 * p + 1] if p < 4 else [8]
                A("s_waitcnt", f"lgkmcnt({8 - tiles[-1]})")
                for ti, nt in enumerate(tiles):
                    a = tile(nt, km)
                    for r in (0, 2):
                        A("v_pk_add_f32", a[r:r + 2], a[r:r + 2], TMP[4 * nt + r:4 * nt + r + 2])
                    A("v_cvt_pk_bf16_f32", PK[2 * ti], a[0], a[1])
                    A("v_cvt_pk_bf16_f32", PK[2 * ti + 1], a[2], a[3])
                if p < 4:
                    A("v_permlane16_swap_b32", PK[0], PK[2])
                    A("v_permlane16_swap_b32", PK[1], PK[3])
                    A("buffer_store_dwordx4", PK, va, sWS, s(60), mods=f"offen offset:{p * 64}")
                else:
                    A("buffer_store_dwordx2", PK[0:2], vb, sWS, s(60), mods="offen offset:256")
            stamp(A, 6)
            A("s_waitcnt", "vmcnt(0)")
            stamp(A, 7)
            A("s_waitcnt", "lgkmcnt(0)")
            stamp_flush(A, 8, 37, s(28), 0)
            A("s_endpgm")
    A.label(Lend)
    A("s_endpgm")
    return name


def gen_k4(A):
    name = "k4_kernel"
    kernel_header(A, name)
    Lend = A.newlabel("k4_end")
    A("s_cmp_ge_u32", s(2), 576)
    A("s_cbranch_scc1", Lend)
    A("s_load_dwordx2", s(4, 2), s(0, 2), KA_X)
    A("s_load_dwordx4", s(8, 4), s(0, 2), KA_B2)
    A("s_load_dwordx2", s(12, 2), s(0, 2), KA_WS)
    A("s_lshl_b32", s(3), s(2), 8)
    A("v_add_u32", v(1), s(3), v(0))
    A("v_lshlrev_b32", v(2), 4, v(1))
    A("s_mov_b32", s(14), 59652324)
    A("v_mul_hi_u32", v(4), v(1), s(14))
    A("v_mul_u32_u24", v(4), 72, v(4))
    A("v_sub_u32", v(4), v(1), v(4))
    A("v_lshlrev_b32", v(4), 4, v(4))
    A("s_waitcnt", "lgkmcnt(0)")
    sX, sB, sO, sWS = s(16, 4), s(20, 4), s(24, 4), s(28, 4)
    srd(A, sX, s(4, 2), 2048 * 1152)
    srd(A, sB, s(8, 2), 1152)
    srd(A, sO, s(10, 2), 2048 * 1152)
    srd(A, sWS, s(12, 2), WS_SIZE)
    P = v(16, 24)
    for sp in range(4):
        A("s_mov_b32", s(32 + sp), WS_PART + sp * 2048 * 1152)
        A("buffer_load_dwordx4", P[4 * sp:4 * sp + 4], v(2), sWS, s(32 + sp), mods="offen")
    A("buffer_load_dwordx4", P[16:20], v(2), sX, 0, mods="offen")
    A("buffer_load_dwordx4", P[20:24], v(4), sB, 0, mods="offen")
    acc = v(40, 8)
    for sp in range(6):
        A("s_waitcnt", f"vmcnt({5 - sp})")
        for q in range(4):
            if sp == 0:
                A("v_lshlrev_b32", acc[2 * q], 16, P[q])
                A("v_and_b32", acc[2 * q + 1], 0xFFFF0000, P[q])
            else:
                A("v_lshlrev_b32", v(5), 16, P[4 * sp + q])
                A("v_and_b32", v(6), 0xFFFF0000, P[4 * sp + q])
                A("v_add_f32", acc[2 * q], acc[2 * q], v(5))
                A("v_add_f32", acc[2 * q + 1], acc[2 * q + 1], v(6))
    for q in range(4):
        A("v_cvt_pk_bf16_f32", v(8 + q), acc[2 * q], acc[2 * q + 1])
    A("buffer_store_dwordx4", v(8, 4), v(2), sO, 0, mods="offen")
    A.label(Lend)
    A("s_endpgm")
    return name


def main():
    A = Asm()
    hdr = open(os.path.join(os.path.dirname(__file__), "..", "cdna_kernels", NAME + ".s.ref")).read().splitlines()
    head = []
    for l in hdr:
        if l.startswith(";") and "@launch" not in l:
            head.append(l)
        elif not l.startswith(";"):
            break
    head += [
        "; @launch kernel=k1_kernel grid=(224,1,1) block=(256,1,1) lds=108800",
        "; @launch kernel=k2_kernel grid=(512,1,1) block=(256,1,1) lds=81920",
        f"; @launch kernel=k3_kernel grid=(256,1,1) block=(512,1,1) lds={K3_LDS}",
        "; @launch kernel=k4_kernel grid=(576,1,1) block=(256,1,1) lds=0",
        '.amdgcn_target "amdgcn-amd-amdhsa--gfx950"',
        ".text",
    ]
    names = [gen_k1(A), gen_k2(A), gen_k3(A), gen_k4(A)]
    body = A.render()
    out = "\n".join(head) + "\n" + body + '.section .rodata,"a"\n'
    vg = {"k1_kernel": 256, "k2_kernel": 256, "k3_kernel": 256, "k4_kernel": 48}
    for n in names:
        out += ".p2align 6\n" + kd(n, vg[n])
    path = os.environ.get("OUT") or os.path.join(os.path.dirname(__file__), "..", "cdna_kernels", NAME + ".s")
    open(path, "w").write(out)
    print("wrote", path, len(out), "bytes")


if __name__ == "__main__":
    main()
```

```python
import struct
import sys
import os

sys.path.insert(0, os.path.dirname(__file__))
from asmdsl import Asm, R, v, s, VCC, EXEC, M0

EXP = os.environ.get("EXP", "")
NAME = "parallel_sum__grouped_kv_mqa__mixer_channel_mlp__prompt"

KA_X, KA_WQ, KA_WK, KA_WV, KA_WO, KA_BX, KA_W1, KA_B1, KA_W2, KA_B2, KA_OUT, KA_DBG, KA_WS = [8 * i for i in range(13)]

WS_XNF = 0x0
WS_Y = 0x240000
WS_KV = 0x480000
WS_WQP = 0x4C0000
WS_HO = 0x600000
WS_PART = 0x1C00000
WS_SIZE = 0x10000000
HO_STRIDE = 5184 * 2


def f32bits(x):
    return struct.unpack("<I", struct.pack("<f", x))[0]


def srd(A, dst, base, nbytes):
    A("s_mov_b32", dst[0], base[0])
    A("s_and_b32", dst[1], base[1], 0xFFFF)
    A("s_mov_b32", dst[2], nbytes)
    A("s_mov_b32", dst[3], 0x00020000)


def stamp(A, i):
    if "stamp" in EXP:
        A("s_memtime", s(80 + 2 * i, 2))


def stamp_flush(A, n, wg, wave_sgpr, wave, base=0):
    if "stamp" not in EXP:
        return
    L = A.newlabel("stf")
    A("s_cmp_lg_u32", s(2), wg)
    A("s_cbranch_scc1", L)
    A("s_cmp_lg_u32", wave_sgpr, wave)
    A("s_cbranch_scc1", L)
    A("s_load_dwordx2", s(76, 2), s(0, 2), KA_DBG)
    A("s_waitcnt", "lgkmcnt(0)")
    srd(A, s(72, 4), s(76, 2), 256)
    A("v_mov_b32", v(1), 0)
    for i in range(n):
        A("v_mov_b32", v(0), s(80 + 2 * i))
        A("buffer_store_dword", v(0), v(1), s(72, 4), 0, mods=f"offen offset:{base + 4 * i}")
    A.label(L)


def kernel_header(A, name):
    A.raw(f".globl {name}")
    A.raw(".p2align 8")
    A.raw(f".type {name},@function")
    A.raw(f"{name}:")


def kd(name, vgpr=256, sgpr=102):
    acc = (vgpr + 3) // 4 * 4
    return f""".amdhsa_kernel {name}
  .amdhsa_next_free_vgpr {vgpr}
  .amdhsa_next_free_sgpr {sgpr}
  .amdhsa_accum_offset {acc}
  .amdhsa_group_segment_fixed_size 0
  .amdhsa_kernarg_size 104
  .amdhsa_user_sgpr_count 2
  .amdhsa_user_sgpr_kernarg_segment_ptr 1
  .amdhsa_system_sgpr_workgroup_id_x 1
.end_amdhsa_kernel
"""


def reduce32(A, x, t, t2):
    for r in (8, 4, 2, 1):
        A("v_add_f32_dpp", t, x, x, mods=f"row_ror:{r} row_mask:0xf bank_mask:0xf")
        A("v_mov_b32", x, t)
    A("v_mov_b32", t2, x)
    A("v_permlane16_swap_b32", t, t2)
    A("v_add_f32", x, t, t2)


def layernorm(A, Pin, Pout, F, T, NP=9):
    for i in range(NP):
        A("v_lshlrev_b32", F[2 * i], 16, Pin[i])
        A("v_and_b32", F[2 * i + 1], 0xFFFF0000, Pin[i])
    sm, t0, mean, acc, mb, rr, t2 = T[0], T[1], T[2], T[3], T[4], T[5], T[6]
    A("v_add_f32", sm, F[0], F[1])
    for i in range(2, 2 * NP):
        A("v_add_f32", sm, sm, F[i])
    reduce32(A, sm, t0, t2)
    A("v_mul_f32", mean, f32bits(1.0 / 576.0), sm)
    A("v_mov_b32", acc, 0)
    for i in range(2 * NP):
        A("v_sub_f32", t0, F[i], mean)
        A("v_fmac_f32", acc, t0, t0)
    reduce32(A, acc, t0, t2)
    A("v_mul_f32", acc, f32bits(1.0 / 576.0), acc)
    A("v_cvt_pk_bf16_f32", t0, mean, acc)
    A("v_lshlrev_b32", mb, 16, t0)
    A("v_and_b32", acc, 0xFFFF0000, t0)
    A("v_add_f32", acc, f32bits(1e-5), acc)
    A("v_cvt_pk_bf16_f32", t0, acc, acc)
    A("v_lshlrev_b32", acc, 16, t0)
    A("v_sqrt_f32", acc, acc)
    A("v_cvt_pk_bf16_f32", t0, acc, acc)
    A("v_lshlrev_b32", acc, 16, t0)
    A("v_rcp_f32", rr, acc)
    for i in range(NP):
        a, b = F[2 * i], F[2 * i + 1]
        A("v_sub_f32", a, a, mb)
        A("v_sub_f32", b, b, mb)
        A("v_cvt_pk_bf16_f32", t0, a, b)
        A("v_lshlrev_b32", a, 16, t0)
        A("v_and_b32", b, 0xFFFF0000, t0)
        A("v_mul_f32", a, a, rr)
        A("v_mul_f32", b, b, rr)
        A("v_cvt_pk_bf16_f32", Pout[i], a, b)


def gen_k1(A):
    name = "k1_kernel"
    kernel_header(A, name)
    Lend = A.newlabel("k1_end")
    Lpack = A.newlabel("k1_pack")
    A("s_cmp_ge_u32", s(2), 176)
    A("s_cbranch_scc1", Lend)
    stamp(A, 0)
    A("s_load_dwordx8", s(4, 8), s(0, 2), KA_X)
    A("s_load_dwordx2", s(12, 2), s(0, 2), KA_WS)
    A("v_lshrrev_b32", v(1), 6, v(0))
    A("v_readfirstlane_b32", s(28), v(1))
    A("v_and_b32", v(1), 63, v(0))
    A("s_waitcnt", "lgkmcnt(0)")
    sX, sWS, sWK, sWQ = s(16, 4), s(20, 4), s(24, 4), s(32, 4)
    srd(A, sWS, s(12, 2), WS_SIZE)
    def touch(n):
        A("s_load_dwordx2", s(68, 2), s(0, 2), KA_W1)
        A("s_load_dwordx2", s(70, 2), s(0, 2), KA_W2)
        A("s_load_dwordx2", s(72, 2), s(0, 2), KA_WO)
        A("v_lshlrev_b32", v(250), 7, v(1))
        A("s_waitcnt", "lgkmcnt(0)")
        for i in range(n):
            sP = s(76, 4)
            A("s_add_u32", s(75), s(74), i)
            A("s_sub_u32", s(96), s(75), 648)
            A("s_sub_u32", s(97), s(75), 1296)
            A("s_cmp_lt_u32", s(75), 1296)
            A("s_cselect_b32", s(98), s(70), s(72))
            A("s_cselect_b32", s(99), s(71), s(73))
            A("s_cselect_b32", s(100), s(96), s(97))
            A("s_cmp_lt_u32", s(75), 648)
            A("s_cselect_b32", s(98), s(68), s(98))
            A("s_cselect_b32", s(99), s(69), s(99))
            A("s_cselect_b32", s(100), s(75), s(100))
            A("s_mov_b32", s(101), 648 * 8192)
            A("s_cmp_lt_u32", s(75), 1296)
            A("s_cselect_b32", s(101), s(101), 81 * 8192)
            A("s_mov_b32", sP[0], s(98))
            A("s_and_b32", sP[1], s(99), 0xFFFF)
            A("s_mov_b32", sP[2], s(101))
            A("s_mov_b32", sP[3], 0x00020000)
            A("s_lshl_b32", s(100), s(100), 13)
            A("buffer_load_dword", v(251 + i), v(250), sP, s(100), mods="offen")

    if "earlypf" in EXP:
        A("s_lshl_b32", s(74), s(2), 3)
        A("s_add_u32", s(74), s(74), s(28))
        touch(1)
        touch = lambda n: None
    A("s_cmp_ge_u32", s(2), 128)
    A("s_cbranch_scc1", Lpack)
    srd(A, sX, s(4, 2), 2048 * 1152)
    A("s_cmp_ge_u32", s(28), 4)
    A("s_cselect_b32", s(14), s(10), s(8))
    A("s_cselect_b32", s(15), s(11), s(9))
    srd(A, sWK, s(14, 2), 576 * 36)
    vj, vrow, vtok, vxo, vj32 = v(2), v(3), v(4), v(5), v(24)
    A("v_and_b32", vj, 15, v(0))
    A("v_and_b32", vj32, 31, v(0))
    A("v_lshrrev_b32", vrow, 5, v(0))
    A("s_lshl_b32", s(29), s(2), 4)
    A("v_add_u32", vtok, s(29), vrow)
    A("v_mul_u32_u24", vxo, 1152, vtok)
    A("v_lshl_add_u32", vxo, vj32, 2, vxo)
    PX = v(28, 9)
    for i in range(9):
        A("buffer_load_dword", PX[i], vxo, sX, 0, mods=f"offen offset:{i * 128}")
    vg, vgo = v(6), v(7)
    WB = 18688
    WR = 22528
    A("v_lshrrev_b32", vg, 4, v(1))
    A("s_lshr_b32", s(41), s(28), 2)
    A("s_mul_i32", s(41), s(41), 2 * WR)
    A("s_bfe_u32", s(42), s(28), (1 << 16) | 1)
    A("s_mul_i32", s(42), s(42), WR + 4)
    A("s_add_u32", s(41), s(41), s(42))
    A("s_and_b32", s(40), s(28), 1)
    A("s_mul_i32", s(40), s(40), 10 * 1024)
    A("s_add_u32", s(41), s(41), s(40))
    A("s_add_u32", s(41), s(41), WB)
    A("v_lshlrev_b32", v(9), 4, v(1))
    for i in range(11):
        if i % 4 == 0:
            A("s_add_u32", M0, s(41), i * 1024)
            A("s_add_u32", s(42), s(40), i * 1024)
        A("buffer_load_dwordx4", v(9), sWK, s(42), mods=f"offen offset:{(i & 3) * 1024} lds")
    A("s_and_b32", s(30), s(28), 1)
    A("s_bfe_u32", s(31), s(28), (1 << 16) | 1)
    A("s_mul_i32", s(31), s(31), 2 * WR)
    A("s_add_u32", s(31), s(31), WB)
    A("s_lshl_b32", s(30), s(30), 4)
    A("v_lshrrev_b32", v(8), 2, vj)
    A("v_lshl_add_u32", vgo, vg, 3, v(8))
    A("v_mul_u32_u24", vgo, 36, vgo)
    A("v_and_b32", v(8), 1, v(8))
    A("v_mul_u32_u24", v(8), WR + 4, v(8))
    A("v_add_u32", vgo, vgo, v(8))
    A("v_and_b32", v(8), 3, vj)
    A("v_lshl_add_u32", vgo, v(8), 3, vgo)
    A("s_lshl_b32", s(43), s(30), 1)
    A("s_add_u32", s(43), s(43), s(31))
    A("v_add_u32", vgo, s(43), vgo)
    G = v(100, 144)
    F = v(48, 18)
    T = v(10, 8)
    PN = v(28, 9)
    PY = v(84, 9)
    stamp(A, 1)
    A("s_waitcnt", "vmcnt(11)")
    stamp(A, 2)
    layernorm(A, PX, PN, F, T)
    for i in range(9):
        A("s_mov_b32", s(48 + i), WS_XNF + i * 4096)
    va, vb = v(18), v(19)
    A("v_lshrrev_b32", va, 5, vtok)
    A("v_mul_u32_u24", va, 36864, va)
    A("v_lshrrev_b32", vb, 3, vj32)
    A("v_lshl_add_u32", va, vb, 10, va)
    A("v_bfe_u32", vb, vj32, 2, 1)
    A("v_lshlrev_b32", vb, 5, vb)
    A("v_and_b32", v(20), 31, vtok)
    A("v_add_u32", vb, vb, v(20))
    A("v_lshl_add_u32", va, vb, 4, va)
    A("v_and_b32", vb, 3, vj32)
    A("v_lshl_add_u32", va, vb, 2, va)
    for i in range(9):
        A("buffer_store_dword", PN[i], va, sWS, s(48 + i), mods="offen")
    vl = v(21)
    A("v_mul_u32_u24", vl, 1168, vrow)
    A("v_lshl_add_u32", vl, vj32, 2, vl)
    for i in range(9):
        A("ds_write_b32", vl, PN[i], mods=f"offset:{i * 128}")
    layernorm(A, PN, PY, F, T)
    A("v_lshrrev_b32", va, 4, vtok)
    A("v_mul_u32_u24", va, 18432, va)
    A("v_lshrrev_b32", vb, 2, vj32)
    A("v_lshl_add_u32", va, vb, 8, va)
    A("v_and_b32", vb, 15, vtok)
    A("v_lshl_add_u32", va, vb, 4, va)
    A("v_and_b32", vb, 3, vj32)
    A("v_lshl_add_u32", va, vb, 2, va)
    for i in range(5):
        A("s_mov_b32", s(64 + i), WS_Y + i * 4096)
    for i in range(9):
        A("buffer_store_dword", PY[i], va, sWS, s(64 + i // 2), mods=f"offen offset:{(i & 1) * 2048}")
    stamp(A, 3)
    A("s_waitcnt", "vmcnt(18) lgkmcnt(0)")
    A("s_barrier")
    Lkv = A.newlabel("k1_kv")
    A("s_cmp_lt_u32", s(28), 4)
    A("s_cbranch_scc1", Lkv)
    A("s_lshl_b32", s(74), s(2), 2)
    A("s_add_u32", s(74), s(74), s(28))
    A("s_sub_u32", s(74), s(74), 4)
    A("s_lshl_b32", s(74), s(74), 1)
    touch(2)
    A("s_endpgm")
    A.label(Lkv)
    for ks in range(18):
        for q in range(2):
            A("ds_read_b64_tr_b16", G[8 * ks + 2 * q:8 * ks + 2 * q + 2], vgo, mods=f"offset:{ks * 1152 + q * 144}")
    A("v_mul_u32_u24", vl, 1168, vj)
    A("v_lshl_add_u32", vl, vg, 4, vl)
    XF = v(28, 72)
    for ks in range(18):
        A("ds_read_b128", XF[4 * ks:4 * ks + 4], vl, mods=f"offset:{ks * 64}")
    stamp(A, 4)
    D = v(12, 4)
    for r in range(4):
        A("v_mov_b32", D[r], 0)
    A("s_waitcnt", "lgkmcnt(0)")
    LV = A.newlabel("k1_v")
    A("s_lshr_b32", s(58), s(2), 1)
    A("s_lshl_b32", s(58), s(58), 12)
    A("s_add_u32", s(58), s(58), WS_KV)
    A("s_and_b32", s(59), s(2), 1)
    A("s_cmp_ge_u32", s(28), 2)
    A("s_cbranch_scc1", LV)
    for ks in range(18):
        A("v_mfma_f32_16x16x32_bf16", D, G[8 * ks:8 * ks + 4], XF[4 * ks:4 * ks + 4], D)
    A("s_lshl_b32", s(60), s(30), 6)
    A("s_add_u32", s(58), s(58), s(60))
    A("s_lshl_b32", s(60), s(59), 8)
    A("s_add_u32", s(58), s(58), s(60))
    A("v_lshrrev_b32", va, 1, vg)
    A("v_lshlrev_b32", va, 5, va)
    A("v_add_u32", va, va, vj)
    A("v_lshlrev_b32", va, 4, va)
    A("v_and_b32", vb, 1, vg)
    A("v_lshl_add_u32", va, vb, 3, va)
    A("v_cmp_eq_u32", VCC, 0, vg)
    A("s_cmp_eq_u32", s(28), 1)
    A("s_cselect_b64", s(62, 2), VCC, 0)
    A("s_cselect_b64", s(64, 2), -1, 0)
    A("s_andn2_b64", s(66, 2), s(64, 2), s(62, 2))
    A("v_cndmask_b32", D[0], D[0], 0, s(66, 2))
    A("v_cndmask_b32", D[1], D[1], 0, s(66, 2))
    A("v_cndmask_b32", D[2], D[2], 0, s(64, 2))
    A("v_cndmask_b32", D[3], D[3], 0, s(64, 2))
    A("v_cndmask_b32", D[2], D[2], 1.0, s(62, 2))
    A("v_cvt_pk_bf16_f32", v(16), D[0], D[1])
    A("v_cvt_pk_bf16_f32", v(17), D[2], D[3])
    A("buffer_store_dwordx2", v(16, 2), va, sWS, s(58), mods="offen")
    stamp(A, 5)
    A("s_waitcnt", "vmcnt(0) lgkmcnt(0)")
    stamp(A, 6)
    A("s_waitcnt", "lgkmcnt(0)")
    stamp_flush(A, 7, 37, s(28), 0)
    A("s_endpgm")
    A.label(LV)
    for ks in range(18):
        A("v_mfma_f32_16x16x32_bf16", D, XF[4 * ks:4 * ks + 4], G[8 * ks:8 * ks + 4], D)
    A("s_lshl_b32", s(60), s(59), 10)
    A("s_add_u32", s(58), s(58), s(60))
    A("s_add_u32", s(58), s(58), 2048)
    A("s_lshl_b32", s(60), s(30), 4)
    A("s_add_u32", s(58), s(58), s(60))
    A("v_and_b32", va, 1, vg)
    A("v_lshlrev_b32", va, 5, va)
    A("v_add_u32", va, va, vj)
    A("v_lshlrev_b32", va, 4, va)
    A("v_lshrrev_b32", vb, 1, vg)
    A("v_lshl_add_u32", va, vb, 3, va)
    A("v_cmp_eq_u32", VCC, 2, vj)
    A("s_cmp_eq_u32", s(28), 3)
    A("s_cselect_b64", s(62, 2), VCC, 0)
    A("v_cmp_lt_u32", VCC, 2, vj)
    A("s_cselect_b64", s(64, 2), VCC, 0)
    for r in range(4):
        A("v_cndmask_b32", D[r], D[r], 1.0, s(62, 2))
        A("v_cndmask_b32", D[r], D[r], 0, s(64, 2))
    A("v_cvt_pk_bf16_f32", v(16), D[0], D[1])
    A("v_cvt_pk_bf16_f32", v(17), D[2], D[3])
    A("buffer_store_dwordx2", v(16, 2), va, sWS, s(58), mods="offen")
    A("s_endpgm")
    A.label(Lpack)
    srd(A, sWQ, s(6, 2), 576 * 1152 + 64)
    A("s_sub_u32", s(36), s(2), 128)
    A("s_lshl_b32", s(36), s(36), 3)
    A("s_add_u32", s(36), s(36), s(28))
    A("s_mul_i32", s(37), s(36), 43691)
    A("s_lshr_b32", s(37), s(37), 19)
    A("s_mul_i32", s(38), s(37), 12)
    A("s_sub_u32", s(38), s(36), s(38))
    A("s_mul_i32", s(38), s(38), 3)
    vi, vh, vr, vs = v(2), v(3), v(4), v(5)
    A("v_and_b32", vi, 31, v(1))
    A("v_bfe_u32", vh, vi, 2, 1)
    A("v_lshrrev_b32", vr, 3, vi)
    A("v_lshlrev_b32", vr, 2, vr)
    A("v_and_b32", v(6), 3, vi)
    A("v_or_b32", vr, vr, v(6))
    A("v_lshl_add_u32", vs, vh, 3, vr)
    A("v_and_b32", v(6), 8, vr)
    A("v_add_u32", vs, vs, v(6))
    A("v_lshrrev_b32", v(6), 5, v(1))
    A("v_mul_u32_u24", v(7), 8 * 1152, v(6))
    A("v_lshl_add_u32", v(7), vs, 1, v(7))
    A("v_mov_b32", v(9), 0x7FF00000)
    A("v_cmp_gt_u32", VCC, 18, vs)
    A("v_cndmask_b32", v(7), v(9), v(7), VCC)
    A("s_mul_i32", s(39), s(38), 16 * 1152)
    A("s_mul_i32", s(40), s(37), 36)
    A("s_add_u32", s(39), s(39), s(40))
    G = v(16, 24)
    for f in range(3):
        for half in range(3):
            A("s_add_u32", s(41 + half), s(39), f * 16 * 1152 + half * 3456)
        for j in range(8):
            A("buffer_load_ushort", G[8 * f + j], v(7), sWQ, s(41 + j // 3), mods=f"offen offset:{(j % 3) * 1152}")
    A("s_waitcnt", "vmcnt(0)")
    for f in range(3):
        for q in range(4):
            A("v_lshl_or_b32", G[8 * f + q], G[8 * f + 2 * q + 1], 16, G[8 * f + 2 * q])
    A("s_mul_i32", s(40), s(37), 36)
    A("s_add_u32", s(40), s(40), s(38))
    A("s_mul_i32", s(40), s(40), 576)
    A("s_add_u32", s(40), s(40), WS_WQP)
    A("v_mul_u32_u24", v(8), 288, v(6))
    A("v_lshl_add_u32", v(8), vi, 4, v(8))
    A("v_cmp_gt_u32", VCC, 18, vi)
    A("v_cndmask_b32", v(8), v(9), v(8), VCC)
    for f in range(3):
        A("buffer_store_dwordx4", G[8 * f:8 * f + 4], v(8), sWS, s(40), mods=f"offen offset:{f * 576}")
    A("s_add_u32", s(74), s(36), 1024)
    touch(1)
    A.label(Lend)
    A("s_endpgm")
    return name


STAGE = 26624


def gemm_body(A, xstride, wstride, sXsrd, sWsrd, sXoff, sWoff, sN, sWave, init_acc, S0):
    ACC = v(0, 144)
    WF = v(144, 36)
    WX = v(180, 8)
    XF = [v(188, 16), v(204, 16)]
    vDX = v(220, 2)
    vDW = v(222, 5)
    vAX, vAW0, vAW1 = v(227), v(228), v(229)
    vCX, vCW0, vCW1 = v(230), v(231), v(232)
    vt = [v(233 + i) for i in range(8)]
    vtid = v(241)
    sP = [s(S0 + i) for i in range(7)]
    sStR, sStW, sK, sT0, sT1 = s(S0 + 7), s(S0 + 8), s(S0 + 9), s(S0 + 10), s(S0 + 11)
    A("v_mov_b32", vtid, v(0))
    lane = vt[0]
    A("v_and_b32", lane, 63, vtid)
    for i in range(2):
        A("s_lshl_b32", sT0, sWave, 1)
        A("s_add_u32", sT0, sT0, i)
        A("s_mul_i32", sT1, sT0, xstride)
        A("v_lshlrev_b32", vt[1], 4, lane)
        A("v_add_u32", vDX[i], sT1, vt[1])
        A("s_lshl_b32", sP[i], sT0, 10)
    for q in range(5):
        if q < 4:
            A("s_lshl_b32", sT0, sWave, 6)
            A("s_add_u32", sT0, sT0, 256 * q)
        else:
            A("s_lshl_b32", sT0, sWave, 5)
            A("s_add_u32", sT0, sT0, 1024)
        A("v_add_u32", vt[1], sT0, lane)
        A("v_mul_u32_u24", vt[2], 1821, vt[1])
        A("v_lshrrev_b32", vt[2], 16, vt[2])
        A("v_mul_u32_u24", vt[3], 36, vt[2])
        A("v_sub_u32", vt[3], vt[1], vt[3])
        A("v_lshrrev_b32", vt[4], 2, vt[2])
        A("v_and_b32", vt[4], 2, vt[4])
        A("v_xor_b32", vt[3], vt[3], vt[4])
        A("s_mov_b32", sT1, wstride)
        A("v_mul_lo_u32", vt[2], vt[2], sT1)
        A("v_lshl_add_u32", vDW[q], vt[3], 4, vt[2])
        A("s_lshl_b32", sP[2 + q], sT0, 4)
        A("s_add_u32", sP[2 + q], sP[2 + q], 8192)
    m_, g_ = vt[1], vt[2]
    A("v_and_b32", m_, 15, lane)
    A("v_lshrrev_b32", g_, 4, lane)
    A("s_lshr_b32", sT0, sWave, 1)
    A("s_lshl_b32", sT0, sT0, 12)
    A("v_lshlrev_b32", vt[3], 4, lane)
    A("v_add_u32", vAX, sT0, vt[3])
    A("v_lshrrev_b32", vt[3], 2, m_)
    A("v_lshl_add_u32", vt[3], g_, 3, vt[3])
    A("v_mul_u32_u24", vt[3], 36 * 16, vt[3])
    A("v_and_b32", vt[4], 3, lane)
    A("v_lshl_add_u32", vt[3], vt[4], 3, vt[3])
    A("s_and_b32", sT0, sWave, 1)
    A("s_mul_i32", sT1, sT0, 18 * 16)
    A("s_add_u32", sT1, sT1, 8192)
    A("v_add_u32", vt[3], sT1, vt[3])
    A("v_and_b32", vt[4], 1, g_)
    A("v_lshlrev_b32", vt[4], 5, vt[4])
    A("v_add_u32", vt[5], vt[3], vt[4])
    A("v_sub_u32", vt[6], vt[3], vt[4])
    A("s_cmp_eq_u32", sT0, 0)
    A("s_cselect_b64", s(S0 + 12, 2), -1, 0)
    A("v_cndmask_b32", vAW0, vt[6], vt[5], s(S0 + 12, 2))
    A("v_cndmask_b32", vAW1, vt[5], vt[6], s(S0 + 12, 2))

    def dma_stage(sStage):
        if "nodma" in EXP:
            return
        for i in range(2):
            A("s_add_u32", M0, sStage, sP[i])
            A("buffer_load_dwordx4", vDX[i], sXsrd, sXoff, mods="offen lds")
        for q in range(4):
            A("s_add_u32", M0, sStage, sP[2 + q])
            A("buffer_load_dwordx4", vDW[q], sWsrd, sWoff, mods="offen lds")
        A("s_add_u32", M0, sStage, sP[6])
        A("s_mov_b32", "exec_hi", 0)
        A("buffer_load_dwordx4", vDW[4], sWsrd, sWoff, mods="offen lds")
        A("s_mov_b64", EXEC, -1)
        A("s_add_u32", sXoff, sXoff, 1024)
        A("s_add_u32", sWoff, sWoff, 32 * wstride)

    def wreg(nt, par):
        if nt >= 7 and par:
            return WX[4 * (nt - 7):4 * (nt - 7) + 4]
        return WF[4 * nt:4 * nt + 4]

    def read_w(nt, par):
        a = vCW1 if nt & 1 else vCW0
        w = wreg(nt, par)
        A("ds_read_b64_tr_b16", w[0:2], a, mods=f"offset:{nt * 32}")
        A("ds_read_b64_tr_b16", w[2:4], a, mods=f"offset:{nt * 32 + 2304}")

    def read_x(mt, par):
        A("ds_read_b128", XF[par][4 * mt:4 * mt + 4], vCX, mods=f"offset:{mt * 1024}")

    def set_cur(sStage):
        A("v_add_u32", vCX, sStage, vAX)
        A("v_add_u32", vCW0, sStage, vAW0)
        A("v_add_u32", vCW1, sStage, vAW1)

    init_acc(ACC, 0)
    for st in range(3):
        A("s_mov_b32", sT0, st * STAGE)
        dma_stage(sT0)
    init_acc(ACC, 1)
    A("s_waitcnt", "vmcnt(14)")
    A("s_barrier")
    stamp(A, 1)
    A("s_mov_b32", sStR, 0)
    set_cur(sStR)
    for mt in range(4):
        read_x(mt, 0)
    for nt in range(9):
        read_w(nt, 0)
    A("s_mov_b32", sStR, STAGE)
    A("s_mov_b32", sStW, 0)
    A("s_mov_b32", sK, 0)
    Lloop = A.newlabel("gemm_loop")
    Ldone = A.newlabel("gemm_done")
    A.label(Lloop)
    for par in range(2):
        Lw0 = A.newlabel("gw0")
        Lw1 = A.newlabel("gw1")
        Lnd = A.newlabel("gnd")
        A("s_add_u32", sT0, sK, 2)
        A("s_cmp_lt_u32", sT0, sN)
        A("s_cbranch_scc1", Lw0)
        A("s_waitcnt", "vmcnt(0) lgkmcnt(0)")
        A("s_branch", Lw1)
        A.label(Lw0)
        A("s_waitcnt", "vmcnt(7) lgkmcnt(0)")
        A.label(Lw1)
        A("s_barrier")
        set_cur(sStR)
        A("s_add_u32", sT0, sK, 3)
        A("s_cmp_lt_u32", sT0, sN)
        A("s_cbranch_scc0", Lnd)
        dma_stage(sStW)
        A.label(Lnd)
        np_ = 1 - par
        if "nocomp" not in EXP:
            read_w(7, np_)
            read_w(8, np_)
        for nt in range(9 if "nocomp" not in EXP else 0):
            w = wreg(nt, par)
            for mt in range(4):
                acc = ACC[(nt * 4 + mt) * 4:(nt * 4 + mt) * 4 + 4]
                A("v_mfma_f32_16x16x32_bf16", acc, w, XF[par][4 * mt:4 * mt + 4], acc)
            if nt < 7:
                read_w(nt, np_)
            if nt < 4:
                read_x(nt, np_)
        A("s_mov_b32", sStW, sStR)
        A("s_add_u32", sStR, sStR, STAGE)
        A("s_cmp_eq_u32", sStR, 3 * STAGE)
        A("s_cselect_b32", sStR, 0, sStR)
        A("s_add_u32", sK, sK, 1)
        A("s_cmp_lt_u32", sK, sN)
        if par == 0:
            A("s_cbranch_scc0", Ldone)
        else:
            A("s_cbranch_scc1", Lloop)
    A.label(Ldone)
    A("s_waitcnt", "lgkmcnt(0)")
    return dict(ACC=ACC, vtid=vtid, vt=vt, tmp=v(144, 76))


C0 = -2.0 * 0.7978845608028654 * 1.4426950408889634
C1 = C0 * 0.044715


def gen_gemm1(A):
    stamp(A, 0)
    A("s_load_dwordx4", s(4, 4), s(0, 2), KA_W1)
    A("s_load_dwordx2", s(12, 2), s(0, 2), KA_WS)
    A("v_lshrrev_b32", v(1), 6, v(0))
    A("v_readfirstlane_b32", s(28), v(1))
    A("s_sub_u32", s(3), s(2), 256)
    A("s_lshr_b32", s(29), s(3), 5)
    A("s_lshl_b32", s(29), s(29), 1)
    A("s_bfe_u32", s(30), s(3), (1 << 16) | 2)
    A("s_add_u32", s(29), s(29), s(30))
    A("s_and_b32", s(30), s(3), 3)
    A("s_lshl_b32", s(30), s(30), 2)
    A("s_bfe_u32", s(31), s(3), (2 << 16) | 3)
    A("s_add_u32", s(30), s(30), s(31))
    A("s_waitcnt", "lgkmcnt(0)")
    sWS, sW, sB = s(16, 4), s(20, 4), s(24, 4)
    srd(A, sWS, s(12, 2), WS_SIZE)
    srd(A, sW, s(4, 2), 576 * 9216)
    srd(A, sB, s(6, 2), 4608 * 2)
    sXoff, sWoff, sN = s(32), s(33), s(34)
    A("s_mul_i32", sXoff, s(29), 8 * 18432)
    A("s_add_u32", sXoff, sXoff, WS_Y)
    A("s_mul_i32", sWoff, s(30), 576)
    A("s_mov_b32", sN, 18)

    def init_acc(ACC, phase):
        vt = [v(234 + i) for i in range(12)]
        BT = v(144, 18)
        if phase == 1:
            A("s_waitcnt", "vmcnt(21)")
            for nt in range(9):
                a0 = ACC[nt * 16:nt * 16 + 4]
                A("v_lshlrev_b32", a0[0], 16, BT[2 * nt])
                A("v_and_b32", a0[1], 0xFFFF0000, BT[2 * nt])
                A("v_lshlrev_b32", a0[2], 16, BT[2 * nt + 1])
                A("v_and_b32", a0[3], 0xFFFF0000, BT[2 * nt + 1])
                for mt in range(1, 4):
                    for r in range(4):
                        A("v_mov_b32", ACC[nt * 16 + mt * 4 + r], a0[r])
            return
        A("v_bfe_u32", vt[8], v(241), 4, 2)
        A("v_lshlrev_b32", vt[8], 3, vt[8])
        A("s_and_b32", s(35), s(28), 1)
        A("s_mul_i32", s(35), s(35), 288)
        A("s_add_u32", s(35), s(35), sWoff_save)
        for nt in range(9):
            A("buffer_load_dwordx2", BT[2 * nt:2 * nt + 2], vt[8], sB, s(35), mods=f"offen offset:{nt * 32}")

    sWoff_save = s(36)
    A("s_mov_b32", sWoff_save, sWoff)
    g = gemm_body(A, 18432, 9216, sWS, sW, sXoff, sWoff, sN, s(28), init_acc, 40)
    ACC, vtid = g["ACC"], g["vtid"]
    stamp(A, 2)
    A("s_mov_b32", s(60), f32bits(C1))
    A("s_mov_b32", s(61), f32bits(C0))
    t0, t1 = v(144), v(145)
    va, vb, vm, vg = v(146), v(147), v(148), v(149)
    PK = v(152, 4)
    A("v_and_b32", vm, 15, vtid)
    A("v_bfe_u32", vg, vtid, 4, 2)
    A("s_and_b32", s(62), s(28), 1)
    A("s_lshl_b32", s(63), s(62), 1)
    A("v_and_b32", t0, 1, vg)
    A("v_lshrrev_b32", t1, 1, vg)
    A("v_lshl_add_u32", t0, t0, 1, t1)
    A("v_add_u32", t0, s(63), t0)
    A("v_lshlrev_b32", t0, 8, t0)
    A("v_lshl_add_u32", va, vm, 4, t0)
    A("v_add_u32", t1, s(63), t1)
    A("v_lshlrev_b32", t1, 8, t1)
    A("v_lshl_add_u32", vb, vm, 4, t1)
    A("v_and_b32", t0, 1, vg)
    A("v_lshl_add_u32", vb, t0, 3, vb)
    A("s_lshr_b32", s(63), s(28), 1)
    A("s_lshl_b32", s(63), s(63), 2)
    A("s_lshl_b32", s(35), s(29), 3)
    A("s_add_u32", s(35), s(35), s(63))
    A("s_mul_i32", s(35), s(35), 162)
    A("s_mul_i32", s(63), s(30), 9)
    A("s_add_u32", s(35), s(35), s(63))
    A("s_lshl_b32", s(62), s(62), 2)
    A("s_add_u32", s(35), s(35), s(62))
    A("s_lshl_b32", s(35), s(35), 10)
    A("s_add_u32", s(35), s(35), WS_HO)
    for mt in range(4):
        A("s_add_u32", s(64 + mt), s(35), mt * 162 * 1024)
        A("s_add_u32", s(68 + mt), s(35), mt * 162 * 1024 + 4096)

    cC1, cC0, cONE = v(156, 2), v(158, 2), v(160, 2)
    TT = [v(162, 2), v(164, 2)]

    def gelu4(a):
        if "nogelu" in EXP:
            return
        for h in range(2):
            x2, T2 = a[2 * h:2 * h + 2], TT[h]
            A("v_pk_mul_f32", T2, x2, x2)
            A("v_pk_fma_f32", T2, T2, cC1, cC0)
            A("v_pk_mul_f32", T2, T2, x2)
        for h in range(2):
            for e in range(2):
                A("v_exp_f32", TT[h][e], TT[h][e])
        for h in range(2):
            A("v_pk_add_f32", TT[h], TT[h], cONE)
        for h in range(2):
            for e in range(2):
                A("v_rcp_f32", TT[h][e], TT[h][e])
        for h in range(2):
            A("v_pk_mul_f32", a[2 * h:2 * h + 2], a[2 * h:2 * h + 2], TT[h])

    for e in range(2):
        A("v_mov_b32", cC1[e], s(60))
        A("v_mov_b32", cC0[e], s(61))
        A("v_mov_b32", cONE[e], 1.0)
    for mt in range(4):
        for p in range(5):
            tiles = [2 * p, 2 * p + 1] if p < 4 else [8]
            for ti, nt in enumerate(tiles):
                a = ACC[(nt * 4 + mt) * 4:(nt * 4 + mt) * 4 + 4]
                gelu4(a)
                A("v_cvt_pk_bf16_f32", PK[2 * ti], a[0], a[1])
                A("v_cvt_pk_bf16_f32", PK[2 * ti + 1], a[2], a[3])
            if p < 4:
                A("v_permlane16_swap_b32", PK[0], PK[2])
                A("v_permlane16_swap_b32", PK[1], PK[3])
                A("buffer_store_dwordx4", PK, va, sWS, s(64 + mt), mods=f"offen offset:{p * 1024}")
            else:
                A("buffer_store_dwordx2", PK[0:2], vb, sWS, s(68 + mt), mods="offen")
    stamp(A, 3)
    A("s_waitcnt", "vmcnt(0) lgkmcnt(0)")
    stamp(A, 4)
    A("s_waitcnt", "lgkmcnt(0)")
    stamp_flush(A, 5, 256 + 37, s(28), 0, base=32)
    A("s_endpgm")


QSCALE = (18 ** -0.5) * 1.4426950408889634


def gen_attn(A):
    stamp(A, 0)
    A("s_load_dwordx2", s(12, 2), s(0, 2), KA_WS)
    A("v_lshrrev_b32", v(1), 6, v(0))
    A("v_readfirstlane_b32", s(28), v(1))
    A("s_and_b32", s(29), s(2), 7)
    A("s_lshl_b32", s(29), s(29), 2)
    A("s_bfe_u32", s(30), s(2), (2 << 16) | 3)
    A("s_add_u32", s(29), s(29), s(30))
    A("s_lshr_b32", s(30), s(2), 5)
    A("s_lshl_b32", s(30), s(30), 2)
    A("s_add_u32", s(30), s(30), s(28))
    A("s_waitcnt", "lgkmcnt(0)")
    sWS = s(16, 4)
    srd(A, sWS, s(12, 2), WS_SIZE)
    if "noprio" not in EXP:
        A("s_setprio", 3)
    vl16 = v(2)
    A("v_and_b32", v(1), 63, v(0))
    A("v_lshlrev_b32", vl16, 4, v(1))
    CH = 16384
    sKV = s(32)
    sPw = s(33)
    A("s_lshl_b32", sPw, s(28), 12)
    A("s_add_u32", sKV, sPw, WS_KV)

    def dma_chunk(sBuf):
        for i in range(4):
            A("s_add_u32", M0, sBuf, sPw)
            A("buffer_load_dwordx4", vl16, sWS, sKV, mods=f"offen offset:{i * 1024} lds")
        A("s_add_u32", sKV, sKV, CH)

    QA = [v(20, 16), v(36, 16)]
    BF = v(52, 48)
    AF = v(100, 144)
    XB = 32768
    vAo = v(244)
    A("s_mul_i32", s(36), s(30), 36 * 576)
    A("s_add_u32", s(36), s(36), WS_WQP)
    A("v_and_b32", v(245), 31, v(1))
    A("v_lshrrev_b32", v(246), 5, v(1))
    A("v_mul_u32_u24", v(246), 288, v(246))
    A("v_lshl_add_u32", vAo, v(245), 4, v(246))
    A("v_mov_b32", v(246), 0x7FF00000)
    A("v_cmp_gt_u32", VCC, 18, v(245))
    A("v_cndmask_b32", vAo, v(246), vAo, VCC)
    A("s_lshr_b32", s(50), s(28), 1)
    A("s_lshl_b32", s(37), s(29), 1)
    A("s_add_u32", s(37), s(37), s(50))
    A("s_mul_i32", s(37), s(37), 36864)
    A("s_and_b32", s(50), s(28), 1)
    A("s_mul_i32", s(50), s(50), 6 * 1024)
    A("s_add_u32", s(37), s(37), s(50))
    A("s_add_u32", s(37), s(37), WS_XNF)
    A("s_add_u32", s(38), s(37), 4096)
    A("s_mul_i32", s(51), s(28), 6 * 1024)
    A("s_add_u32", s(51), s(51), XB)

    def dma_x(ph):
        for i in range(6):
            if i in (0, 4):
                A("s_add_u32", M0, s(51), (ph & 1) * 24576 + (4096 if i else 0))
            A("buffer_load_dwordx4", vl16, sWS, s(38 if i >= 4 else 37), mods=f"offen offset:{(i & 3) * 1024} lds")
        A("s_add_u32", s(37), s(37), 12 * 1024)
        A("s_add_u32", s(38), s(38), 12 * 1024)

    def load_a(ph):
        for i in range(12):
            if i % 6 == 0 and (ph or i):
                A("s_add_u32", s(36), s(36), 6 * 576)
            A("buffer_load_dwordx4", AF[48 * ph + 4 * i:48 * ph + 4 * i + 4], vAo, sWS, s(36),
              mods=f"offen offset:{(i % 6) * 576}")

    A("v_add_u32", v(3), XB, vl16)
    dma_x(0)
    load_a(0)
    dma_x(1)
    load_a(1)
    A("s_mov_b32", s(35), 0)
    dma_chunk(s(35))
    A("s_mov_b32", s(35), CH)
    dma_chunk(s(35))
    load_a(2)
    for ct in range(2):
        for r in range(16):
            A("v_mov_b32", QA[ct][r], 0)
    for ph in range(3):
        A("s_waitcnt", f"vmcnt({(38, 26, 0)[ph]})")
        A("s_barrier")
        for half in range(2):
            for i in range(6):
                for ct in range(2):
                    o = (ph & 1) * 24576 + (ct * 12 + half * 6 + i) * 1024
                    A("ds_read_b128", BF[8 * i + 4 * ct:8 * i + 4 * ct + 4], v(3), mods=f"offset:{o}")
            for i in range(6):
                A("s_waitcnt", f"lgkmcnt({10 - 2 * i})")
                ks = half * 6 + i
                for ct in range(2):
                    A("v_mfma_f32_32x32x16_bf16", QA[ct], AF[48 * ph + 4 * ks:48 * ph + 4 * ks + 4],
                      BF[8 * i + 4 * ct:8 * i + 4 * ct + 4], QA[ct])
        if ph == 0:
            A("s_barrier")
            dma_x(2)
    stamp(A, 1)
    QF = [[v(4, 4), v(8, 4)], [v(12, 4), v(16, 4)]]
    A("s_mov_b32", s(39), f32bits(QSCALE))
    for ct in range(2):
        for r in range(16):
            A("v_mul_f32", QA[ct][r], s(39), QA[ct][r])
        for f in range(2):
            for q in range(4):
                A("v_cvt_pk_bf16_f32", QF[ct][f][q], QA[ct][8 * f + 2 * q], QA[ct][8 * f + 2 * q + 1])
    KF = [[v(20, 4), v(24, 4)], [v(28, 4), v(32, 4)]]
    VF = [[v(36, 4), v(40, 4)], [v(44, 4), v(48, 4)]]
    PK = [v(52, 8), v(60, 8)]
    O = [v(68, 16), v(84, 16)]
    S = [[v(100, 16), v(116, 16)], [v(132, 16), v(148, 16)]]
    Mx = [v(164), v(165)]
    TM = [v(166), v(167)]
    t1, t2, t3, t4 = v(168), v(169), v(170), v(171)
    vCur, vNxt = v(172), v(173)
    sT, sLow, sC, sB0, sB1, sB2, sBig = s(40), s(41), s(42), s(43), s(44), s(45), s(53)
    resc = []

    def rd_k(buf, addr, tile):
        if "anord" in EXP:
            return
        A("ds_read_b128", KF[buf][0], addr, mods=f"offset:{tile * 4096}")
        A("ds_read_b128", KF[buf][1], addr, mods=f"offset:{tile * 4096 + 1024}")

    def rd_v(buf, addr, tile):
        if "anord" in EXP:
            return
        A("ds_read_b128", VF[buf][0], addr, mods=f"offset:{tile * 4096 + 2048}")
        A("ds_read_b128", VF[buf][1], addr, mods=f"offset:{tile * 4096 + 3072}")

    def qk(sb, kb, ct, f):
        if "anoqk" in EXP:
            return
        A("v_mfma_f32_32x32x16_bf16", S[sb][ct], KF[kb][f], QF[ct][f], 0 if f == 0 else S[sb][ct])

    def tile_max(Sc):
        for ct in range(2):
            A("v_max3_f32", TM[ct], Sc[ct][0], Sc[ct][1], Sc[ct][2])
            for r in range(3, 15, 2):
                A("v_max3_f32", TM[ct], TM[ct], Sc[ct][r], Sc[ct][r + 1])
            A("v_max_f32", TM[ct], TM[ct], Sc[ct][15])

    def rescale(cur, from_l):
        for ct in range(2):
            src = O[ct][10] if from_l else TM[ct]
            A("v_mov_b32", t1, src)
            A("v_mov_b32", t2, src)
            A("v_permlane32_swap_b32", t1, t2)
            if from_l:
                A("v_log_f32", t1, t1)
                A("v_max_f32", t1, 0, t1)
            else:
                A("v_max_f32", t1, t1, t2)
                A("v_max_f32", t1, sLow, t1)
            A("v_add_f32", t1, Mx[ct], t1)
            A("v_and_b32", t1, 0xFFFF0000, t1)
            A("v_sub_f32", t2, t1, Mx[ct])
            A("v_mov_b32", Mx[ct], t1)
            A("v_xor_b32", t3, 0x80000000, t1)
            A("v_lshrrev_b32", QF[ct][1][1], 16, t3)
            for r in range(16):
                A("v_sub_f32", S[cur][ct][r], S[cur][ct][r], t2)
            A("v_sub_f32", t3, 0, t2)
            A("v_min_f32", t3, 0, t3)
            A("v_exp_f32", t3, t3)
            for r in range(16):
                A("v_mul_f32", O[ct][r], O[ct][r], t3)

    def attn_pass(safe):
        for ct in range(2):
            for r in range(16):
                A("v_mov_b32", O[ct][r], 0)
            A("v_mov_b32", Mx[ct], 0)
            A("v_mov_b32", QF[ct][1][1], 0)
        A("s_mov_b32", sT, 0xFF800000)
        A("s_mov_b32", sLow, 0xFF800000)
        A("s_mov_b32", sBig, f32bits(2.0 ** 24))
        A("s_waitcnt", "vmcnt(0)")
        A("s_barrier")
        A("v_mov_b32", vCur, vl16)
        A("v_add_u32", vNxt, CH, vl16)
        A("s_mov_b32", sB0, 0)
        A("s_mov_b32", sB1, CH)
        A("s_mov_b32", sB2, 2 * CH)
        rd_k(0, vCur, 0)
        rd_k(1, vCur, 1)
        rd_v(0, vCur, 0)
        A("s_waitcnt", "lgkmcnt(0)")
        for ct in range(2):
            qk(0, 0, ct, 0)
            qk(0, 0, ct, 1)
        if not safe:
            tile_max(S[0])
            rescale(0, False)
        A("s_mov_b32", sC, 0)
        stamp(A, 2)
        Lloop = A.newlabel("att_loop")
        A.label(Lloop)
        Lnd = A.newlabel("att_nd")
        A("s_waitcnt", "vmcnt(0) lgkmcnt(0)")
        A("s_barrier")
        A("s_cmp_lt_u32", sC, 14)
        A("s_cbranch_scc0", Lnd)
        dma_chunk(sB2)
        A.label(Lnd)
        if not safe:
            A("v_max_f32", t1, O[0][10], O[1][10])
            A("v_cmp_lt_f32", VCC, sBig, t1)
            Lr, Lb = A.newlabel("att_resc"), A.newlabel("att_back")
            A("s_cbranch_vccnz", Lr)
            A.label(Lb)
            resc.append((Lr, Lb, 0, True))
        for i in range(4):
            cur, nx = i & 1, 1 - (i & 1)
            Sc = S[cur]
            if safe:
                tile_max(Sc)
                A("v_max_f32", t1, TM[0], TM[1])
                A("v_cmp_lt_f32", VCC, sT, t1)
                Lr, Lb = A.newlabel("att_resc"), A.newlabel("att_back")
                A("s_cbranch_vccnz", Lr)
                A.label(Lb)
                resc.append((Lr, Lb, cur, False))
            if i:
                A("s_waitcnt", "lgkmcnt(2)")
            ex = lambda ct, r: A("v_exp_f32", Sc[ct][r], Sc[ct][r])
            cv = lambda ct, q: A("v_cvt_pk_bf16_f32", PK[ct][q], Sc[ct][2 * q], Sc[ct][2 * q + 1])
            pv = lambda ct, j: A("v_mfma_f32_32x32x16_bf16", O[ct], VF[cur][j], PK[ct][4 * j:4 * j + 4], O[ct])
            if "anoexp" in EXP:
                ex = lambda ct, r: None
            if "anopv" in EXP:
                pv = lambda ct, j: None
            if "anocv" in EXP:
                cv = lambda ct, q: None
            for r in range(0, 4):
                ex(0, r)
            qk(nx, nx, 0, 0)
            for r in range(4, 8):
                ex(0, r)
            qk(nx, nx, 0, 1)
            for r in range(8, 12):
                ex(0, r)
            qk(nx, nx, 1, 0)
            for r in range(12, 16):
                ex(0, r)
            qk(nx, nx, 1, 1)
            if i < 2:
                rd_k(cur, vCur, i + 2)
            else:
                rd_k(cur, vNxt, i - 2)
            for q in range(8):
                cv(0, q)
            A("s_waitcnt", "lgkmcnt(2)")
            pv(0, 0)
            for r in range(0, 4):
                ex(1, r)
            pv(0, 1)
            for r in range(4, 12):
                ex(1, r)
            for q in range(4):
                cv(1, q)
            pv(1, 0)
            for r in range(12, 16):
                ex(1, r)
            for q in range(4, 8):
                cv(1, q)
            if i < 3:
                rd_v(nx, vCur, i + 1)
            else:
                rd_v(nx, vNxt, 0)
            pv(1, 1)
        A("s_mov_b32", s(46), sB0)
        A("s_mov_b32", sB0, sB1)
        A("s_mov_b32", sB1, sB2)
        A("s_mov_b32", sB2, s(46))
        A("v_add_u32", vCur, sB0, vl16)
        A("v_add_u32", vNxt, sB1, vl16)
        A("s_add_u32", sC, sC, 1)
        A("s_cmp_lt_u32", sC, 16)
        A("s_cbranch_scc1", Lloop)

    Lsafe, Lepi = A.newlabel("att_safe"), A.newlabel("att_epi")
    if "safeonly" in EXP:
        attn_pass(True)
    else:
        attn_pass(False)
        A("s_mov_b32", s(54), f32bits(2.0 ** 100))
        A("v_cmp_nlt_f32", VCC, O[0][10], s(54))
        A("v_cmp_nlt_f32", s(58, 2), O[1][10], s(54))
        A("s_or_b64", VCC, VCC, s(58, 2))
        A("s_cmp_lg_u64", VCC, 0)
        A("s_cselect_b32", s(55), 1, 0)
        A("v_mov_b32", t1, s(55))
        A("s_lshl_b32", s(56), s(28), 2)
        A("s_add_u32", s(56), s(56), 3 * CH)
        A("v_mov_b32", t2, s(56))
        A("ds_write_b32", t2, t1)
        A("s_waitcnt", "lgkmcnt(0)")
        A("s_barrier")
        A("v_mov_b32", t2, 3 * CH)
        A("ds_read_b128", v(176, 4), t2)
        A("s_waitcnt", "lgkmcnt(0)")
        A("v_or_b32", t1, v(176), v(177))
        A("v_or3_b32", t1, t1, v(178), v(179))
        A("v_readfirstlane_b32", s(55), t1)
        A("s_cmp_lg_u32", s(55), 0)
        A("s_cbranch_scc1", Lsafe)
    A.label(Lepi)
    stamp(A, 3)
    A("s_waitcnt", "lgkmcnt(0)")
    VA = [v(174 + i) for i in range(5)]
    A("v_and_b32", t1, 15, v(1))
    A("v_lshlrev_b32", t1, 4, t1)
    A("v_bfe_u32", t2, v(1), 4, 1)
    A("s_mov_b32", s(47), 162 * 1024)
    A("v_mul_lo_u32", t2, t2, s(47))
    A("v_add_u32", t1, t1, t2)
    A("v_lshrrev_b32", t2, 5, v(1))
    A("v_lshlrev_b32", t2, 2, t2)
    A("s_mul_i32", s(48), s(30), 18)
    A("s_add_u32", s(48), s(48), 4608)
    A("v_add_u32", t2, s(48), t2)
    for i, dc in enumerate((0, 2, 8, 10, 16)):
        A("v_add_u32", t3, dc, t2)
        A("v_lshrrev_b32", t4, 3, t3)
        A("v_lshl_add_u32", VA[i], t4, 8, t1)
        A("v_and_b32", t3, 7, t3)
        A("v_lshl_add_u32", VA[i], t3, 1, VA[i])
    A("s_mul_i32", s(48), s(29), 4 * 162 * 1024)
    A("s_add_u32", s(48), s(48), WS_HO)
    A("s_add_u32", s(49), s(48), 2 * 162 * 1024)
    for ct in range(2):
        A("v_mov_b32", t1, O[ct][10])
        A("v_mov_b32", t2, O[ct][10])
        A("v_permlane32_swap_b32", t1, t2)
        A("v_rcp_f32", t1, t1)
        for r in range(10):
            A("v_mul_f32", O[ct][r], O[ct][r], t1)
        for q in range(5):
            A("v_cvt_pk_bf16_f32", PK[ct][q], O[ct][2 * q], O[ct][2 * q + 1])
        for q in range(4):
            A("buffer_store_dword", PK[ct][q], VA[q], sWS, s(48 + ct), mods="offen")
    A("s_mov_b32", "exec_hi", 0)
    for ct in range(2):
        A("buffer_store_dword", PK[ct][4], VA[4], sWS, s(48 + ct), mods="offen")
    A("s_mov_b64", EXEC, -1)
    stamp(A, 4)
    A("s_waitcnt", "vmcnt(0) lgkmcnt(0)")
    stamp_flush(A, 5, 37, s(28), 0)
    A("s_endpgm")
    if "safeonly" not in EXP:
        A.label(Lsafe)
        A("s_add_u32", sKV, sPw, WS_KV)
        A("s_mov_b32", s(35), 0)
        dma_chunk(s(35))
        A("s_mov_b32", s(35), CH)
        dma_chunk(s(35))
        attn_pass(True)
        A("s_branch", Lepi)
    for (Lr, Lb, cur, from_l) in resc:
        A.label(Lr)
        rescale(cur, from_l)
        if not from_l:
            A("s_mov_b32", sT, f32bits(8.0))
            A("s_mov_b32", sLow, 0)
        A("s_branch", Lb)


def gen_k2(A):
    name = "k2_kernel"
    kernel_header(A, name)
    Lg, Lend = A.newlabel("k2_gemm"), A.newlabel("k2_end")
    A("s_cmp_ge_u32", s(2), 512)
    A("s_cbranch_scc1", Lend)
    A("s_cmp_ge_u32", s(2), 256)
    A("s_cbranch_scc1", Lend if "attonly" in EXP else Lg)
    if "gemmonly" in EXP:
        A("s_branch", Lend)
    gen_attn(A)
    A.label(Lg)
    gen_gemm1(A)
    A.label(Lend)
    A("s_endpgm")
    return name


K3_STAGE = 9600
K3_LDS = 4 * 4 * K3_STAGE


def gen_k3(A):
    name = "k3_kernel"
    kernel_header(A, name)
    Lend = A.newlabel("k3_end")
    A("s_cmp_ge_u32", s(2), 256)
    A("s_cbranch_scc1", Lend)
    A("s_load_dwordx2", s(4, 2), s(0, 2), KA_W2)
    A("s_load_dwordx2", s(6, 2), s(0, 2), KA_WO)
    A("s_load_dwordx2", s(12, 2), s(0, 2), KA_WS)
    stamp(A, 0)
    A("v_lshrrev_b32", v(1), 6, v(0))
    A("v_readfirstlane_b32", s(28), v(1))
    A("s_and_b32", s(31), s(2), 3)
    A("s_lshr_b32", s(30), s(2), 6)
    A("s_bfe_u32", s(29), s(2), (4 << 16) | 2)
    A("s_lshr_b32", s(26), s(28), 1)
    A("s_and_b32", s(27), s(28), 1)
    A("s_lshl_b32", s(25), s(31), 2)
    A("s_add_u32", s(25), s(25), s(26))
    A("s_waitcnt", "lgkmcnt(0)")
    sWS, sW = s(16, 4), s(20, 4)
    srd(A, sWS, s(12, 2), WS_SIZE)
    sCnt, sWoff = s(34), s(33)
    sX = [s(36 + i) for i in range(4)]
    sW2, sWoff2 = s(64, 4), s(68)
    sX2 = [s(69 + i) for i in range(4)]
    srd(A, sW, s(4, 2), 4608 * 1152)
    srd(A, sW2, s(6, 2), 576 * 1152)
    A("s_mul_i32", s(41), s(25), 9)
    A("s_cmp_gt_u32", s(25), 0)
    A("s_addc_u32", s(42), s(25), 0)
    A("s_cmp_gt_u32", s(25), 8)
    A("s_addc_u32", s(42), s(42), 0)
    A("s_and_b32", s(40), s(25), 7)
    A("s_cmp_eq_u32", s(40), 0)
    A("s_cselect_b32", sCnt, 11, 10)
    A("s_mul_i32", sWoff, s(41), 32 * 1152)
    A("s_mul_i32", s(46), s(30), 288)
    A("s_add_u32", sWoff, sWoff, s(46))
    A("s_mul_i32", sWoff2, s(42), 32 * 1152)
    A("s_add_u32", sWoff2, sWoff2, s(46))
    A("s_lshl_b32", s(46), s(29), 7)
    A("s_lshl_b32", s(47), s(27), 6)
    A("s_add_u32", s(46), s(46), s(47))
    A("s_lshr_b32", s(47), s(46), 4)
    A("s_mul_i32", s(47), s(47), 162)
    A("s_add_u32", s(48), s(47), s(42))
    A("s_add_u32", s(48), s(48), 144)
    A("s_add_u32", s(47), s(47), s(41))
    A("s_lshl_b32", s(47), s(47), 10)
    A("s_add_u32", s(47), s(47), WS_HO)
    A("s_lshl_b32", s(48), s(48), 10)
    A("s_add_u32", s(48), s(48), WS_HO)
    for mt in range(4):
        A("s_add_u32", sX[mt], s(47), mt * 162 * 1024)
        A("s_add_u32", sX2[mt], s(48), mt * 162 * 1024)
    ACC = v(0, 144)
    WF = v(144, 36)
    WX = v(180, 8)
    XF = [v(188, 16), v(204, 16), v(220, 16)]
    vDW = v(236, 5)
    vDX, vAW, vtid = v(241), v(242), v(246)
    vt = [v(247 + i) for i in range(7)]
    A("v_mov_b32", vtid, v(0))
    lane = vt[0]
    A("v_and_b32", lane, 63, vtid)
    A("v_lshlrev_b32", vDX, 4, lane)
    for st in range(2):
        for mt in range(4):
            A("buffer_load_dwordx4", XF[st][4 * mt:4 * mt + 4], vDX, sWS, sX[mt], mods="offen")
            A("s_add_u32", sX[mt], sX[mt], 1024)
    sGB = s(49)
    A("s_mul_i32", sGB, s(26), 4 * K3_STAGE)
    sP = [s(50 + q) for q in range(5)]
    A("s_mul_i32", s(55), s(27), 300)
    for q in range(5):
        A("s_add_u32", s(56), s(55), 64 * q)
        A("v_add_u32", vt[1], s(56), lane)
        A("v_mul_u32_u24", vt[2], 432, vt[1])
        A("v_lshrrev_b32", vt[2], 16, vt[2])
        A("v_mul_u32_u24", vt[3], 152, vt[2])
        A("v_sub_u32", vt[3], vt[1], vt[3])
        A("v_mul_u32_u24", vt[4], 3641, vt[3])
        A("v_lshrrev_b32", vt[4], 16, vt[4])
        A("v_mul_u32_u24", vt[5], 18, vt[4])
        A("v_sub_u32", vt[5], vt[3], vt[5])
        A("v_lshl_add_u32", vt[4], vt[2], 3, vt[4])
        A("v_mul_u32_u24", vt[4], 1152, vt[4])
        A("v_lshl_add_u32", vt[4], vt[5], 4, vt[4])
        A("v_mov_b32", vt[5], 0x7FF00000)
        A("v_cmp_gt_u32", VCC, 144, vt[3])
        A("v_cndmask_b32", vDW[q], vt[5], vt[4], VCC)
        A("s_lshl_b32", sP[q], s(56), 4)
        A("s_add_u32", sP[q], sP[q], sGB)
    m_, g_ = vt[1], vt[2]
    A("v_and_b32", m_, 15, lane)
    A("v_lshrrev_b32", g_, 4, lane)
    A("v_lshrrev_b32", vt[3], 2, m_)
    A("v_mul_u32_u24", vt[3], 18 * 16, vt[3])
    A("v_mul_u32_u24", vt[4], 152 * 16, g_)
    A("v_add_u32", vt[3], vt[3], vt[4])
    A("v_and_b32", vt[4], 3, lane)
    A("v_lshl_add_u32", vt[3], vt[4], 3, vt[3])
    A("v_add_u32", vAW, sGB, vt[3])

    def dma_w(st):
        if "k3now" in EXP:
            return
        for q in range(5):
            A("s_add_u32", M0, sP[q], (st % 4) * K3_STAGE)
            if q == 4:
                A("s_mov_b32", "exec_hi", 0xFFF)
            A("buffer_load_dwordx4", vDW[q], sW if st < 9 else sW2, sWoff if st < 9 else sWoff2, mods="offen lds")
            if q == 4:
                A("s_mov_b64", EXEC, -1)
        so = sWoff if st < 9 else sWoff2
        A("s_add_u32", so, so, 32 * 1152)

    def load_x(st):
        if "k3nox" in EXP:
            return
        for mt in range(4):
            sx = sX[mt] if st < 9 else sX2[mt]
            A("buffer_load_dwordx4", XF[st % 3][4 * mt:4 * mt + 4], vDX, sWS, sx, mods="offen")
            A("s_add_u32", sx, sx, 1024)

    def wreg(nt, par):
        if nt >= 7 and par:
            return WX[4 * (nt - 7):4 * (nt - 7) + 4]
        return WF[4 * nt:4 * nt + 4]

    def read_w(nt, st):
        w = wreg(nt, st & 1)
        o = (st % 4) * K3_STAGE + nt * 32
        A("ds_read_b64_tr_b16", w[0:2], vAW, mods=f"offset:{o}")
        A("ds_read_b64_tr_b16", w[2:4], vAW, mods=f"offset:{o + 1152}")

    dma_w(0)
    dma_w(1)
    dma_w(2)
    dma_w(3)
    for r in range(144):
        A("v_mov_b32", ACC[r], 0)
    stamp(A, 1)
    A("s_waitcnt", "vmcnt(15)")
    A("s_barrier")
    stamp(A, 2)
    for nt in range(9):
        read_w(nt, 0)
    for k in range(11):
        Lskip = A.newlabel("k3_skip")
        if k < 2:
            A("s_waitcnt", f"vmcnt({(10, 14)[k]}) lgkmcnt(0)")
        elif k <= 5:
            A("s_waitcnt", "vmcnt(9) lgkmcnt(0)")
        else:
            La, Lb, Lc = A.newlabel("k3w"), A.newlabel("k3w"), A.newlabel("k3w")
            if k + 3 < 11:
                A("s_cmp_lt_u32", k + 3, sCnt)
                A("s_cbranch_scc1", La)
            if k + 1 < 11:
                A("s_cmp_lt_u32", k + 1, sCnt)
                A("s_cbranch_scc1", Lb)
            A("s_waitcnt", "vmcnt(0) lgkmcnt(0)")
            A("s_branch", Lc)
            A.label(La)
            A("s_waitcnt", "vmcnt(9) lgkmcnt(0)")
            A("s_branch", Lc)
            A.label(Lb)
            A("s_waitcnt", "vmcnt(4) lgkmcnt(0)")
            A.label(Lc)
        A("s_barrier")
        if k >= 9:
            A("s_cmp_lt_u32", k, sCnt)
            A("s_cbranch_scc0", Lskip)
        if k + 4 < 11:
            if k + 4 >= 9:
                Ln = A.newlabel("k3n")
                A("s_cmp_lt_u32", k + 4, sCnt)
                A("s_cbranch_scc0", Ln)
            dma_w(k + 4)
            if k + 4 >= 9:
                A.label(Ln)
        if k + 2 < 11:
            if k + 2 >= 9:
                Ln = A.newlabel("k3n")
                A("s_cmp_lt_u32", k + 2, sCnt)
                A("s_cbranch_scc0", Ln)
            load_x(k + 2)
            if k + 2 >= 9:
                A.label(Ln)
        nxt = k + 1 < 11
        if nxt:
            read_w(7, k + 1)
            read_w(8, k + 1)
        for nt in range(9):
            w = wreg(nt, k & 1)
            for mt in range(4 if "k3nom" not in EXP else 0):
                acc = ACC[(nt * 4 + mt) * 4:(nt * 4 + mt) * 4 + 4]
                A("v_mfma_f32_16x16x32_bf16", acc, w, XF[k % 3][4 * mt:4 * mt + 4], acc)
            if nt < 7 and nxt:
                read_w(nt, k + 1)
        A.label(Lskip)
        if k in (0, 5):
            stamp(A, 3 + (k == 5))
    A("s_waitcnt", "vmcnt(0) lgkmcnt(0)")
    A("s_barrier")
    stamp(A, 5)
    vW_, vR_ = v(236), v(237)
    TMP = v(144, 72)
    A("v_and_b32", lane, 63, vtid)
    vl16 = v(240)
    A("v_lshlrev_b32", vl16, 4, lane)
    A("s_mul_i32", s(56), s(28), 18432)
    A("v_add_u32", vW_, s(56), vl16)
    A("s_xor_b32", s(57), s(28), 2)
    A("s_mul_i32", s(57), s(57), 18432)
    A("v_add_u32", vR_, s(57), vl16)

    def tile(nt, mt):
        return ACC[(nt * 4 + mt) * 4:(nt * 4 + mt) * 4 + 4]

    va, vb = v(238), v(239)
    A("v_and_b32", m_, 15, lane)
    A("v_lshrrev_b32", g_, 4, lane)
    A("v_add_u32", va, s(46), m_)
    A("v_mul_u32_u24", va, 1152, va)
    A("v_lshl_add_u32", vb, g_, 3, va)
    A("v_and_b32", vt[3], 1, g_)
    A("v_lshl_add_u32", va, vt[3], 5, va)
    A("v_lshrrev_b32", vt[3], 1, g_)
    A("v_lshl_add_u32", va, vt[3], 4, va)
    A("s_mul_i32", s(58), s(31), 2048 * 1152)
    A("s_mul_i32", s(59), s(30), 288)
    A("s_add_u32", s(58), s(58), s(59))
    A("s_add_u32", s(58), s(58), WS_PART)
    Lv = [A.newlabel("k3_v") for _ in range(4)]
    A("s_and_b32", s(59), s(26), 1)
    A("s_cmp_eq_u32", s(59), 1)
    A("s_cbranch_scc1", Lv[1])
    for b0 in range(2):
        if b0:
            A.label(Lv[1])
        keep = [2 * b0, 2 * b0 + 1]
        send = [2 - 2 * b0, 3 - 2 * b0]
        i = 0
        for nt in range(9):
            for mt in send:
                A("ds_write_b128", vW_, tile(nt, mt), mods=f"offset:{i * 1024}")
                i += 1
        A("s_waitcnt", "lgkmcnt(0)")
        A("s_barrier")
        for i in range(18):
            A("ds_read_b128", TMP[4 * i:4 * i + 4], vR_, mods=f"offset:{i * 1024}")
        i = 0
        for nt in range(9):
            for mt in keep:
                A("s_waitcnt", f"lgkmcnt({min(17 - i, 15)})")
                for r in (0, 2):
                    A("v_pk_add_f32", tile(nt, mt)[r:r + 2], tile(nt, mt)[r:r + 2], TMP[4 * i + r:4 * i + r + 2])
                i += 1
        A("s_barrier")
        A("s_xor_b32", s(57), s(28), 4)
        A("s_mul_i32", s(57), s(57), 18432)
        A("v_add_u32", vR_, s(57), vl16)
        A("s_cmp_ge_u32", s(26), 2)
        A("s_cbranch_scc1", Lv[2 + b0])
        for b1 in range(2):
            if b1:
                A.label(Lv[2 + b0])
            km, sm = keep[b1], keep[1 - b1]
            for nt in range(9):
                A("ds_write_b128", vW_, tile(nt, sm), mods=f"offset:{nt * 1024}")
            A("s_waitcnt", "lgkmcnt(0)")
            A("s_barrier")
            for nt in range(9):
                A("ds_read_b128", TMP[4 * nt:4 * nt + 4], vR_, mods=f"offset:{nt * 1024}")
            A("s_add_u32", s(60), s(58), km * 16 * 1152)
            PK = v(220, 4)
            for p in range(5):
                tiles = [2 * p, 2 * p + 1] if p < 4 else [8]
                A("s_waitcnt", f"lgkmcnt({8 - tiles[-1]})")
                for ti, nt in enumerate(tiles):
                    a = tile(nt, km)
                    for r in (0, 2):
                        A("v_pk_add_f32", a[r:r + 2], a[r:r + 2], TMP[4 * nt + r:4 * nt + r + 2])
                    A("v_cvt_pk_bf16_f32", PK[2 * ti], a[0], a[1])
                    A("v_cvt_pk_bf16_f32", PK[2 * ti + 1], a[2], a[3])
                if p < 4:
                    A("v_permlane16_swap_b32", PK[0], PK[2])
                    A("v_permlane16_swap_b32", PK[1], PK[3])
                    A("buffer_store_dwordx4", PK, va, sWS, s(60), mods=f"offen offset:{p * 64}")
                else:
                    A("buffer_store_dwordx2", PK[0:2], vb, sWS, s(60), mods="offen offset:256")
            stamp(A, 6)
            A("s_waitcnt", "vmcnt(0)")
            stamp(A, 7)
            A("s_waitcnt", "lgkmcnt(0)")
            stamp_flush(A, 8, 37, s(28), 0)
            A("s_endpgm")
    A.label(Lend)
    A("s_endpgm")
    return name


def gen_k4(A):
    name = "k4_kernel"
    kernel_header(A, name)
    Lend = A.newlabel("k4_end")
    A("s_cmp_ge_u32", s(2), 576)
    A("s_cbranch_scc1", Lend)
    A("s_load_dwordx2", s(4, 2), s(0, 2), KA_X)
    A("s_load_dwordx4", s(8, 4), s(0, 2), KA_B2)
    A("s_load_dwordx2", s(12, 2), s(0, 2), KA_WS)
    A("s_lshl_b32", s(3), s(2), 8)
    A("v_add_u32", v(1), s(3), v(0))
    A("v_lshlrev_b32", v(2), 4, v(1))
    A("s_mov_b32", s(14), 59652324)
    A("v_mul_hi_u32", v(4), v(1), s(14))
    A("v_mul_u32_u24", v(4), 72, v(4))
    A("v_sub_u32", v(4), v(1), v(4))
    A("v_lshlrev_b32", v(4), 4, v(4))
    A("s_waitcnt", "lgkmcnt(0)")
    sX, sB, sO, sWS = s(16, 4), s(20, 4), s(24, 4), s(28, 4)
    srd(A, sX, s(4, 2), 2048 * 1152)
    srd(A, sB, s(8, 2), 1152)
    srd(A, sO, s(10, 2), 2048 * 1152)
    srd(A, sWS, s(12, 2), WS_SIZE)
    P = v(16, 24)
    for sp in range(4):
        A("s_mov_b32", s(32 + sp), WS_PART + sp * 2048 * 1152)
        A("buffer_load_dwordx4", P[4 * sp:4 * sp + 4], v(2), sWS, s(32 + sp), mods="offen")
    A("buffer_load_dwordx4", P[16:20], v(2), sX, 0, mods="offen")
    A("buffer_load_dwordx4", P[20:24], v(4), sB, 0, mods="offen")
    acc = v(40, 8)
    for sp in range(6):
        A("s_waitcnt", f"vmcnt({5 - sp})")
        for q in range(4):
            if sp == 0:
                A("v_lshlrev_b32", acc[2 * q], 16, P[q])
                A("v_and_b32", acc[2 * q + 1], 0xFFFF0000, P[q])
            else:
                A("v_lshlrev_b32", v(5), 16, P[4 * sp + q])
                A("v_and_b32", v(6), 0xFFFF0000, P[4 * sp + q])
                A("v_add_f32", acc[2 * q], acc[2 * q], v(5))
                A("v_add_f32", acc[2 * q + 1], acc[2 * q + 1], v(6))
    for q in range(4):
        A("v_cvt_pk_bf16_f32", v(8 + q), acc[2 * q], acc[2 * q + 1])
    A("buffer_store_dwordx4", v(8, 4), v(2), sO, 0, mods="offen")
    A.label(Lend)
    A("s_endpgm")
    return name


def main():
    A = Asm()
    hdr = open(os.path.join(os.path.dirname(__file__), "..", "cdna_kernels", NAME + ".s.ref")).read().splitlines()
    head = []
    for l in hdr:
        if l.startswith(";") and "@launch" not in l:
            head.append(l)
        elif not l.startswith(";"):
            break
    head += [
        "; @launch kernel=k1_kernel grid=(176,1,1) block=(512,1,1) lds=108800",
        "; @launch kernel=k2_kernel grid=(512,1,1) block=(256,1,1) lds=81920",
        f"; @launch kernel=k3_kernel grid=(256,1,1) block=(512,1,1) lds={K3_LDS}",
        "; @launch kernel=k4_kernel grid=(576,1,1) block=(256,1,1) lds=0",
        '.amdgcn_target "amdgcn-amd-amdhsa--gfx950"',
        ".text",
    ]
    names = [gen_k1(A), gen_k2(A), gen_k3(A), gen_k4(A)]
    body = A.render()
    out = "\n".join(head) + "\n" + body + '.section .rodata,"a"\n'
    vg = {"k1_kernel": 256, "k2_kernel": 256, "k3_kernel": 256, "k4_kernel": 48}
    for n in names:
        out += ".p2align 6\n" + kd(n, vg[n])
    path = os.environ.get("OUT") or os.path.join(os.path.dirname(__file__), "..", "cdna_kernels", NAME + ".s")
    open(path, "w").write(out)
    print("wrote", path, len(out), "bytes")


if __name__ == "__main__":
    main()
```
